```python
import torch

def _softmax(x, axis=-1):
    return torch.softmax(x, dim=axis)
def _gelu(x):
    return torch.nn.functional.gelu(x, approximate="tanh")
def _silu(x):
    return torch.nn.functional.silu(x)
def _sigmoid(x):
    return torch.sigmoid(x)
def _layernorm(x, axis=-1, eps=1e-5):
    m = x.mean(dim=axis, keepdim=True)
    v = x.var(dim=axis, keepdim=True, unbiased=False)
    return (x - m) / torch.sqrt(v + eps)
def _scatter_add(tgt, idx, src, axis=0):
    return tgt.clone().index_add_(axis, idx, src)
def _segment_sum(src, seg, n):
    out = torch.zeros((n,) + src.shape[1:], dtype=src.dtype)
    return out.index_add_(0, seg, src)
def _pad(x, pw):
    flat = tuple(v for pair in reversed(pw) for v in pair)
    return torch.nn.functional.pad(x, flat)

kernel_name = 'concat_heads__sliding_block_cached__compressed_kv_cla__decode'

def setup_inputs():

    _w = (lambda a: (lambda t: t.to(torch.bfloat16) if t.is_floating_point() else t)(torch.as_tensor(a)))
    def _A_setup():
        B, Sq, D = 2, 1, 576
        Hq, Hkv, Sk, Dh = 32, 16, 8192, 128
        assert Hq % Hkv == 0, (Hq, Hkv)
        return {
            "x": _w((lambda *s: torch.randn(*s, dtype=torch.bfloat16) * 1.6)(B, Sq, D)),
            "k_cache": _w((lambda *s: torch.randn(*s, dtype=torch.bfloat16) * 1.6)(B, Hkv, Sk, Dh)),
            "v_cache": _w((lambda *s: torch.randn(*s, dtype=torch.bfloat16) * 0.05)(B, Hkv, Sk, Dh)),
            "wq": _w((lambda *s: torch.randn(*s, dtype=torch.bfloat16) * 1.6)(D, Hq * Dh) * (D ** -0.5)),
            "wo": _w((lambda *s: torch.randn(*s, dtype=torch.bfloat16) * 0.05)(Hq * Dh, D) * ((Hq * Dh) ** -0.5)),
        }
    _A_in = _A_setup()

    def _B_setup():
        B, H, Sq, Sk, D, M = 2, 32, 1, 8192, 128, 576
        Dc = 4 * D
        return {
            "x": _w((lambda *s: torch.randn(*s, dtype=torch.bfloat16) * 3.2)(B, Sq, M)),
            "c_kv": _w((lambda *s: torch.randn(*s, dtype=torch.bfloat16) * 0.1)(B, Sk, Dc)),
            "w_q": _w((lambda *s: torch.randn(*s, dtype=torch.bfloat16) * 6.4)(M, H, D) * (M ** -0.5)),
            "w_uk": _w((lambda *s: torch.randn(*s, dtype=torch.bfloat16) * 6.4)(Dc, H, D) * (Dc ** -0.5)),
            "w_uv": _w((lambda *s: torch.randn(*s, dtype=torch.bfloat16) * 0.1)(Dc, H, D) * (Dc ** -0.5)),
            "w_o": _w((lambda *s: torch.randn(*s, dtype=torch.bfloat16) * 0.1)(H, D, M) * ((H * D) ** -0.5)),
        }
    _B_in = _B_setup()

    return {
        "A_x": _A_in["x"],
        "A_k_cache": _A_in["k_cache"],
        "A_v_cache": _A_in["v_cache"],
        "A_wq": _A_in["wq"],
        "A_wo": _A_in["wo"],
        "B_x": _B_in["x"],
        "B_c_kv": _B_in["c_kv"],
        "B_w_q": _B_in["w_q"],
        "B_w_uk": _B_in["w_uk"],
        "B_w_uv": _B_in["w_uv"],
        "B_w_o": _B_in["w_o"],
    }

def reference(A_x, A_k_cache, A_v_cache, A_wq, A_wo, B_x, B_c_kv, B_w_q, B_w_uk, B_w_uv, B_w_o):
    def _A_ref(x, k_cache, v_cache, wq, wo):
        B, Sq, D = x.shape
        Hq, Dh = 32, 128
        Hkv, Sk = k_cache.shape[1], k_cache.shape[2]
        W = min(4096, max(256, Sk // 4))
        rep = Hq // Hkv
        q = (lambda x, *d: x.permute(*d))((x @ wq).reshape(B, Sq, Hq, Dh), 0, 2, 1, 3)
        k = (lambda x, n, axis: torch.repeat_interleave(x, n, dim=axis))(k_cache[:, :, Sk - W:, :], rep, axis=1)
        v = (lambda x, n, axis: torch.repeat_interleave(x, n, dim=axis))(v_cache[:, :, Sk - W:, :], rep, axis=1)
        scores = torch.einsum("bhqd,bhkd->bhqk", q, k) * (Dh ** -0.5)
        p = _softmax(scores, axis=-1)
        o = torch.einsum("bhqk,bhkd->bhqd", p, v)
        return (lambda x, *d: x.permute(*d))(o, 0, 2, 1, 3).reshape(B, Sq, Hq * Dh) @ wo

    def _B_ref(x, c_kv, w_q, w_uk, w_uv, w_o):
        B, Sq, M = x.shape[0], x.shape[1], x.shape[2]
        Sk = c_kv.shape[1]
        H, D = w_q.shape[1], w_q.shape[2]
        q = torch.einsum("bqm,mhd->bhqd", x, w_q)
        k = torch.einsum("bkc,chd->bhkd", c_kv, w_uk)
        v = torch.einsum("bkc,chd->bhkd", c_kv, w_uv)
        scores = torch.einsum("bhqd,bhkd->bhqk", q, k) * (D ** -0.5)
        off = Sk - Sq
        qi = torch.arange(Sq)[:, None]
        kj = torch.arange(Sk)[None, :]
        cmask = kj <= (qi + off)
        scores = torch.where(cmask[None, None], scores, -1e9)
        p = _softmax(scores, axis=-1)
        ctx = torch.einsum("bhqk,bhkd->bhqd", p, v)
        return torch.einsum("bhqd,hdm->bqm", ctx, w_o)

    a = _A_ref(A_x, A_k_cache, A_v_cache, A_wq, A_wo)
    b = _B_ref(B_x, B_c_kv, B_w_q, B_w_uk, B_w_uv, B_w_o)
    return torch.concatenate([a, b], axis=-1)
```

```python
import re

def _expand(tok):
    tok = tok.strip()
    m = re.fullmatch(r"([vas])(\d+)", tok)
    if m: return {(m.group(1), int(m.group(2)))}
    m = re.fullmatch(r"([vas])\[(\d+):(\d+)\]", tok)
    if m: return {(m.group(1), k) for k in range(int(m.group(2)), int(m.group(3)) + 1)}
    if tok in ("vcc", "exec", "m0", "scc"): return {(tok, 0)}
    if tok.startswith("-") or tok.startswith("abs(") or tok.startswith("|"):
        t = tok.lstrip("-")
        t = t.replace("abs(", "").replace(")", "").replace("|", "")
        if re.fullmatch(r"[vas]\d+", t): return _expand(t)
    return set()

TRANS = ("v_exp_", "v_log_", "v_rcp_", "v_rsq_", "v_sqrt_", "v_sin_", "v_cos_")

class Ins:
    __slots__ = ("text", "op", "rd", "wr", "kind", "passes", "srcC", "dpp", "states", "ab")
    def __init__(self, text):
        self.text = text
        body = text.split(";")[0].strip()
        parts = body.split(None, 1)
        self.op = parts[0]
        rest = parts[1] if len(parts) > 1 else ""
        ops = [o.strip() for o in rest.split(",")] if rest else []
        mods = []
        if ops:
            last = ops[-1].split()
            ops[-1] = last[0] if last else ""
            mods = last[1:]
        self.rd = set(); self.wr = set(); self.kind = "other"; self.passes = 0
        self.srcC = set(); self.ab = set(); self.dpp = False; self.states = 1
        op = self.op
        E = [_expand(o) for o in ops]
        if op == "s_nop":
            self.kind = "nop"; self.states = int(ops[0], 0) + 1
        elif op.startswith("v_mfma"):
            self.kind = "mfma"
            self.passes = 8 if "32x32x16" in op else 4
            self.wr = E[0]; self.ab = E[1] | E[2]; self.srcC = E[3]; self.rd = self.ab | self.srcC
        elif op.startswith("v_cmp"):
            self.kind = "valu"; self.wr = E[0]; self.rd = set().union(*E[1:])
        elif op in ("v_readfirstlane_b32", "v_readlane_b32"):
            self.kind = "valu"; self.wr = E[0]; self.rd = set().union(*E[1:])
        elif op.startswith("v_permlane") and "swap" in op:
            self.kind = "valu"; self.wr = E[0] | E[1]; self.rd = E[0] | E[1]
        elif op.startswith("v_"):
            self.kind = "valu"
            self.wr = set(E[0])
            srcs = E[1:]
            if op.startswith(("v_add_co", "v_sub_co", "v_addc_co", "v_subb_co")):
                self.wr |= E[1]; srcs = E[2:]
            self.rd = set().union(*srcs) if srcs else set()
            if op.startswith(("v_fmac", "v_mac", "v_dot2c")): self.rd |= E[0]
            if op.startswith("v_cndmask") and len(ops) == 3: self.rd |= {("vcc", 0)}
            if any(m.startswith(("quad_perm", "row_", "wave_")) for m in mods) or "_dpp" in op:
                self.dpp = True; self.rd |= E[0]
        elif op.startswith("ds_"):
            self.kind = "ds"
            if op.startswith("ds_read") or op.startswith("ds_bpermute") or op.startswith("ds_swizzle"):
                self.wr = E[0]; self.rd = set().union(*E[1:])
            else:
                self.rd = set().union(*E)
        elif op.startswith("buffer_") or op.startswith("global_"):
            self.kind = "vmem"
            if "load" in op and "lds" not in mods:
                self.wr = E[0]; self.rd = set().union(*E[1:])
            elif "load" in op:
                self.kind = "vmem_lds"; self.rd = set().union(*E) | {("m0", 0)}
            else:
                self.rd = set().union(*E)
                if "x4" in op or "x3" in op: self.kind = "vmem_st4"; self.srcC = E[0]
        elif op.startswith("s_"):
            self.kind = "salu"
            if op.startswith(("s_cmp", "s_cbranch", "s_branch", "s_waitcnt", "s_barrier", "s_endpgm", "s_sleep", "s_setprio", "s_bitcmp")):
                self.rd = set().union(*E) if E else set()
            else:
                self.wr = set(E[0]) if E else set(); self.rd = set().union(*E[1:]) if len(E) > 1 else set()
                if "saveexec" in op: self.wr |= {("exec", 0)}
    def is_trans(self): return self.op.startswith(TRANS)

def isv(r): return r[0] in ("v", "a")
def iss(r): return r[0] in ("s", "vcc")

def need_gap(p, c):
    n = 0
    pv = {r for r in p.wr if isv(r)}
    ps = {r for r in p.wr if iss(r)}
    if p.kind == "valu":
        if c.kind == "mfma" and pv & c.rd: n = max(n, 2)
        if c.kind == "valu":
            if ps & c.rd and c.op not in ("v_readlane_b32",): n = max(n, 2)
            if c.op in ("v_readfirstlane_b32", "v_readlane_b32") and pv & c.rd: n = max(n, 1)
            if c.op.startswith("v_permlane") and pv & c.rd: n = max(n, 2)
            if c.dpp and pv & c.rd: n = max(n, 2)
            if p.is_trans() and not c.is_trans() and pv & c.rd: n = max(n, 1)
        if c.kind in ("vmem", "vmem_lds", "vmem_st4") and ps & c.rd: n = max(n, 5)
        if c.kind == "salu" and ps & c.rd: n = max(n, 1)
    if p.kind == "mfma":
        big = p.passes == 8
        if c.kind == "mfma":
            if p.wr & c.ab: n = max(n, 12 if big else 8)
            if p.wr & c.srcC and not (p.wr == c.srcC and p.passes == c.passes): n = max(n, 10 if big else 6)
        elif c.kind in ("valu", "ds", "vmem", "vmem_lds", "vmem_st4"):
            if p.wr & (c.rd | c.wr): n = max(n, 12 if big else 8)
            if c.kind == "valu" and p.srcC & c.wr: n = max(n, 7 if big else 3)
    if p.kind == "vmem_st4" and c.kind in ("valu", "ds", "vmem") and p.srcC & c.wr: n = max(n, 2)
    if p.kind == "salu" and ("m0", 0) in p.wr and c.kind == "vmem_lds": n = max(n, 1)
    return n

class Asm:
    def __init__(self):
        self.items = []
        self.nlab = 0
        self.vm = []
        self.lg = []
        self.smem = False
    def __call__(self, s):
        for l in s.strip("\n").split("\n"):
            l = l.strip()
            if not l: continue
            if l.startswith(";"): self.items.append(("c", l)); continue
            if l.endswith(":"): self.items.append(("l", l[:-1])); continue
            self.items.append(("i", l))
    def label(self, n): self.items.append(("l", n))
    def newlabel(self, b="L"):
        self.nlab += 1; return f"{b}_{self.nlab}"
    def vmem(self, text, name=None):
        self(text); self.vm.append(name)
    def wait_vm(self, name=None, extra=""):
        if name is None:
            n = 0; self.vm = []
        else:
            idx = max(i for i, x in enumerate(self.vm) if x == name)
            n = len(self.vm) - 1 - idx
            self.vm = self.vm[idx + 1:]
        assert n <= 63
        self(f"s_waitcnt vmcnt({n}){extra}")
    def try_wait_vm(self, name):
        if name in self.vm: self.wait_vm(name)
    def lds(self, text, name=None):
        self(text); self.lg.append(name)
    def wait_lg(self, name=None):
        if name is None or self.smem:
            n = 0; self.lg = []; self.smem = False
        else:
            if name not in self.lg: return
            idx = max(i for i, x in enumerate(self.lg) if x == name)
            n = len(self.lg) - 1 - idx
            self.lg = self.lg[idx + 1:]
            assert n <= 15, n
        self(f"s_waitcnt lgkmcnt({n})")
    def barrier(self):
        self.wait_lg()
        self("s_barrier")
    def text(self):
        out = []; hist = []
        npad = 0
        for kind, t in self.items:
            if kind == "c": out.append("    " + t); continue
            if kind == "l": out.append(t + ":"); continue
            c = Ins(t)
            need = 0; dist = 0
            for p in reversed(hist):
                g = need_gap(p, c)
                if g > dist: need = max(need, g - dist)
                dist += p.states
                if dist > 14: break
            while need > 0:
                k = min(need, 16)
                out.append(f"    s_nop {k-1}"); hist.append(Ins(f"s_nop {k-1}")); need -= k; npad += 1
            out.append("    " + t); hist.append(c)
            if len(hist) > 40: hist = hist[-30:]
        self.npad = npad
        return "\n".join(out) + "\n"
```

```python
import sys, argparse
from asmcore import Asm
KN = "concat_heads__sliding_block_cached__compressed_kv_cla__decode"

QP   = 0x1000
QA   = 0x90000
UO   = 0xC0000
UML  = 0x140000
PBML = 0x150000
OP   = 0x180000
PB   = 0x400000
STAMP = 0x8000000
X = 131072
RED1, QB, RED2, MLS = 0, 4096, 8192, 12288
XS, RED4, RF = 16384, 20480, 28672
XS2, REDA, XS3, REDB = 0, 4096, 8192, 12288
MX, LS, PF = 0, 512, 1024
C1 = (128 ** -0.5) * 1.4426950408889634
import struct
def f2u(x): return struct.unpack("<I", struct.pack("<f", x))[0]

class Cfg:
    nt = True
    stamps = False
    s_n1 = 6
    s_nv1 = 12
    b_n1 = 4
    b_n2 = 4
    spin = 200000
    wnt = True

def gen(cfg):
    a = Asm()
    NT = " nt" if cfg.nt else ""
    WNT = " nt" if cfg.wnt else ""
    sW, sWv, sTag, sT0, sT1, sT2, sT3 = "s2", "s3", "s66", "s67", "s68", "s69", "s64"
    sKB, sSpin, sH, sQb, sUO, sUML, sR = "s65", "s96", "s97", "s98", "s99", "s100", "s101"
    sBr = "s95"
    WS, XR, W1, KV, VV, WO, WUV, OUT = "s[4:7]", "s[8:11]", "s[12:15]", "s[16:19]", "s[20:23]", "s[24:27]", "s[28:31]", "s[32:35]"
    nstamp = [0]
    def stamp(k):
        if cfg.stamps:
            a(f"s_memrealtime s[{70+2*k}:{71+2*k}]"); a.smem = True
    vTau, vLane, vI, vKg = "v0", "v1", "v2", "v3"
    SEL = [[f"v{4+hs*4+r}" for r in range(4)] for hs in range(2)]
    vTag, vBp, vRedW, vTau4, vTau8 = "v12", "v13", "v14", "v15", "v16"
    vA, vB_, vC = "v17", "v18", "v19"

    def R(base, n, k="v"): return f"{k}[{base}:{base+n-1}]"

    def build_frag(dst, src, hs):
        for r in range(4):
            a(f"v_perm_b32 v{dst+r}, {src}, {src}, {SEL[hs][r]}")

    def red_write(acc, vaddr, off):
        for r in range(4):
            a.lds(f"ds_write_b32 {vaddr}, v{acc+r} offset:{off + r*32}", "redw")

    def red_sum4(dst, tmp, off, stride):
        for w in range(4):
            a.lds(f"ds_read_b32 v{tmp+w}, {vTau4} offset:{off + w*stride}", "redr")
        a.wait_lg()
        a(f"v_add_f32 v{tmp}, v{tmp}, v{tmp+1}")
        a(f"v_add_f32 v{tmp+2}, v{tmp+2}, v{tmp+3}")
        a(f"v_add_f32 v{dst}, v{tmp}, v{tmp+2}")

    def poll(issue, tagregs, waitname, dbgcode, pre_wait=None):
        Lchk = a.newlabel("L_chk"); Lok = a.newlabel("L_ok"); Lto = a.newlabel("L_to")
        a.wait_vm(waitname)
        saved_vm = list(a.vm)
        a(f"s_mov_b32 {sSpin}, {cfg.spin}")
        a.label(Lchk)
        a(f"v_xor_b32 {vA}, {vTag}, v{tagregs[0]}")
        rest = tagregs[1:]
        for t in rest:
            a(f"v_xor_b32 {vB_}, {vTag}, v{t}")
            a(f"v_or_b32 {vA}, {vA}, {vB_}")
        a(f"v_cmp_ne_u32 vcc, 0, {vA}")
        a(f"s_cbranch_vccz {Lok}")
        a(f"s_sub_u32 {sSpin}, {sSpin}, 1")
        a(f"s_cmp_eq_u32 {sSpin}, 0")
        a(f"s_cbranch_scc1 {Lto}")
        a.vm = []
        issue()
        a("s_waitcnt vmcnt(0)")
        a(f"s_branch {Lchk}")
        a.label(Lto)
        a(f"""s_mov_b32 s36, s60
        s_mov_b32 s37, s61
        s_mov_b32 s38, 256
        s_mov_b32 s39, 0x20000
        v_mov_b32 {vA}, {4*dbgcode}
        v_mov_b32 {vB_}, 1
        buffer_store_dword {vB_}, {vA}, s[36:39], 0 offen
        s_waitcnt vmcnt(0)""")
        a.label(Lok)
        a.vm = saved_vm

    a(f"""
    s_cmp_ge_u32 s2, 256
    s_cbranch_scc1 L_end
    s_load_dwordx16 s[36:51], s[0:1], 0
    s_load_dwordx8 s[52:59], s[0:1], 64
    s_load_dwordx4 s[60:63], s[0:1], 96
    """)
    if cfg.stamps:
        for k in range(12): a(f"s_mov_b64 s[{70+2*k}:{71+2*k}], 0")
    stamp(0)
    a(f"""
    v_and_b32 {vLane}, 63, {vTau}
    v_lshrrev_b32 {vA}, 6, {vTau}
    v_and_b32 {vI}, 15, {vTau}
    v_bfe_u32 {vKg}, {vTau}, 4, 2
    v_readfirstlane_b32 {sWv}, {vA}
    v_bfe_u32 {vBp}, {vTau}, 3, 1
    s_lshr_b32 {sBr}, {sW}, 7
    s_waitcnt lgkmcnt(0)
    s_load_dword {sTag}, s[62:63], 0
    s_cmp_ge_u32 {sW}, 128
    s_mov_b32 s4, s62
    s_mov_b32 s5, s63
    s_mov_b32 s6, 0x10000000
    s_mov_b32 s7, 0x20000
    s_cselect_b32 s8, s46, s36
    s_cselect_b32 s9, s47, s37
    s_mov_b32 s10, 2304
    s_mov_b32 s11, 0x20000
    s_cselect_b32 s12, s50, s42
    s_cselect_b32 s13, s51, s43
    s_mov_b32 s14, 4718592
    s_mov_b32 s15, 0x20000
    s_cselect_b32 s16, s48, s38
    s_cselect_b32 s17, s49, s39
    s_mov_b32 s18, 67108864
    s_cselect_b32 s18, 16777216, s18
    s_mov_b32 s19, 0x20000
    s_cselect_b32 s20, s52, s40
    s_cselect_b32 s21, s53, s41
    s_mov_b32 s22, 67108864
    s_cselect_b32 s22, 4194304, s22
    s_mov_b32 s23, 0x20000
    s_cselect_b32 s24, s56, s44
    s_cselect_b32 s25, s57, s45
    s_mov_b32 s26, 4718592
    s_mov_b32 s27, 0x20000
    s_mov_b32 s28, s54
    s_mov_b32 s29, s55
    s_mov_b32 s30, 4194304
    s_mov_b32 s31, 0x20000
    s_mov_b32 s32, s58
    s_mov_b32 s33, s59
    s_mov_b32 s34, 4608
    s_mov_b32 s35, 0x20000
    """)
    a.smem = True
    vXo, vWo = "v20", "v21"
    VX = 22
    VW = 32
    ACC = 68; FR0 = 72; FR1 = 76
    a(f"""
    ; h = (w>>2)&31, rq = w&3
    s_bfe_u32 {sH}, {sW}, 0x50002
    s_and_b32 {sT0}, {sW}, 3
    s_mul_i32 {sT0}, {sT0}, 144
    s_mul_i32 {sT1}, {sWv}, 36
    s_add_u32 {sT0}, {sT0}, {sT1}
    v_mul_u32_u24 {vXo}, 1152, {vBp}
    v_mul_u32_u24 {vA}, 18, {vKg}
    v_add_u32 {vXo}, {vXo}, {vA}
    s_lshl_b32 {sT1}, {sT0}, 1
    v_mul_u32_u24 {vWo}, 73728, {vKg}
    v_lshlrev_b32 {vA}, 4, {vI}
    v_add_u32 {vWo}, {vWo}, {vA}
    s_lshl_b32 {sT2}, {sT0}, 13
    s_lshl_b32 {sT3}, {sH}, 8
    s_add_u32 {sT2}, {sT2}, {sT3}
    """)
    for tt in range(9):
        a.vmem(f"buffer_load_ushort v{VX+tt}, {vXo}, {XR}, {sT1} offen offset:{2*tt}", "x")
    for tt in range(9):
        a.vmem(f"buffer_load_dwordx4 {R(VW+4*tt,4)}, {vWo}, {W1}, {sT2} offen{WNT}", f"w1_{tt}")
        if tt < 8: a(f"s_add_u32 {sT2}, {sT2}, 8192")
    a(f"""
    v_and_b32 {vA}, 1, {vLane}
    v_cmp_eq_u32 vcc, 1, {vA}
    v_mov_b32 {vB_}, 0x0c0c0100
    v_mov_b32 {vC}, 0x01000c0c
    v_cndmask_b32 v68, {vB_}, {vC}, vcc
    v_mov_b32 {vB_}, 0x0c0c0302
    v_mov_b32 {vC}, 0x03020c0c
    v_cndmask_b32 v69, {vB_}, {vC}, vcc
    v_bfe_u32 {vA}, {vLane}, 1, 2
    v_mov_b32 {vB_}, 0x0c0c0c0c
    """)
    for r in range(4):
        a(f"v_cmp_eq_u32 vcc, {r}, {vA}")
        a(f"v_cndmask_b32 {SEL[0][r]}, {vB_}, v68, vcc")
        a(f"v_cndmask_b32 {SEL[1][r]}, {vB_}, v69, vcc")
    a(f"""
    v_lshlrev_b32 {vTau4}, 2, {vTau}
    v_add_u32 {vTau4}, {X}, {vTau4}
    v_lshlrev_b32 {vTau8}, 3, {vTau}
    v_lshlrev_b32 {vRedW}, 9, {vBp}
    v_lshlrev_b32 {vA}, 7, {vKg}
    v_add_u32 {vRedW}, {vRedW}, {vA}
    v_and_b32 {vA}, 7, {vLane}
    v_lshlrev_b32 {vA}, 2, {vA}
    v_add_u32 {vRedW}, {vRedW}, {vA}
    s_lshl_b32 {sT0}, {sWv}, 10
    s_add_u32 {sT0}, {sT0}, {X}
    v_add_u32 {vRedW}, {sT0}, {vRedW}
    """)

    def p1a_compute():
        a.wait_lg()
        a(f"s_mul_i32 {sTag}, {sTag}, 0x9E3779B1")
        a(f"s_add_u32 {sTag}, {sTag}, 0x7F4A7C15")
        a(f"v_mov_b32 {vTag}, {sTag}")
        a.wait_vm("x")
        build_frag(FR0, f"v{VX}", 0)
        for tt in range(9):
            cur = FR0 if tt % 2 == 0 else FR1
            nxt = FR1 if tt % 2 == 0 else FR0
            if tt < 8: build_frag(nxt, f"v{VX+tt+1}", 0)
            a.wait_vm(f"w1_{tt}")
            c = "0" if tt == 0 else R(ACC, 4)
            a(f"v_mfma_f32_16x16x32_bf16 {R(ACC,4)}, {R(VW+4*tt,4)}, {R(cur,4)}, {c}")
        red_write(ACC, vRedW, RED1)
        a.barrier()
        red_sum4(80, 72, RED1, 1024)
        a(f"v_mov_b32 v81, {vTag}")
        a(f"s_lshl_b32 {sT0}, {sW}, 11")
        a(f"s_add_u32 {sT0}, {sT0}, {QP}")
        a.vmem(f"buffer_store_dwordx2 v[80:81], {vTau8}, {WS}, {sT0} offen sc1", "qp_st")
        stamp(1)

    VQ = 86
    def q_issue():
        a(f"v_lshlrev_b32 v85, 3, {vLane}")
        a.vmem(f"buffer_load_dwordx2 v[{VQ}:{VQ+1}], v85, {WS}, {sQb} offen sc1", "q")
        a.vmem(f"buffer_load_dwordx2 v[{VQ+2}:{VQ+3}], v85, {WS}, {sQb} offen offset:2048 sc1", "q")
        a(f"s_add_u32 {sT3}, {sQb}, 4096")
        a.vmem(f"buffer_load_dwordx2 v[{VQ+4}:{VQ+5}], v85, {WS}, {sT3} offen sc1", "q")
        a.vmem(f"buffer_load_dwordx2 v[{VQ+6}:{VQ+7}], v85, {WS}, {sT3} offen offset:2048 sc1", "q")
    VQF = 96
    def q_finish(dbg):
        poll(q_issue, [VQ+1, VQ+3, VQ+5, VQ+7], "q", dbg)
        a(f"v_add_f32 v{VQ}, v{VQ}, v{VQ+2}")
        a(f"v_add_f32 v{VQ+4}, v{VQ+4}, v{VQ+6}")
        a(f"v_add_f32 v{VQ}, v{VQ}, v{VQ+4}")
        a(f"v_cvt_pk_bf16_f32 v{VQ}, v{VQ}, v{VQ}")
        a(f"v_lshlrev_b32 {vA}, 1, {vTau}")
        a(f"v_add_u32 {vA}, {X}, {vA}")
        a.lds(f"ds_write_b16 {vA}, v{VQ} offset:{QB}", "qb")
        a.barrier()
        a(f"v_lshlrev_b32 {vA}, 8, {vBp}")
        a(f"v_lshlrev_b32 {vB_}, 4, {vKg}")
        a(f"v_add_u32 {vA}, {vA}, {vB_}")
        a(f"v_add_u32 {vA}, {X}, {vA}")
        for t in range(4):
            a.lds(f"ds_read_b128 {R(VQF+4*t,4)}, {vA} offset:{QB + 64*t}", "qf")

    a(f"s_cmp_ge_u32 {sW}, 128")
    a("s_cbranch_scc1 L_roleB")
    vm_at_split = list(a.vm); smem_at_split = a.smem

    VKO = 80
    VKO = 200; VVO = 204
    a(f"""
    s_lshr_b32 {sT0}, {sW}, 2
    s_lshl_b32 {sKB}, {sT0}, 21
    s_and_b32 {sT0}, {sW}, 3
    s_lshl_b32 {sT0}, {sT0}, 17
    s_add_u32 {sKB}, {sKB}, {sT0}
    s_add_u32 {sKB}, {sKB}, {6144*256}
    s_lshl_b32 {sT0}, {sWv}, 15
    s_add_u32 {sKB}, {sKB}, {sT0}
    v_xor_b32 {vA}, {vI}, {vKg}
    v_lshlrev_b32 {vA}, 4, {vA}
    v_lshlrev_b32 {vB_}, 8, {vKg}
    v_add_u32 v{VKO}, {vA}, {vB_}
    v_xor_b32 v{VKO+1}, 64, v{VKO}
    v_xor_b32 v{VKO+2}, 128, v{VKO}
    v_xor_b32 v{VKO+3}, 192, v{VKO}
    v_lshlrev_b32 {vA}, 4, {vI}
    v_lshlrev_b32 {vB_}, 10, {vKg}
    v_add_u32 v{VVO}, {vA}, {vB_}
    """)
    def k_dma(n):
        if n % 4 == 0:
            a(f"s_lshl_b32 {sT0}, {sWv}, 15")
            a(f"s_add_u32 m0, {sT0}, {(n//4)*4096}")
            a(f"s_add_u32 {sT1}, {sKB}, {(n//4)*4096}")
        a.vmem(f"buffer_load_dwordx4 v{VKO + n%4}, {KV}, {sT1} offen offset:{(n%4)*1024}{NT} lds", "k")
    def k_dma_range(lo, hi):
        for n in range(lo, hi):
            if n == lo and n % 4 != 0:
                a(f"s_lshl_b32 {sT0}, {sWv}, 15")
                a(f"s_add_u32 m0, {sT0}, {(n//4)*4096}")
                a(f"s_add_u32 {sT1}, {sKB}, {(n//4)*4096}")
            k_dma(n)
    def v_load(n):
        T, r = n // 4, n % 4
        a(f"s_add_u32 {sT2}, {sKB}, {T*4096}")
        a.vmem(f"buffer_load_dwordx4 a[{4*n}:{4*n+3}], v{VVO}, {VV}, {sT2} offen offset:{r*256}{NT}", f"v{n}")

    k_dma_range(0, cfg.s_n1)
    p1a_compute()
    k_dma_range(cfg.s_n1, 32)
    for n in range(cfg.s_nv1): v_load(n)
    a(f"""
    s_bfe_u32 {sT0}, {sW}, 0x40002
    s_lshl_b32 {sT0}, {sT0}, 1
    s_lshr_b32 {sT1}, {sWv}, 1
    s_add_u32 {sT0}, {sT0}, {sT1}
    s_lshl_b32 {sQb}, {sT0}, 13
    s_lshr_b32 {sT0}, {sW}, 6
    s_lshl_b32 {sT0}, {sT0}, 10
    s_add_u32 {sQb}, {sQb}, {sT0}
    s_and_b32 {sT0}, {sWv}, 1
    s_lshl_b32 {sT0}, {sT0}, 9
    s_add_u32 {sQb}, {sQb}, {sT0}
    s_add_u32 {sQb}, {sQb}, {QP}
    """)
    q_issue()
    for n in range(cfg.s_nv1, 32): v_load(n)
    q_finish(0)
    stamp(2)
    VKA = 112; RING = 116; NR = 8; SC = 148; PK = 180
    for t in range(4):
        a(f"v_add_u32 {vA}, {4*t}, {vKg}")
        a(f"v_xor_b32 {vA}, {vA}, {vI}")
        a(f"v_lshlrev_b32 {vA}, 4, {vA}")
        a(f"v_lshl_add_u32 v{VKA+t}, {vI}, 8, {vA}")
    a(f"s_lshl_b32 {sT0}, {sWv}, 15")
    for t in range(4):
        a(f"v_add_u32 v{VKA+t}, {sT0}, v{VKA+t}")
    steps = [(T, t) for T in range(8) for t in range(4)]
    def kread(idx):
        T, t = steps[idx]
        a.lds(f"ds_read_b128 {R(RING + 4*(idx % NR), 4)}, v{VKA+t} offset:{T*4096}", f"kr{idx}")
    for idx in range(NR): kread(idx)
    for idx, (T, t) in enumerate(steps):
        a.wait_lg(f"kr{idx}")
        c = "0" if t == 0 else R(SC+4*T, 4)
        a(f"v_mfma_f32_16x16x32_bf16 {R(SC+4*T,4)}, {R(RING + 4*(idx % NR),4)}, {R(VQF+4*t,4)}, {c}")
        if idx + NR < len(steps): kread(idx + NR)
    vM, vL, vNM = "v196", "v197", "v198"
    a(f"v_max3_f32 {vM}, v{SC}, v{SC+1}, v{SC+2}")
    for k in range(3, 31, 2):
        a(f"v_max3_f32 {vM}, {vM}, v{SC+k}, v{SC+k+1}")
    a(f"v_max_f32 {vM}, {vM}, v{SC+31}")
    def xlane_reduce(v, op, tmp):
        a(f"v_mov_b32 {tmp}, {v}")
        a(f"v_permlane16_swap_b32 {v}, {tmp}")
        a(f"{op} {v}, {v}, {tmp}")
        a(f"v_mov_b32 {tmp}, {v}")
        a(f"v_permlane32_swap_b32 {v}, {tmp}")
        a(f"{op} {v}, {v}, {tmp}")
    xlane_reduce(vM, "v_max_f32", vA)
    a(f"s_mov_b32 {sT0}, {f2u(C1):#x}")
    a(f"v_mul_f32 {vM}, {sT0}, {vM}")
    for k in range(32):
        a(f"v_fma_f32 v{SC+k}, v{SC+k}, {sT0}, -{vM}")
    for k in range(32):
        a(f"v_exp_f32 v{SC+k}, v{SC+k}")
    a(f"v_add_f32 {vL}, v{SC}, v{SC+1}")
    for k in range(2, 32):
        a(f"v_add_f32 {vL}, {vL}, v{SC+k}")
    for k in range(16):
        a(f"v_cvt_pk_bf16_f32 v{PK+k}, v{SC+2*k}, v{SC+2*k+1}")
    xlane_reduce(vL, "v_add_f32", vA)
    stamp(3)
    OACC = 68
    build_frag(FR0, f"v{PK}", 0)
    for n in range(32):
        cur = FR0 if n % 2 == 0 else FR1
        nxt = FR1 if n % 2 == 0 else FR0
        if n < 31: build_frag(nxt, f"v{PK + (n+1)//2}", (n+1) % 2)
        a.try_wait_vm(f"v{n}")
        c = "0" if n == 0 else R(OACC, 4)
        a(f"v_mfma_f32_16x16x32_bf16 {R(OACC,4)}, a[{4*n}:{4*n+3}], {R(cur,4)}, {c}")
    stamp(4)
    red_write(OACC, vRedW, RED2)
    a(f"""
    v_lshlrev_b32 {vA}, 3, {vBp}
    s_lshl_b32 {sT0}, {sWv}, 4
    s_add_u32 {sT0}, {sT0}, {X + MLS}
    v_add_u32 {vA}, {sT0}, {vA}
    v_and_b32 {vB_}, 0x37, {vLane}
    v_cmp_eq_u32 vcc, 0, {vB_}
    s_and_saveexec_b64 s[36:37], vcc
    """)
    a.lds(f"ds_write_b64 {vA}, v[196:197]", "mlw")
    a("s_mov_b64 exec, s[36:37]")
    a.barrier()
    a(f"v_lshrrev_b32 {vA}, 7, {vTau}")
    a(f"v_lshlrev_b32 {vA}, 3, {vA}")
    a(f"v_add_u32 {vA}, {X + MLS}, {vA}")
    for w in range(4):
        a.lds(f"ds_read_b64 v[{80+2*w}:{81+2*w}], {vA} offset:{16*w}", "mlr")
    for w in range(4):
        a.lds(f"ds_read_b32 v{88+w}, {vTau4} offset:{RED2 + w*1024}", "redr")
    a.wait_lg()
    a("v_max3_f32 v92, v80, v82, v84")
    a("v_max_f32 v92, v92, v86")
    for w in range(4):
        a(f"v_sub_f32 v{80+2*w}, v{80+2*w}, v92")
    for w in range(4):
        a(f"v_exp_f32 v{80+2*w}, v{80+2*w}")
    a("v_mul_f32 v94, v80, v88")
    a("v_mul_f32 v96, v80, v81")
    for w in range(1, 4):
        a(f"v_fmac_f32 v94, v{80+2*w}, v{88+w}")
        a(f"v_fmac_f32 v96, v{80+2*w}, v{81+2*w}")
    a(f"""
    v_mov_b32 v95, {vTag}
    v_lshrrev_b32 {vA}, 7, {vTau}
    v_and_b32 {vB_}, 127, {vTau}
    v_lshlrev_b32 {vC}, 13, {vA}
    v_lshl_add_u32 {vC}, {vB_}, 3, {vC}
    s_bfe_u32 {sT0}, {sW}, 0x40002
    s_lshl_b32 {sT1}, {sT0}, 14
    s_and_b32 {sT2}, {sW}, 3
    s_lshl_b32 {sT3}, {sT2}, 11
    s_add_u32 {sT1}, {sT1}, {sT3}
    s_lshr_b32 {sT3}, {sW}, 6
    s_lshl_b32 {sT3}, {sT3}, 10
    s_add_u32 {sT1}, {sT1}, {sT3}
    s_add_u32 {sT1}, {sT1}, {UO}
    """)
    a.vmem(f"buffer_store_dwordx2 v[94:95], {vC}, {WS}, {sT1} offen sc1", "pa_st")
    a(f"""
    v_mov_b32 v98, v92
    v_mov_b32 v99, {vTag}
    v_mov_b32 v100, v96
    v_mov_b32 v101, {vTag}
    v_lshlrev_b32 {vC}, 7, {vA}
    s_lshl_b32 {sT1}, {sT0}, 8
    s_lshr_b32 {sT3}, {sW}, 6
    s_lshl_b32 {sT3}, {sT3}, 6
    s_add_u32 {sT1}, {sT1}, {sT3}
    s_lshl_b32 {sT2}, {sT2}, 4
    s_add_u32 {sT1}, {sT1}, {sT2}
    s_add_u32 {sT1}, {sT1}, {UML}
    v_cmp_eq_u32 vcc, 0, {vB_}
    s_and_saveexec_b64 s[36:37], vcc
    s_cbranch_execz L_s_noml
    buffer_store_dwordx4 v[98:101], {vC}, {WS}, {sT1} offen sc1
    L_s_noml:
    s_mov_b64 exec, s[36:37]
    """)
    a.vm.append("ml_st_maybe")
    stamp(5)
    a(f"s_lshr_b32 {sH}, {sW}, 2")
    a(f"s_lshr_b32 {sR}, {sW}, 2")
    a("s_branch L_stage4")

    a.label("L_roleB")
    a.vm = list(vm_at_split); a.smem = smem_at_split; a.lg = []
    vWuk = "v200"; vL16 = "v201"
    a(f"""
    v_lshlrev_b32 {vWuk}, 13, {vI}
    v_lshl_add_u32 {vWuk}, {vKg}, 4, {vWuk}
    s_and_b32 {sT0}, {sW}, 3
    s_lshl_b32 {sT0}, {sT0}, 7
    s_lshl_b32 {sT1}, {sWv}, 5
    s_add_u32 {sT0}, {sT0}, {sT1}
    s_lshl_b32 {sT0}, {sT0}, 13
    s_lshl_b32 {sT1}, {sH}, 8
    s_add_u32 {sT0}, {sT0}, {sT1}
    s_add_u32 {sT1}, {sT0}, {16*8192}
    """)
    for T2 in range(2):
        for t in range(4):
            n = T2 * 4 + t
            a.vmem(f"buffer_load_dwordx4 a[{4*n}:{4*n+3}], {vWuk}, {VV}, {sT0 if T2 == 0 else sT1} offen offset:{64*t}{WNT}", f"uk{n}")
    a(f"""
    s_sub_u32 {sKB}, {sW}, 128
    s_lshl_b32 {sKB}, {sKB}, 17
    s_lshl_b32 {sT0}, {sWv}, 15
    s_add_u32 {sKB}, {sKB}, {sT0}
    v_lshlrev_b32 {vL16}, 4, {vLane}
    """)
    def fkey(k): return ((k & 3) << 2) | ((k >> 2) & 3)
    def c_dma_range(lo, hi):
        for n in range(lo, hi):
            if n % 4 == 0 or n == lo:
                a(f"s_lshl_b32 {sT0}, {sWv}, 15")
                a(f"s_add_u32 m0, {sT0}, {(n//4)*4096}")
                a(f"s_add_u32 {sT1}, {sKB}, {(n//4)*4096}")
            tmp = f"v{202 + n % 4}"
            a(f"v_xor_b32 {tmp}, {fkey(n) << 4}, {vL16}")
            a.vmem(f"buffer_load_dwordx4 {tmp}, {KV}, {sT1} offen offset:{(n%4)*1024}{NT} lds", "c")
    c_dma_range(0, cfg.b_n1)
    p1a_compute()
    c_dma_range(cfg.b_n1, cfg.b_n1 + cfg.b_n2)
    a(f"""
    s_add_u32 {sT0}, {sH}, 32
    s_lshl_b32 {sQb}, {sT0}, 13
    s_lshl_b32 {sT0}, {sWv}, 9
    s_add_u32 {sQb}, {sQb}, {sT0}
    s_add_u32 {sQb}, {sQb}, {QP}
    """)
    q_issue()
    q_finish(1)
    stamp(2)
    DA = 68
    a.wait_lg()
    for T2 in range(2):
        for t in range(4):
            n = T2 * 4 + t
            a.try_wait_vm(f"uk{n}")
            c = "0" if t == 0 else R(DA + 4*T2, 4)
            a(f"v_mfma_f32_16x16x32_bf16 {R(DA+4*T2,4)}, a[{4*n}:{4*n+3}], {R(VQF+4*t,4)}, {c}")
    a(f"""
    v_lshlrev_b32 {vA}, 16, {vBp}
    v_lshl_add_u32 {vA}, {vKg}, 4, {vA}
    s_lshl_b32 {sT0}, {sH}, 11
    s_and_b32 {sT1}, {sW}, 3
    s_lshl_b32 {sT1}, {sT1}, 9
    s_add_u32 {sT0}, {sT0}, {sT1}
    s_lshl_b32 {sT1}, {sWv}, 7
    s_add_u32 {sT0}, {sT0}, {sT1}
    s_add_u32 {sT0}, {sT0}, {QA}
    v_mov_b32 v81, {vTag}
    v_mov_b32 v83, {vTag}
    v_mov_b32 v85, {vTag}
    v_mov_b32 v87, {vTag}
    v_cvt_pk_bf16_f32 v80, v{DA}, v{DA+1}
    v_cvt_pk_bf16_f32 v82, v{DA+2}, v{DA+3}
    v_cvt_pk_bf16_f32 v84, v{DA+4}, v{DA+5}
    v_cvt_pk_bf16_f32 v86, v{DA+6}, v{DA+7}
    v_and_b32 {vB_}, 7, {vLane}
    v_cmp_eq_u32 vcc, 0, {vB_}
    s_and_saveexec_b64 s[36:37], vcc
    """)
    a.vmem(f"buffer_store_dwordx4 v[80:83], {vA}, {WS}, {sT0} offen sc1", "qa_st")
    a.vmem(f"buffer_store_dwordx4 v[84:87], {vA}, {WS}, {sT0} offen offset:64 sc1", "qa_st")
    a("s_mov_b64 exec, s[36:37]")
    stamp(3)
    c_dma_range(cfg.b_n1 + cfg.b_n2, 32)
    VG = 128
    a(f"""
    s_bfe_u32 {sT0}, {sW}, 0x10006
    s_lshl_b32 {sQb}, {sT0}, 16
    s_lshl_b32 {sT0}, {sWv}, 14
    s_add_u32 {sQb}, {sQb}, {sT0}
    s_add_u32 {sQb}, {sQb}, {QA}
    """)
    def qa_issue():
        for k in range(16):
            if k % 4 == 0:
                a(f"s_add_u32 {sT3}, {sQb}, {(k//4)*4096}")
            a.vmem(f"buffer_load_dwordx4 {R(VG+4*k,4)}, {vL16}, {WS}, {sT3} offen offset:{(k%4)*1024} sc1", "qa")
    qa_issue()
    a.barrier()
    poll(qa_issue, [VG + 4*k + j for k in range(16) for j in (1, 3)], "qa", 2)
    stamp(4)
    vB0, vB1 = "v202", "v203"
    a(f"""
    v_lshrrev_b32 {vA}, 1, {vLane}
    v_lshlrev_b32 {vA}, 4, {vA}
    v_and_b32 {vB_}, 1, {vLane}
    v_lshl_add_u32 {vA}, {vB_}, 3, {vA}
    s_lshl_b32 {sT0}, {sWv}, 1
    s_and_b32 {sT0}, {sT0}, 3
    s_lshl_b32 {sT0}, {sT0}, 4
    s_add_u32 {sT1}, {sT0}, 16
    v_xor_b32 {vB0}, {sT0}, {vA}
    v_xor_b32 {vB1}, {sT1}, {vA}
    s_lshl_b32 {sT0}, {sWv}, 13
    s_add_u32 {sT0}, {sT0}, {X}
    v_add_u32 {vB0}, {sT0}, {vB0}
    v_add_u32 {vB1}, {sT0}, {vB1}
    """)
    for k in range(16):
        u, half = k >> 1, k & 1
        if half == 0:
            a(f"v_xor_b32 v204, {(u & 3) << 6}, {vB0 if u < 4 else vB1}")
        a(f"v_mov_b32 v{VG+4*k+1}, v{VG+4*k+2}")
        a.lds(f"ds_write_b64 v204, v[{VG+4*k}:{VG+4*k+1}] offset:{u*1024 + half*512}", "qw")
    a.try_wait_vm("c")
    a.barrier()
    S1 = 64; RG = 80; AC = 112; AQ = 120
    a(f"""
    v_and_b32 {vA}, 3, {vLane}
    v_lshlrev_b32 {vA}, 2, {vA}
    v_bfe_u32 {vB_}, {vLane}, 2, 2
    v_or_b32 {vA}, {vA}, {vB_}
    v_lshrrev_b32 {vB_}, 5, {vLane}
    v_xor_b32 {vA}, {vA}, {vB_}
    v_lshlrev_b32 {vA}, 4, {vA}
    v_and_b32 {vB_}, 31, {vLane}
    v_lshl_add_u32 {vA}, {vB_}, 10, {vA}
    s_lshl_b32 {sT0}, {sWv}, 15
    v_add_u32 v{AC}, {sT0}, {vA}
    v_add_u32 v{AQ}, {X}, {vA}
    """)
    for u in range(1, 8):
        a(f"v_xor_b32 v{AC+u}, {u << 5}, v{AC}")
        a(f"v_xor_b32 v{AQ+u}, {u << 5}, v{AQ}")
    D1 = 4
    def g1read(t):
        s = RG + 8 * (t % D1)
        a.lds(f"ds_read_b128 {R(s,4)}, v{AC + (t & 7)} offset:{(t >> 3)*256}", f"g1c{t}")
        a.lds(f"ds_read_b128 {R(s+4,4)}, v{AQ + (t & 7)} offset:{(t >> 3)*256}", f"g1q{t}")
    for t in range(D1): g1read(t)
    for t in range(32):
        a.wait_lg(f"g1q{t}")
        s = RG + 8 * (t % D1)
        c = "0" if t == 0 else R(S1, 16)
        a(f"v_mfma_f32_32x32x16_bf16 {R(S1,16)}, {R(s,4)}, {R(s+4,4)}, {c}")
        if t + D1 < 32: g1read(t + D1)
    stamp(5)
    vM, vL = "v196", "v197"
    a(f"v_max3_f32 {vM}, v{S1}, v{S1+1}, v{S1+2}")
    for k in range(3, 15, 2):
        a(f"v_max3_f32 {vM}, {vM}, v{S1+k}, v{S1+k+1}")
    a(f"v_max_f32 {vM}, {vM}, v{S1+15}")
    a(f"v_mov_b32 {vA}, {vM}")
    a(f"v_permlane32_swap_b32 {vM}, {vA}")
    a(f"v_max_f32 {vM}, {vM}, {vA}")
    a.barrier()
    vHx = "v205"
    a(f"""
    v_and_b32 {vHx}, 31, {vLane}
    v_lshlrev_b32 {vHx}, 2, {vHx}
    v_add_u32 {vHx}, {X}, {vHx}
    s_lshl_b32 {sT0}, {sWv}, 7
    v_add_u32 {vA}, {sT0}, {vHx}
    """)
    a.lds(f"ds_write_b32 {vA}, {vM} offset:{MX}", "mxw")
    a.barrier()
    for w in range(4):
        a.lds(f"ds_read_b32 v{80+w}, {vHx} offset:{MX + 128*w}", "mxr")
    a.wait_lg()
    a(f"v_max3_f32 {vM}, v80, v81, v82")
    a(f"v_max_f32 {vM}, {vM}, v83")
    a(f"s_mov_b32 {sT1}, {f2u(C1):#x}")
    a(f"v_mul_f32 {vM}, {sT1}, {vM}")
    for k in range(16):
        a(f"v_fma_f32 v{S1+k}, v{S1+k}, {sT1}, -{vM}")
    for k in range(16):
        a(f"v_exp_f32 v{S1+k}, v{S1+k}")
    a(f"v_add_f32 {vL}, v{S1}, v{S1+1}")
    for k in range(2, 16):
        a(f"v_add_f32 {vL}, {vL}, v{S1+k}")
    for k in range(8):
        a(f"v_cvt_pk_bf16_f32 v{80+k}, v{S1+2*k}, v{S1+2*k+1}")
    a(f"v_mov_b32 {vB_}, {vL}")
    a(f"v_permlane32_swap_b32 {vL}, {vB_}")
    a(f"v_add_f32 {vL}, {vL}, {vB_}")
    a(f"""
    s_lshl_b32 {sT0}, {sWv}, 11
    s_add_u32 {sT0}, {sT0}, {X}
    v_add_u32 v204, {sT0}, {vL16}
    s_lshl_b32 {sT0}, {sWv}, 7
    v_add_u32 {vA}, {sT0}, {vHx}
    """)
    a.lds(f"ds_write_b128 v204, v[80:83] offset:{PF}", "pfw")
    a.lds(f"ds_write_b128 v204, v[84:87] offset:{PF + 1024}", "pfw")
    a.lds(f"ds_write_b32 {vA}, {vL} offset:{LS}", "lsw")
    a.barrier()
    PFR = 192
    PFR = 208
    a(f"v_add_u32 v204, {X}, {vL16}")
    for kt in range(8):
        a.lds(f"ds_read_b128 {R(PFR+4*kt,4)}, v204 offset:{PF + 1024*kt}", "pfr")
    for w in range(4):
        a.lds(f"ds_read_b32 v{80+w}, {vHx} offset:{LS + 128*w}", "lsr")
    A2 = 112
    a(f"""
    v_bfe_u32 v64, {vLane}, 2, 2
    v_lshrrev_b32 v65, 5, {vLane}
    v_bfe_u32 v66, {vLane}, 4, 1
    v_bfe_u32 v67, {vLane}, 1, 1
    v_lshl_add_u32 v66, v66, 1, v67
    v_xor_b32 v66, v66, v65
    v_lshl_add_u32 v66, v64, 2, v66
    v_lshlrev_b32 v66, 4, v66
    v_and_b32 v67, 1, {vLane}
    v_lshl_add_u32 v66, v67, 3, v66
    v_lshl_add_u32 v67, v65, 2, v64
    v_lshl_add_u32 v66, v67, 10, v66
    s_lshl_b32 {sT0}, {sWv}, 8
    v_add_u32 v66, {sT0}, v66
    """)
    for ct in range(4):
        a(f"v_xor_b32 v{A2+2*ct}, {ct << 6}, v66")
        a(f"v_xor_b32 v{A2+2*ct+1}, 32, v{A2+2*ct}")
        a(f"v_add_u32 v{A2+2*ct+1}, 8192, v{A2+2*ct+1}")
    a.wait_lg()
    a(f"v_add_f32 v80, v80, v81")
    a(f"v_add_f32 v82, v82, v83")
    a(f"v_add_f32 {vL}, v80, v82")
    a.barrier()
    OA = 128; RG2 = 80; D2 = 6
    st2 = [(kt, ct) for kt in range(8) for ct in range(4)]
    def g2read(idx):
        kt, ct = st2[idx]
        if kt == 4 and ct == 0:
            for q in range(8): a(f"v_add_u32 v{A2+q}, 65536, v{A2+q}")
        s = RG2 + 4 * (idx % D2)
        off = (kt & 3) * 16384
        a.lds(f"ds_read_b64_tr_b16 v[{s}:{s+1}], v{A2+2*ct} offset:{off}", f"g2a{idx}")
        a.lds(f"ds_read_b64_tr_b16 v[{s+2}:{s+3}], v{A2+2*ct+1} offset:{off}", f"g2b{idx}")
    for idx in range(D2): g2read(idx)
    for idx, (kt, ct) in enumerate(st2):
        a.wait_lg(f"g2b{idx}")
        s = RG2 + 4 * (idx % D2)
        c = "0" if kt == 0 else R(OA + 16*ct, 16)
        a(f"v_mfma_f32_32x32x16_bf16 {R(OA+16*ct,16)}, {R(s,4)}, {R(PFR+4*kt,4)}, {c}")
        if idx + D2 < len(st2): g2read(idx + D2)
    stamp(6)
    a(f"""
    v_and_b32 {vA}, 31, {vLane}
    v_lshlrev_b32 v204, 10, {vA}
    v_and_b32 {vA}, 7, {vLane}
    v_lshl_add_u32 v204, {vA}, 4, v204
    v_lshrrev_b32 {vA}, 5, {vLane}
    v_lshl_add_u32 v204, {vA}, 3, v204
    s_lshl_b32 {sT0}, {sWv}, 8
    s_add_u32 {sT0}, {sT0}, {X}
    v_add_u32 v204, {sT0}, v204
    """)
    for ct in range(4):
        for g in range(4):
            i0 = OA + 16*ct + 4*g
            t = 80 + 2 * ((ct*4+g) % 8)
            a(f"v_cvt_pk_bf16_f32 v{t}, v{i0}, v{i0+1}")
            a(f"v_cvt_pk_bf16_f32 v{t+1}, v{i0+2}, v{i0+3}")
            ad = f"v{96 + (ct*4+g) % 8}"
            a(f"v_xor_b32 {ad}, {(4*ct+g) << 4}, v204")
            a.lds(f"ds_write_b64 {ad}, v[{t}:{t+1}]", "tbw")
            if (ct*4+g) % 8 == 7: a.wait_lg()
    a.barrier()
    a(f"""
    s_lshl_b32 {sT0}, {sWv}, 13
    s_add_u32 {sT0}, {sT0}, {X}
    v_add_u32 v204, {sT0}, {vL16}
    v_lshlrev_b32 v205, 15, {vKg}
    v_lshl_add_u32 v205, {vI}, 4, v205
    s_sub_u32 {sT1}, {sW}, 128
    s_lshl_b32 {sT1}, {sT1}, 8
    s_lshl_b32 {sT0}, {sWv}, 20
    s_add_u32 {sT1}, {sT1}, {sT0}
    s_add_u32 {sT1}, {sT1}, {PB}
    """)
    for u in range(8):
        a(f"v_xor_b32 v{96+u}, {u << 4}, v204")
        a.lds(f"ds_read_b128 {R(128+4*u,4)}, v{96+u} offset:{u*1024}", f"tbr{u}")
    for u in range(8):
        a.wait_lg(f"tbr{u}")
        a.vmem(f"buffer_store_dwordx4 {R(128+4*u,4)}, v205, {WS}, {sT1} offen sc1", "pb_st")
        if u < 7: a(f"s_add_u32 {sT1}, {sT1}, 131072")
    stamp(7)
    a(f"""
    v_lshlrev_b32 v206, 16, {vKg}
    v_lshl_add_u32 v206, {vI}, 4, v206
    s_and_b32 {sT0}, {sW}, 3
    s_lshl_b32 {sT0}, {sT0}, 7
    s_lshl_b32 {sT2}, {sWv}, 5
    s_add_u32 {sT0}, {sT0}, {sT2}
    s_lshl_b32 {sT0}, {sT0}, 13
    s_lshl_b32 {sT2}, {sH}, 8
    s_add_u32 {sT0}, {sT0}, {sT2}
    """)
    for tt in range(8):
        a.vmem(f"buffer_load_dwordx4 a[{32+4*tt}:{35+4*tt}], v206, {WUV}, {sT0} offen{WNT}", f"uv{tt}")
        if tt < 7: a(f"s_add_u32 {sT0}, {sT0}, 8192")
    a.wait_vm("pb_st")
    a.barrier()
    a(f"""
    v_mov_b32 v80, {vM}
    v_mov_b32 v81, {vTag}
    v_mov_b32 v82, {vL}
    v_mov_b32 v83, {vTag}
    v_lshlrev_b32 {vA}, 11, {vLane}
    s_sub_u32 {sT1}, {sW}, 128
    s_lshl_b32 {sT1}, {sT1}, 4
    s_add_u32 {sT1}, {sT1}, {PBML}
    v_cmp_gt_u32 vcc, 32, {vTau}
    s_and_saveexec_b64 s[36:37], vcc
    s_cbranch_execz L_b_noml
    buffer_store_dwordx4 v[80:83], {vA}, {WS}, {sT1} offen sc1
    L_b_noml:
    s_mov_b64 exec, s[36:37]
    """)
    a.vm.append("ml_st_maybe")
    stamp(8)
    a(f"""
    s_lshl_b32 {sQb}, {sH}, 11
    s_add_u32 {sQb}, {sQb}, {PBML}
    v_lshlrev_b32 v204, 4, {vTau}
    s_cmp_ge_u32 {sWv}, 2
    s_cbranch_scc1 L_b_skipml
    """)
    vm_save = list(a.vm)
    def ml_issue():
        a.vmem(f"buffer_load_dwordx4 v[80:83], v204, {WS}, {sQb} offen sc1", "pbml")
    ml_issue()
    a.vm = ["pbml"]
    poll(ml_issue, [81, 83], "pbml", 3)
    def wave_reduce(v, op, tmp):
        for d in ("quad_perm:[1,0,3,2]", "quad_perm:[2,3,0,1]", "row_half_mirror", "row_mirror"):
            a(f"{op}_dpp {v}, {v}, {v} {d} row_mask:0xf bank_mask:0xf")
        xlane_reduce(v, op, tmp)
    a("v_mov_b32 v84, v80")
    wave_reduce("v84", "v_max_f32", vA)
    a("v_sub_f32 v80, v80, v84")
    a("v_exp_f32 v80, v80")
    a("v_mul_f32 v85, v80, v82")
    wave_reduce("v85", "v_add_f32", vA)
    a("v_rcp_f32 v85, v85")
    a("v_mul_f32 v80, v80, v85")
    a("v_cvt_pk_bf16_f32 v80, v80, v80")
    a(f"v_lshlrev_b32 {vA}, 1, {vTau}")
    a(f"v_add_u32 {vA}, {X}, {vA}")
    a.lds(f"ds_write_b16 {vA}, v80 offset:{XS2}", "xs2w")
    a.wait_lg()
    a.label("L_b_skipml")
    a.vm = vm_save
    a.barrier()
    stamp(9)
    a(f"""
    s_sub_u32 {sT0}, {sW}, 128
    s_lshl_b32 {sT0}, {sT0}, 15
    s_lshl_b32 {sT1}, {sWv}, 13
    s_add_u32 {sT0}, {sT0}, {sT1}
    s_add_u32 {sT0}, {sT0}, {PB}
    v_lshlrev_b32 v204, 11, {vKg}
    v_lshl_add_u32 v204, {vI}, 4, v204
    """)
    for tt in range(8):
        a.vmem(f"buffer_load_dwordx4 {R(128+4*tt,4)}, v204, {WS}, {sT0} offen offset:{256*tt} sc1", f"pb{tt}")
    vXa = "v205"
    a(f"""
    s_lshl_b32 {sT0}, {sWv}, 6
    s_add_u32 {sT0}, {sT0}, {X}
    v_lshlrev_b32 {vXa}, 4, {vKg}
    v_add_u32 {vXa}, {sT0}, {vXa}
    """)
    a.lds(f"ds_read_b128 v[88:91], {vXa} offset:{XS2}", "xf")
    a(f"s_lshr_b32 {sT0}, {sWv}, 1")
    a(f"v_cmp_eq_u32 vcc, {sT0}, {vBp}")
    a.wait_lg()
    for r in range(4):
        a(f"v_cndmask_b32 v{88+r}, 0, v{88+r}, vcc")
    def gemv8(src_regs, xf, acc, waitnames):
        build_frag(FR0, f"v{xf}", 0)
        for tt in range(8):
            cur = FR0 if tt % 2 == 0 else FR1
            nxt = FR1 if tt % 2 == 0 else FR0
            if tt < 7: build_frag(nxt, f"v{xf + (tt+1)//2}", (tt+1) % 2)
            if waitnames: a.try_wait_vm(waitnames[tt])
            c = "0" if tt == 0 else R(acc, 4)
            a(f"v_mfma_f32_16x16x32_bf16 {R(acc,4)}, {src_regs[tt]}, {R(cur,4)}, {c}")
    gemv8([R(128+4*tt, 4) for tt in range(8)], 88, ACC, [f"pb{tt}" for tt in range(8)])
    red_write(ACC, vRedW, REDA)
    a.barrier()
    red_sum4(80, 84, REDA, 1024)
    a("v_cvt_pk_bf16_f32 v80, v80, v80")
    a(f"v_lshlrev_b32 {vA}, 1, {vTau}")
    a(f"v_add_u32 {vA}, {X}, {vA}")
    a.lds(f"ds_write_b16 {vA}, v80 offset:{XS3}", "xs3w")
    a.barrier()
    a(f"v_lshl_add_u32 {vXa}, {vBp}, 8, {vXa}")
    a.lds(f"ds_read_b128 v[88:91], {vXa} offset:{XS3}", "xf")
    a.wait_lg()
    gemv8([f"a[{32+4*tt}:{35+4*tt}]" for tt in range(8)], 88, ACC, None)
    red_write(ACC, vRedW, REDB)
    a.barrier()
    red_sum4(80, 84, REDB, 1024)
    a(f"""
    v_mov_b32 v81, {vTag}
    s_sub_u32 {sT0}, {sW}, 128
    s_lshl_b32 {sT0}, {sT0}, 11
    s_add_u32 {sT0}, {sT0}, {UO + 0x40000}
    """)
    a.vmem(f"buffer_store_dwordx2 v[80:81], {vTau8}, {WS}, {sT0} offen sc1", "cp_st")
    a(f"""
    v_mov_b32 v84, 0
    v_mov_b32 v85, {vTag}
    v_mov_b32 v86, 0x3e800000
    v_mov_b32 v87, {vTag}
    v_lshrrev_b32 {vA}, 7, {vTau}
    v_lshlrev_b32 {vA}, 6, {vA}
    s_lshl_b32 {sT0}, {sH}, 7
    s_and_b32 {sT1}, {sW}, 3
    s_lshl_b32 {sT1}, {sT1}, 4
    s_add_u32 {sT0}, {sT0}, {sT1}
    s_add_u32 {sT0}, {sT0}, {UML + 0x1000}
    v_and_b32 {vB_}, 127, {vTau}
    v_cmp_eq_u32 vcc, 0, {vB_}
    s_and_saveexec_b64 s[36:37], vcc
    s_cbranch_execz L_b_noml2
    buffer_store_dwordx4 v[84:87], {vA}, {WS}, {sT0} offen sc1
    L_b_noml2:
    s_mov_b64 exec, s[36:37]
    """)
    stamp(10)
    a(f"s_add_u32 {sR}, {sH}, 32")

    a.label("L_stage4")
    a.vm = []; a.lg = []; a.smem = cfg.stamps
    a(f"""
    s_and_b32 {sT0}, {sW}, 3
    s_cmp_eq_u32 {sT0}, 3
    s_cbranch_scc1 L_final
    v_mul_u32_u24 v204, 9216, {vKg}
    v_lshl_add_u32 v205, {vI}, 4, v204
    v_lshrrev_b32 {vA}, 3, {vI}
    v_mul_u32_u24 {vA}, 1152, {vA}
    v_and_b32 {vB_}, 7, {vI}
    v_lshl_add_u32 {vA}, {vB_}, 4, {vA}
    v_add3_u32 v206, v204, {vA}, 0
    v_add_u32 v206, 256, v206
    s_lshl_b32 {sT1}, {sH}, 7
    s_lshl_b32 {sT2}, {sWv}, 5
    s_add_u32 {sT1}, {sT1}, {sT2}
    s_mul_i32 {sT1}, {sT1}, 1152
    s_mul_i32 {sT0}, {sT0}, 384
    s_add_u32 {sT1}, {sT1}, {sT0}
    s_add_u32 {sT2}, {sT1}, 4608
    """)
    for tt in range(8):
        a.vmem(f"buffer_load_dwordx4 a[{128+4*tt}:{131+4*tt}], v205, {WO}, {sT1 if tt < 4 else sT2} offen offset:{(tt % 4)*1152}{WNT}", f"wo{tt}")
    for u in range(4):
        a.vmem(f"buffer_load_dwordx4 a[{160+4*u}:{163+4*u}], v206, {WO}, {sT1 if u < 2 else sT2} offen offset:{(u % 2)*2304}{WNT}", f"wp{u}")
    a(f"""
    s_lshl_b32 {sUO}, {sBr}, 18
    s_lshl_b32 {sT0}, {sH}, 13
    s_add_u32 {sUO}, {sUO}, {sT0}
    s_add_u32 {sUO}, {sUO}, {UO}
    s_lshl_b32 {sUML}, {sBr}, 12
    s_lshl_b32 {sT0}, {sH}, 7
    s_add_u32 {sUML}, {sUML}, {sT0}
    s_add_u32 {sUML}, {sUML}, {UML}
    v_lshrrev_b32 v207, 7, {vTau}
    v_lshlrev_b32 v207, 6, v207
    """)
    def u_issue():
        a.vmem(f"buffer_load_dwordx2 v[80:81], {vTau8}, {WS}, {sUO} offen sc1", "u")
        a.vmem(f"buffer_load_dwordx2 v[82:83], {vTau8}, {WS}, {sUO} offen offset:2048 sc1", "u")
        a(f"s_add_u32 {sT3}, {sUO}, 4096")
        a.vmem(f"buffer_load_dwordx2 v[84:85], {vTau8}, {WS}, {sT3} offen sc1", "u")
        a.vmem(f"buffer_load_dwordx2 v[86:87], {vTau8}, {WS}, {sT3} offen offset:2048 sc1", "u")
        for s in range(4):
            a.vmem(f"buffer_load_dwordx4 v[{88+4*s}:{91+4*s}], v207, {WS}, {sUML} offen offset:{16*s} sc1", "u")
    u_issue()
    poll(u_issue, [81, 83, 85, 87] + [88+4*s+j for s in range(4) for j in (1, 3)], "u", 4)
    a("v_max3_f32 v104, v88, v92, v96")
    a("v_max_f32 v104, v104, v100")
    for s in range(4): a(f"v_sub_f32 v{88+4*s}, v{88+4*s}, v104")
    for s in range(4): a(f"v_exp_f32 v{88+4*s}, v{88+4*s}")
    a("v_mul_f32 v105, v88, v80")
    a("v_mul_f32 v106, v88, v90")
    for s in range(1, 4):
        a(f"v_fmac_f32 v105, v{88+4*s}, v{80+2*s}")
        a(f"v_fmac_f32 v106, v{88+4*s}, v{90+4*s}")
    a("v_rcp_f32 v106, v106")
    a("v_mul_f32 v105, v105, v106")
    a("v_cvt_pk_bf16_f32 v105, v105, v105")
    a(f"v_lshlrev_b32 {vA}, 1, {vTau}")
    a(f"v_add_u32 {vA}, {X}, {vA}")
    a.lds(f"ds_write_b16 {vA}, v105 offset:{XS}", "xsw")
    a.barrier()
    a(f"""
    s_lshl_b32 {sT0}, {sWv}, 6
    s_add_u32 {sT0}, {sT0}, {X}
    v_lshlrev_b32 v207, 4, {vKg}
    v_lshl_add_u32 v207, {vBp}, 8, v207
    v_add_u32 v207, {sT0}, v207
    """)
    a.lds(f"ds_read_b128 v[88:91], v207 offset:{XS}", "xf")
    a.wait_lg()
    A0, AA, AB = 68, 92, 96
    build_frag(FR0, "v88", 0)
    for tt in range(8):
        cur = FR0 if tt % 2 == 0 else FR1
        nxt = FR1 if tt % 2 == 0 else FR0
        if tt < 7: build_frag(nxt, f"v{88 + (tt+1)//2}", (tt+1) % 2)
        c = "0" if tt == 0 else R(A0, 4)
        a(f"v_mfma_f32_16x16x32_bf16 {R(A0,4)}, a[{128+4*tt}:{131+4*tt}], {R(cur,4)}, {c}")
        acc = AA if tt % 2 == 0 else AB
        c = "0" if tt < 2 else R(acc, 4)
        a(f"v_mfma_f32_16x16x32_bf16 {R(acc,4)}, a[{160+4*(tt//2)}:{163+4*(tt//2)}], {R(cur,4)}, {c}")
    a(f"v_cmp_gt_u32 vcc, 32, {vLane}")
    for r in range(4):
        a(f"v_cndmask_b32 v{AA+r}, v{AB+r}, v{AA+r}, vcc")
    a(f"""
    v_lshlrev_b32 v204, 10, {vBp}
    v_lshl_add_u32 v204, {vKg}, 7, v204
    v_and_b32 {vA}, 7, {vLane}
    v_lshl_add_u32 v204, {vA}, 2, v204
    s_lshl_b32 {sT0}, {sWv}, 11
    s_add_u32 {sT0}, {sT0}, {X}
    v_add_u32 v204, {sT0}, v204
    """)
    red_write(A0, "v204", RED4)
    red_write(AA, "v204", RED4 + 512)
    a.barrier()
    a(f"""
    v_lshrrev_b32 {vA}, 7, {vTau}
    v_and_b32 {vB_}, 127, {vTau}
    v_lshlrev_b32 v204, 10, {vA}
    v_lshl_add_u32 v204, {vB_}, 3, v204
    v_add_u32 v204, {X}, v204
    """)
    for w in range(4):
        a.lds(f"ds_read_b64 v[{80+2*w}:{81+2*w}], v204 offset:{RED4 + 2048*w}", "r4")
        a.lds(f"ds_read_b64 v[{88+2*w}:{89+2*w}], v204 offset:{RED4 + 2048*w + 256}", "r4")
    a(f"v_cmp_le_u32 vcc, 64, {vB_}")
    a.wait_lg()
    for k in range(2):
        a(f"v_add_f32 v{80+k}, v{80+k}, v{82+k}")
        a(f"v_add_f32 v{84+k}, v{84+k}, v{86+k}")
        a(f"v_add_f32 v{88+k}, v{88+k}, v{90+k}")
        a(f"v_add_f32 v{92+k}, v{92+k}, v{94+k}")
        a(f"v_add_f32 v{80+k}, v{80+k}, v{84+k}")
        a(f"v_add_f32 v{88+k}, v{88+k}, v{92+k}")
        a(f"v_cndmask_b32 v{88+k}, 0, v{88+k}, vcc")
        a(f"v_add_f32 v{80+k}, v{80+k}, v{88+k}")
    a(f"""
    v_mov_b32 v84, v80
    v_mov_b32 v85, {vTag}
    v_mov_b32 v86, v81
    v_mov_b32 v87, {vTag}
    v_mul_u32_u24 v204, 4608, {vA}
    v_lshl_add_u32 v204, {vB_}, 4, v204
    s_lshl_b32 {sT0}, {sBr}, 5
    s_add_u32 {sT0}, {sT0}, {sH}
    s_mul_i32 {sT0}, {sT0}, 9216
    s_and_b32 {sT1}, {sW}, 3
    s_mul_i32 {sT1}, {sT1}, 1536
    s_add_u32 {sT0}, {sT0}, {sT1}
    s_add_u32 {sT0}, {sT0}, {OP}
    v_cmp_gt_u32 vcc, 96, {vB_}
    s_and_saveexec_b64 s[36:37], vcc
    buffer_store_dwordx4 v[84:87], v204, {WS}, {sT0} offen sc1
    s_mov_b64 exec, s[36:37]
    """)
    stamp(11)
    a("s_branch L_done")

    a.label("L_final")
    a.vm = []; a.lg = []
    a(f"""
    s_cmp_ge_u32 {sR}, 36
    s_cbranch_scc1 L_done
    ; b = r/18, c32 = r%18 ; wave: br = wv>>1, h = (wv&1)*16 + 4n + kg
    s_cmp_ge_u32 {sR}, 18
    s_cselect_b32 {sT0}, 1, 0
    s_cselect_b32 {sT1}, 18, 0
    s_sub_u32 {sT1}, {sR}, {sT1}
    s_mul_i32 {sT2}, {sT0}, 4608
    s_lshl_b32 {sT3}, {sT1}, 8
    s_add_u32 {sT2}, {sT2}, {sT3}
    s_mul_i32 {sT3}, {sWv}, {16*9216}
    s_add_u32 {sQb}, {sT2}, {sT3}
    s_add_u32 {sQb}, {sQb}, {OP}
    v_mul_u32_u24 v204, 9216, {vKg}
    v_lshl_add_u32 v204, {vI}, 4, v204
    s_mul_i32 {sUO}, {sT0}, 2304
    s_lshl_b32 {sT1}, {sT1}, 6
    s_add_u32 {sUO}, {sUO}, {sT1}
    """)
    def f_issue():
        for n in range(4):
            a(f"s_add_u32 {sT3}, {sQb}, {n*4*9216}")
            a.vmem(f"buffer_load_dwordx4 v[{80+4*n}:{83+4*n}], v204, {WS}, {sT3} offen sc1", "f")
    f_issue()
    poll(f_issue, [80+4*n+j for n in range(4) for j in (1, 3)], "f", 5)
    a("v_add_f32 v80, v80, v84")
    a("v_add_f32 v88, v88, v92")
    a("v_add_f32 v82, v82, v86")
    a("v_add_f32 v90, v90, v94")
    a("v_add_f32 v80, v80, v88")
    a("v_add_f32 v82, v82, v90")
    xlane_reduce("v80", "v_add_f32", vA)
    xlane_reduce("v82", "v_add_f32", vA)
    a(f"""
    v_mov_b32 v81, v82
    s_lshl_b32 {sT0}, {sWv}, 7
    s_add_u32 {sT0}, {sT0}, {X}
    v_lshlrev_b32 {vA}, 3, {vI}
    v_add_u32 {vA}, {sT0}, {vA}
    v_cmp_gt_u32 vcc, 16, {vLane}
    s_and_saveexec_b64 s[36:37], vcc
    """)
    a.lds(f"ds_write_b64 {vA}, v[80:81] offset:{RF}", "rfw")
    a("s_mov_b64 exec, s[36:37]")
    a.barrier()
    a(f"""
    v_cmp_gt_u32 vcc, 32, {vTau}
    s_and_saveexec_b64 s[36:37], vcc
    s_cbranch_execz L_f_skip
    v_lshlrev_b32 {vA}, 8, {vKg}
    v_lshl_add_u32 {vA}, {vI}, 3, {vA}
    v_add_u32 {vA}, {X}, {vA}
    ds_read_b64 v[80:81], {vA} offset:{RF}
    ds_read_b64 v[82:83], {vA} offset:{RF + 128}
    s_waitcnt lgkmcnt(0)
    v_add_f32 v80, v80, v82
    v_add_f32 v81, v81, v83
    v_cvt_pk_bf16_f32 v80, v80, v81
    v_mul_u32_u24 {vA}, 1152, {vKg}
    v_lshl_add_u32 {vA}, {vI}, 2, {vA}
    buffer_store_dword v80, {vA}, {OUT}, {sUO} offen
    s_cmp_lg_u32 {sR}, 0
    s_cbranch_scc1 L_f_skip
    v_mov_b32 {vA}, 0
    v_cmp_eq_u32 vcc, 0, {vTau}
    s_and_b64 exec, exec, vcc
    buffer_store_dword {vTag}, {vA}, {WS}, 0 offen sc1
    L_f_skip:
    s_mov_b64 exec, s[36:37]
    """)
    stamp(11)
    a.label("L_done")
    if cfg.stamps:
        a(f"""
        s_waitcnt lgkmcnt(0)
        s_lshl_b32 {sT0}, {sW}, 2
        s_add_u32 {sT0}, {sT0}, {sWv}
        s_lshl_b32 {sT0}, {sT0}, 7
        s_add_u32 {sT0}, {sT0}, {STAMP}
        v_mov_b32 {vA}, 0
        v_cmp_eq_u32 vcc, 0, {vLane}
        s_and_saveexec_b64 s[36:37], vcc
        """)
        for k in range(12):
            a(f"v_mov_b32 v80, s{70+2*k}")
            a(f"v_mov_b32 v81, s{71+2*k}")
            a(f"buffer_store_dwordx2 v[80:81], {vA}, {WS}, {sT0} offen offset:{8*k}")
            a("s_nop 1")
        a("s_mov_b64 exec, s[36:37]")
    a.label("L_end")
    a("s_endpgm")
    return a

HEADER = open("cdna_kernels/" + KN + ".s.ref").read().split("; Override launch")[0]
def build(cfg):
    a = gen(cfg)
    body = a.text()
    name = KN + "_kernel"
    s = HEADER
    s += "; Override launch geometry by editing the next line.\n"
    s += "; @launch grid=(256,1,1) block=(256,1,1) lds=163840\n"
    s += '.amdgcn_target "amdgcn-amd-amdhsa--gfx950"\n.text\n'
    s += f".globl {name}\n.p2align 8\n.type {name},@function\n{name}:\n"
    s += body
    s += f"""
.section .rodata,"a"
.p2align 6
.amdhsa_kernel {name}
  .amdhsa_next_free_vgpr 512
  .amdhsa_next_free_sgpr 102
  .amdhsa_accum_offset 256
  .amdhsa_group_segment_fixed_size 0
  .amdhsa_kernarg_size 112
  .amdhsa_user_sgpr_count 2
  .amdhsa_user_sgpr_kernarg_segment_ptr 1
  .amdhsa_system_sgpr_workgroup_id_x 1
.end_amdhsa_kernel
"""
    return s

if __name__ == "__main__":
    ap = argparse.ArgumentParser()
    ap.add_argument("-o", default="cdna_kernels/" + KN + ".s")
    ap.add_argument("--set", nargs="*", default=[])
    args = ap.parse_args()
    cfg = Cfg()
    for kv in args.set:
        k, v = kv.split("=")
        setattr(cfg, k, type(getattr(cfg, k))(int(v)))
    open(args.o, "w").write(build(cfg))
    print("wrote", args.o)
```

```python
import sys, argparse, struct
from asmcore import Asm
KN = "concat_heads__sliding_block_cached__compressed_kv_cla__decode"

QP   = 0x1000
QA   = 0x90000
UO   = 0xC0000
UML  = 0x140000
PBML = 0x150000
HELLO = 0x178000
FOFF = 0x1000000
QAF  = 0x170000
OP   = 0x180000
PB   = 0x400000
STAMP = 0x8000000
X = 131072
RED1, QB, RED2, MLS = 0, 4096, 8192, 12288
XS, RED4, RF = 16384, 20480, 28672
XS2, REDA, XS3, REDB = 0, 4096, 8192, 12288
MX, LS, PF = 0, 512, 1024
C1 = (128 ** -0.5) * 1.4426950408889634
def f2u(x): return struct.unpack("<I", struct.pack("<f", x))[0]

class Cfg:
    nt = True
    wnt = True
    stamps = False
    rot = True
    spin = 200000
    s_kp = 1
    s_dk = 12
    s_nv1 = 8
    s_nv2 = 8
    s_nv3 = 8
    b_g1 = 1
    b_d = 12
    b_gw = 4
    b_gw2 = 2
    qaf = True
    ukearly = True
    fast = True
    b_d0 = 4
    b_gr = 2
    b_wpre = True

def gen(cfg):
    a = Asm()
    NT = " nt" if cfg.nt else ""
    WNT = " nt" if cfg.wnt else ""
    sN, sPend, sW, sWv = "s0", "s1", "s2", "s3"
    WS, XR, W1, KV, VV, WO, OUT = "s[4:7]", "s[8:11]", "s[12:15]", "s[16:19]", "s[20:23]", "s[24:27]", "s[28:31]"
    EX = "s[32:33]"
    sT0, sT1, sT2, sT3 = "s42", "s43", "s44", "s45"
    sTag, sKB, sSpin, sH, sQb, sUO, sUML, sR, sBr, sW1, sX1, sRot, sC1 = [f"s{k}" for k in range(46, 59)]
    sEp = "s64"; sL1 = "s59"; sLA = "s62"; sL3 = "s63"; sFast = "s65"
    NST = 16
    def stamp(k):
        if cfg.stamps:
            a(f"s_memrealtime s[{66+2*k}:{67+2*k}]"); a.smem = True
    vTau, vLane, vI, vKg = "v0", "v1", "v2", "v3"
    SEL = [[f"v{4+hs*4+r}" for r in range(4)] for hs in range(2)]
    vTag, vBp, vRedW, vTau4, vTau8 = "v12", "v13", "v14", "v15", "v16"
    vA, vB_, vC = "v17", "v18", "v19"
    vXo, vWo, vL16 = "v20", "v21", "v31"
    VX = 22
    VW = 32
    ACC = 68; FR0 = 72; FR1 = 76
    VQ = 86; VQF = 96

    def R(base, n, k="v"): return f"{k}[{base}:{base+n-1}]"
    def build_frag(dst, src, hs):
        for r in range(4):
            a(f"v_perm_b32 v{dst+r}, {src}, {src}, {SEL[hs][r]}")
    def red_write(acc, vaddr, off):
        for r in range(4):
            a.lds(f"ds_write_b32 {vaddr}, v{acc+r} offset:{off + r*32}", "redw")
    def red_sum4(dst, tmp, off, stride):
        for w in range(4):
            a.lds(f"ds_read_b32 v{tmp+w}, {vTau4} offset:{off + w*stride}", "redr")
        a.wait_lg()
        a(f"v_add_f32 v{tmp}, v{tmp}, v{tmp+1}")
        a(f"v_add_f32 v{tmp+2}, v{tmp+2}, v{tmp+3}")
        a(f"v_add_f32 v{dst}, v{tmp}, v{tmp+2}")
    def tagcheck(tagregs, Lok):
        a(f"s_mov_b64 {EX}, exec")
        for t in tagregs:
            a(f"v_cmpx_eq_u32 vcc, {vTag}, v{t}")
        a("s_nop 3")
        a(f"s_cmp_eq_u64 exec, {EX}")
        a(f"s_mov_b64 exec, {EX}")
        a(f"s_cbranch_scc1 {Lok}")
    def timeout_mark(dbgcode):
        a(f"""s_mov_b32 s32, s60
        s_mov_b32 s33, s61
        s_mov_b32 s34, 256
        s_mov_b32 s35, 0x20000
        v_mov_b32 {vA}, {4*dbgcode}
        v_mov_b32 {vB_}, 1
        buffer_store_dword {vB_}, {vA}, s[32:35], 0 offen
        s_waitcnt vmcnt(0)""")
    def poll(issue, tagregs, waitname, dbgcode):
        Lchk = a.newlabel("L_chk"); Lok = a.newlabel("L_ok"); Lto = a.newlabel("L_to")
        a.wait_vm(waitname)
        saved_vm = list(a.vm)
        a(f"s_mov_b32 {sSpin}, {cfg.spin}")
        a.label(Lchk)
        tagcheck(tagregs, Lok)
        a(f"s_sub_u32 {sSpin}, {sSpin}, 1")
        a(f"s_cmp_eq_u32 {sSpin}, 0")
        a(f"s_cbranch_scc1 {Lto}")
        a.vm = []
        issue()
        a("s_waitcnt vmcnt(0)")
        a(f"s_branch {Lchk}")
        a.label(Lto)
        timeout_mark(dbgcode)
        a.label(Lok)
        a.vm = saved_vm
    def xlane_reduce(v, op, tmp):
        a(f"v_mov_b32 {tmp}, {v}")
        a(f"v_permlane16_swap_b32 {v}, {tmp}")
        a(f"{op} {v}, {v}, {tmp}")
        a(f"v_mov_b32 {tmp}, {v}")
        a(f"v_permlane32_swap_b32 {v}, {tmp}")
        a(f"{op} {v}, {v}, {tmp}")
    def wave_reduce(v, op, tmp):
        for d in ("quad_perm:[1,0,3,2]", "quad_perm:[2,3,0,1]", "row_half_mirror", "row_mirror"):
            a(f"{op}_dpp {v}, {v}, {v} {d} row_mask:0xf bank_mask:0xf")
        xlane_reduce(v, op, tmp)
    def x_loads():
        for tt in range(9):
            a.vmem(f"buffer_load_ushort v{VX+tt}, {vXo}, {XR}, {sX1} offen offset:{2*tt}", "x")
    def w1_loads():
        for tt in range(9):
            a(f"s_add_u32 {sT2}, {sW1}, {tt*8192}")
            a.vmem(f"buffer_load_dwordx4 {R(VW+4*tt,4)}, {vWo}, {W1}, {sT2} offen{WNT}", f"w1_{tt}")
    def hello_issue():
        a(f"s_and_b32 {sT2}, {sW}, 7")
        a(f"s_lshl_b32 {sT2}, {sT2}, 7")
        a(f"s_lshr_b32 {sT3}, {sW}, 7")
        a(f"s_lshl_b32 {sT3}, {sT3}, 6")
        a(f"s_add_u32 {sT2}, {sT2}, {sT3}")
        a(f"s_add_u32 {sT2}, {sT2}, {HELLO}")
        a(f"v_lshlrev_b32 v82, 2, {vI}")
        a.vmem(f"buffer_load_dword v83, v82, {WS}, {sT2} offen sc1", "hello")
    def hello_finish():
        a.try_wait_vm("hello")
        a(f"v_cmp_ne_u32 vcc, {vTag}, v83")
        a(f"s_mov_b32 {sFast}, {FOFF if cfg.fast else 0}")
        a("s_nop 0")
        a(f"s_cmp_eq_u64 vcc, 0")
        a(f"s_cselect_b32 {sFast}, {sFast}, 0")
    def p1a_compute(qoff, dual):
        a.wait_vm("x")
        build_frag(FR0, f"v{VX}", 0)
        for tt in range(9):
            cur = FR0 if tt % 2 == 0 else FR1
            nxt = FR1 if tt % 2 == 0 else FR0
            if tt < 8: build_frag(nxt, f"v{VX+tt+1}", 0)
            a.wait_vm(f"w1_{tt}")
            c = "0" if tt == 0 else R(ACC, 4)
            a(f"v_mfma_f32_16x16x32_bf16 {R(ACC,4)}, {R(VW+4*tt,4)}, {R(cur,4)}, {c}")
        red_write(ACC, vRedW, RED1)
        a(f"v_mov_b32 v81, {vTag}")
        a(f"s_lshl_b32 {sT0}, {sL1}, 11")
        a(f"s_add_u32 {sT0}, {sT0}, {QP + qoff}")
        a(f"s_add_u32 {sT1}, {sT0}, {FOFF}")
        if dual: hello_issue()
        a.barrier()
        red_sum4(80, 72, RED1, 1024)
        if dual and cfg.fast: a.vmem(f"buffer_store_dwordx2 v[80:81], {vTau8}, {WS}, {sT1} offen", "qp_st")
        a.vmem(f"buffer_store_dwordx2 v[80:81], {vTau8}, {WS}, {sT0} offen sc1", "qp_st")
    def q_issue():
        a(f"s_add_u32 {sT3}, {sQb}, 4096")
        a.vmem(f"buffer_load_dwordx2 v[{VQ}:{VQ+1}], v85, {WS}, {sQb} offen sc1", "q")
        a.vmem(f"buffer_load_dwordx2 v[{VQ+2}:{VQ+3}], v85, {WS}, {sQb} offen offset:2048 sc1", "q")
        a.vmem(f"buffer_load_dwordx2 v[{VQ+4}:{VQ+5}], v85, {WS}, {sT3} offen sc1", "q")
        a.vmem(f"buffer_load_dwordx2 v[{VQ+6}:{VQ+7}], v85, {WS}, {sT3} offen offset:2048 sc1", "q")
    QTAGS = [VQ+1, VQ+3, VQ+5, VQ+7]
    def q_finish():
        a(f"v_add_f32 v{VQ}, v{VQ}, v{VQ+2}")
        a(f"v_add_f32 v{VQ+4}, v{VQ+4}, v{VQ+6}")
        a(f"v_lshlrev_b32 {vA}, 1, {vTau}")
        a(f"v_add_f32 v{VQ}, v{VQ}, v{VQ+4}")
        a(f"v_add_u32 {vA}, {X}, {vA}")
        a(f"v_cvt_pk_bf16_f32 v{VQ}, v{VQ}, v{VQ}")
        a.lds(f"ds_write_b16 {vA}, v{VQ} offset:{QB}", "qb")
        a(f"v_lshlrev_b32 {vA}, 8, {vBp}")
        a(f"v_lshl_add_u32 {vA}, {vKg}, 4, {vA}")
        a(f"v_add_u32 {vA}, {X}, {vA}")
        a.barrier()
        for t in range(4):
            a.lds(f"ds_read_b128 {R(VQF+4*t,4)}, {vA} offset:{QB + 64*t}", "qf")
    def wo_issue():
        Lskip = a.newlabel("L_nowo")
        a(f"""
        s_and_b32 {sT0}, {sL3}, 3
        s_cmp_eq_u32 {sT0}, 3
        s_cbranch_scc1 {Lskip}
        v_mul_u32_u24 v240, 9216, {vKg}
        v_lshl_add_u32 v241, {vI}, 4, v240
        v_lshrrev_b32 {vA}, 3, {vI}
        v_mul_u32_u24 {vA}, 1152, {vA}
        v_and_b32 {vB_}, 7, {vI}
        v_lshl_add_u32 {vA}, {vB_}, 4, {vA}
        v_add_u32 v242, v240, {vA}
        v_add_u32 v242, 256, v242
        s_lshr_b32 {sT1}, {sL3}, 2
        s_lshl_b32 {sT1}, {sT1}, 7
        s_lshl_b32 {sT2}, {sWv}, 5
        s_add_u32 {sT1}, {sT1}, {sT2}
        s_mul_i32 {sT1}, {sT1}, 1152
        s_mul_i32 {sT0}, {sT0}, 384
        s_add_u32 {sT1}, {sT1}, {sT0}
        s_add_u32 {sT2}, {sT1}, 4608
        """)
        for tt in range(8):
            a(f"buffer_load_dwordx4 a[{128+4*tt}:{131+4*tt}], v241, {WO}, {sT1 if tt < 4 else sT2} offen offset:{(tt % 4)*1152}{WNT}")
        for u in range(4):
            a(f"buffer_load_dwordx4 a[{160+4*u}:{163+4*u}], v242, {WO}, {sT1 if u < 2 else sT2} offen offset:{(u % 2)*2304}{WNT}")
        a.label(Lskip)
    def gemv8(src_regs, xf, acc, waitnames):
        build_frag(FR0, f"v{xf}", 0)
        for tt in range(8):
            cur = FR0 if tt % 2 == 0 else FR1
            nxt = FR1 if tt % 2 == 0 else FR0
            if tt < 7: build_frag(nxt, f"v{xf + (tt+1)//2}", (tt+1) % 2)
            if waitnames: a.try_wait_vm(waitnames[tt])
            c = "0" if tt == 0 else R(acc, 4)
            a(f"v_mfma_f32_16x16x32_bf16 {R(acc,4)}, {src_regs[tt]}, {R(cur,4)}, {c}")

    a(f"""
    s_cmp_ge_u32 s2, 256
    s_cbranch_scc1 L_end
    s_load_dwordx16 s[36:51], s[0:1], 0
    s_load_dwordx8 s[52:59], s[0:1], 64
    s_load_dwordx4 s[60:63], s[0:1], 96
    """)
    if cfg.stamps:
        for k in range(NST): a(f"s_mov_b64 s[{66+2*k}:{67+2*k}], 0")
    stamp(0)
    a(f"""
    v_and_b32 {vLane}, 63, {vTau}
    v_lshrrev_b32 {vA}, 6, {vTau}
    v_and_b32 {vI}, 15, {vTau}
    v_bfe_u32 {vKg}, {vTau}, 4, 2
    v_readfirstlane_b32 {sWv}, {vA}
    v_bfe_u32 {vBp}, {vTau}, 3, 1
    v_mul_u32_u24 {vXo}, 1152, {vBp}
    v_mul_u32_u24 {vA}, 18, {vKg}
    v_add_u32 {vXo}, {vXo}, {vA}
    v_mul_u32_u24 {vWo}, 73728, {vKg}
    v_lshlrev_b32 {vA}, 4, {vI}
    v_add_u32 {vWo}, {vWo}, {vA}
    v_lshlrev_b32 {vL16}, 4, {vLane}
    s_waitcnt lgkmcnt(0)
    s_load_dword {sEp}, s[62:63], 0
    s_cmp_ge_u32 {sW}, 128
    s_mov_b32 s4, s62
    s_mov_b32 s5, s63
    s_mov_b32 s6, 0x10000000
    s_mov_b32 s7, 0x20000
    s_cselect_b32 s8, s36, s46
    s_cselect_b32 s9, s37, s47
    s_mov_b32 s10, 2304
    s_mov_b32 s11, 0x20000
    s_cselect_b32 s12, s42, s50
    s_cselect_b32 s13, s43, s51
    s_mov_b32 s14, 4718592
    s_mov_b32 s15, 0x20000
    s_cselect_b32 s16, s48, s38
    s_cselect_b32 s17, s49, s39
    s_mov_b32 s18, 67108864
    s_cselect_b32 s18, 16777216, s18
    s_mov_b32 s19, 0x20000
    s_cselect_b32 s20, s54, s52
    s_cselect_b32 s21, s55, s53
    s_mov_b32 s22, 4194304
    s_mov_b32 s23, 0x20000
    s_cselect_b32 s24, s56, s44
    s_cselect_b32 s25, s57, s45
    s_mov_b32 s26, 4718592
    s_mov_b32 s27, 0x20000
    s_mov_b32 s28, s58
    s_mov_b32 s29, s59
    s_mov_b32 s30, 4608
    s_mov_b32 s31, 0x20000
    ; x = w&7, q = (w>>3)&3, e = (w>>5)&1, f = (w>>6)&1
    s_and_b32 {sT0}, {sW}, 7
    s_bfe_u32 {sT1}, {sW}, 0x20003
    s_bfe_u32 {sT2}, {sW}, 0x20005
    s_lshl_b32 {sT2}, {sT2}, 3
    s_add_u32 {sT2}, {sT2}, {sT0}          ; hX = x + 8*((w>>5)&3)
    s_lshl_b32 {sT2}, {sT2}, 2
    s_add_u32 {sT2}, {sT2}, {sT1}
    s_bfe_u32 {sT3}, {sW}, 0x10006
    s_lshl_b32 {sT3}, {sT3}, 3
    s_add_u32 {sT3}, {sT3}, {sT0}          ; hkv = x + 8f
    s_bfe_u32 {sT0}, {sW}, 0x10005         ; e
    s_lshl_b32 {sLA}, {sT0}, 6
    s_lshl_b32 {sL3}, {sT3}, 2
    s_add_u32 {sLA}, {sLA}, {sL3}
    s_add_u32 {sLA}, {sLA}, {sT1}
    s_lshl_b32 {sT3}, {sT3}, 1
    s_add_u32 {sT3}, {sT3}, {sT0}          ; 2hkv + e
    s_lshl_b32 {sT3}, {sT3}, 2
    s_add_u32 {sT3}, {sT3}, {sT1}
    s_cmp_ge_u32 {sW}, 128
    s_cselect_b32 {sL1}, {sT3}, {sT2}
    s_cselect_b32 {sL3}, {sT2}, {sT3}
    s_lshr_b32 {sH}, {sL1}, 2
    s_lshr_b32 {sBr}, {sW}, 7
    s_mov_b32 {sFast}, 0
    s_and_b32 {sT0}, {sL1}, 3
    s_mul_i32 {sT0}, {sT0}, 144
    s_mul_i32 {sT1}, {sWv}, 36
    s_add_u32 {sT0}, {sT0}, {sT1}
    s_lshl_b32 {sX1}, {sT0}, 1
    s_lshl_b32 {sW1}, {sT0}, 13
    s_lshl_b32 {sT1}, {sH}, 8
    s_add_u32 {sW1}, {sW1}, {sT1}
    """)
    a.smem = True
    def c_group(g):
        a(f"""
        s_add_u32 {sT1}, {sRot}, {4*g}
        s_and_b32 {sT1}, {sT1}, 31
        s_lshl_b32 {sT1}, {sT1}, 10
        s_add_u32 {sT1}, {sKB}, {sT1}
        s_lshl_b32 {sT2}, {sWv}, 15
        s_add_u32 m0, {sT2}, {g*4096}
        """)
        for q in range(4):
            f = (q << 2) | (g & 3)
            a(f"v_xor_b32 v{202+q}, {f << 4}, {vL16}")
        for q in range(4):
            a.vmem(f"buffer_load_dwordx4 v{202+q}, {KV}, {sT1} offen offset:{q*1024}{NT} lds", "c")
    a(f"s_cmp_ge_u32 {sW}, 128")
    a("s_cbranch_scc1 L_firstB")
    x_loads()
    w1_loads()
    vWuk = "v205"
    def uk_loads(track):
        a(f"""
        v_xor_b32 {vA}, {vI}, {vKg}
        v_lshlrev_b32 {vA}, 4, {vA}
        v_lshl_add_u32 v206, {vKg}, 13, {vA}
        v_xor_b32 v207, 64, v206
        v_xor_b32 v208, 128, v206
        v_xor_b32 v209, 192, v206
        s_and_b32 {sT0}, {sL1}, 3
        s_lshl_b32 {sT0}, {sT0}, 7
        s_lshl_b32 {sT1}, {sWv}, 5
        s_add_u32 {sT0}, {sT0}, {sT1}
        s_lshl_b32 {sT0}, {sT0}, 13
        s_lshl_b32 {sT1}, {sH}, 8
        s_add_u32 {sT0}, {sT0}, {sT1}
        s_lshl_b32 {sT1}, {sWv}, 15
        """)
        for n in range(8):
            a(f"s_add_u32 m0, {sT1}, {6*4096 + n*1024}")
            a(f"s_add_u32 {sT2}, {sT0}, {n*4*8192}")
            a.vmem(f"buffer_load_dwordx4 v{206 + n % 4}, {VV}, {sT2} offen{WNT} lds", "uk")
    vm_S = list(a.vm)
    a("s_branch L_firstdone")
    a.label("L_firstB")
    a.vm = []
    a(f"""
    s_sub_u32 {sKB}, {sW}, 128
    s_lshl_b32 {sKB}, {sKB}, 17
    s_lshl_b32 {sT0}, {sWv}, 15
    s_add_u32 {sKB}, {sKB}, {sT0}
    s_mul_i32 {sRot}, {sW}, {20 if cfg.rot else 0}
    s_mul_i32 {sT0}, {sWv}, {12 if cfg.rot else 0}
    s_add_u32 {sRot}, {sRot}, {sT0}
    """)
    for g in range(cfg.b_g1): c_group(g)
    vm_B = list(a.vm)
    a.label("L_firstdone")
    a(f"""
    v_and_b32 {vA}, 1, {vLane}
    v_cmp_eq_u32 vcc, 1, {vA}
    v_mov_b32 {vB_}, 0x0c0c0100
    v_mov_b32 {vC}, 0x01000c0c
    v_cndmask_b32 v68, {vB_}, {vC}, vcc
    v_mov_b32 {vB_}, 0x0c0c0302
    v_mov_b32 {vC}, 0x03020c0c
    v_cndmask_b32 v69, {vB_}, {vC}, vcc
    v_bfe_u32 {vA}, {vLane}, 1, 2
    v_mov_b32 {vB_}, 0x0c0c0c0c
    """)
    for r in range(4):
        a(f"v_cmp_eq_u32 vcc, {r}, {vA}")
        a(f"v_cndmask_b32 {SEL[0][r]}, {vB_}, v68, vcc")
        a(f"v_cndmask_b32 {SEL[1][r]}, {vB_}, v69, vcc")
    a(f"""
    v_lshlrev_b32 {vTau4}, 2, {vTau}
    v_add_u32 {vTau4}, {X}, {vTau4}
    v_lshlrev_b32 {vTau8}, 3, {vTau}
    v_lshlrev_b32 {vRedW}, 9, {vBp}
    v_lshl_add_u32 {vRedW}, {vKg}, 7, {vRedW}
    v_and_b32 {vA}, 7, {vLane}
    v_lshl_add_u32 {vRedW}, {vA}, 2, {vRedW}
    s_lshl_b32 {sT0}, {sWv}, 10
    s_add_u32 {sT0}, {sT0}, {X}
    v_add_u32 {vRedW}, {sT0}, {vRedW}
    v_lshlrev_b32 v85, 3, {vLane}
    s_mov_b32 {sC1}, {f2u(C1):#x}
    """)
    a.wait_lg()
    a(f"s_mul_i32 {sTag}, {sEp}, 0x9E3779B1")
    a(f"s_add_u32 {sTag}, {sTag}, 0x7F4A7C15")
    a(f"v_mov_b32 {vTag}, {sTag}")
    a(f"""
    s_and_b32 {sT0}, {sW}, 7
    s_lshl_b32 {sT0}, {sT0}, 7
    s_lshr_b32 {sT1}, {sW}, 3
    s_lshl_b32 {sT1}, {sT1}, 2
    s_add_u32 {sT0}, {sT0}, {sT1}
    s_add_u32 {sT0}, {sT0}, {HELLO}
    v_mov_b32 {vA}, 0
    v_cmp_eq_u32 vcc, 0, {vTau}
    s_and_saveexec_b64 {EX}, vcc
    s_cbranch_execz L_nohello
    buffer_store_dword {vTag}, {vA}, {WS}, {sT0} offen
    L_nohello:
    s_mov_b64 exec, {EX}
    """)
    a(f"s_cmp_ge_u32 {sW}, 128")
    a("s_cbranch_scc1 L_roleB")

    a.vm = list(vm_S)
    if cfg.ukearly:
        a("s_barrier")
        uk_loads(True)
    VKO = 200; VVO = 204
    a(f"""
    s_lshr_b32 {sT0}, {sLA}, 2
    s_lshl_b32 {sKB}, {sT0}, 21
    s_and_b32 {sT0}, {sLA}, 3
    s_lshl_b32 {sT0}, {sT0}, 17
    s_add_u32 {sKB}, {sKB}, {sT0}
    s_add_u32 {sKB}, {sKB}, {6144*256}
    s_lshl_b32 {sT0}, {sWv}, 15
    s_add_u32 {sKB}, {sKB}, {sT0}
    v_xor_b32 {vA}, {vI}, {vKg}
    v_lshlrev_b32 {vA}, 4, {vA}
    v_lshl_add_u32 v{VKO}, {vKg}, 8, {vA}
    v_xor_b32 v{VKO+1}, 64, v{VKO}
    v_xor_b32 v{VKO+2}, 128, v{VKO}
    v_xor_b32 v{VKO+3}, 192, v{VKO}
    v_lshlrev_b32 {vA}, 4, {vI}
    v_lshl_add_u32 v{VVO}, {vKg}, 10, {vA}
    s_mul_i32 {sRot}, {sW}, {5 if cfg.rot else 0}
    s_mul_i32 {sT0}, {sWv}, {3 if cfg.rot else 0}
    s_add_u32 {sRot}, {sRot}, {sT0}
    s_mov_b32 {sN}, 0
    s_add_u32 {sT0}, {sH}, 32
    s_lshl_b32 {sQb}, {sT0}, 13
    s_lshl_b32 {sT0}, {sWv}, 9
    s_add_u32 {sQb}, {sQb}, {sT0}
    s_add_u32 {sQb}, {sQb}, {QP}
    """)
    def k_tile():
        a(f"""
        s_add_u32 {sT0}, {sRot}, {sN}
        s_and_b32 {sT0}, {sT0}, 7
        s_lshl_b32 {sT0}, {sT0}, 12
        s_add_u32 {sT1}, {sKB}, {sT0}
        s_lshl_b32 {sT0}, {sWv}, 15
        s_lshl_b32 {sT2}, {sN}, 12
        s_add_u32 m0, {sT0}, {sT2}
        s_add_u32 {sN}, {sN}, 1
        """)
        for q in range(4):
            a(f"buffer_load_dwordx4 v{VKO+q}, {KV}, {sT1} offen offset:{q*1024}{NT} lds")
    VKA = 112
    for t in range(4):
        a(f"v_add_u32 {vA}, {4*t}, {vKg}")
        a(f"v_xor_b32 {vA}, {vA}, {vI}")
        a(f"v_lshlrev_b32 {vA}, 4, {vA}")
        a(f"v_lshl_add_u32 v{VKA+t}, {vI}, 8, {vA}")
    a(f"s_lshl_b32 {sT0}, {sWv}, 15")
    for t in range(4):
        a(f"v_add_u32 v{VKA+t}, {sT0}, v{VKA+t}")
    p1a_compute(128 * 2048, True)
    stamp(1)
    if not cfg.ukearly: uk_loads(True)
    hello_finish()
    a(f"s_add_u32 {sQb}, {sQb}, {sFast}")
    if cfg.stamps: a(f"s_mov_b32 s{66+2*14}, {sFast}"); a(f"s_mov_b32 s{67+2*14}, 0")
    a(f"s_mov_b32 {sSpin}, {cfg.spin}")
    Ltry = a.newlabel("L_try"); Lchk = a.newlabel("L_chk"); Lok = a.newlabel("L_ok")
    a.label(Ltry)
    q_issue()
    g = cfg.s_kp
    labs = [a.newlabel("L_pw") for _ in range(g)]
    for gi in range(g):
        a(f"s_cmp_ge_u32 {sN}, 6")
        a(f"s_cbranch_scc1 {labs[gi]}")
        k_tile()
    a(f"s_waitcnt vmcnt({4*g})")
    if g: a(f"s_branch {Lchk}")
    for gi in range(g):
        a.label(labs[gi])
        a(f"s_waitcnt vmcnt({4*gi})")
        if gi < g - 1: a(f"s_branch {Lchk}")
    a.label(Lchk)
    tagcheck(QTAGS, Lok)
    a(f"s_sub_u32 {sSpin}, {sSpin}, 1")
    a(f"s_cmp_eq_u32 {sSpin}, 0")
    a(f"s_cbranch_scc0 {Ltry}")
    timeout_mark(1)
    a.label(Lok)
    stamp(8)
    if cfg.stamps: a(f"s_sub_u32 s{66+2*15}, {cfg.spin}, {sSpin}"); a(f"s_mov_b32 s{67+2*15}, 0")
    a.vm = []
    for T2 in range(2):
        for t in range(4):
            a.lds(f"ds_read_b128 {R(116 + 4*(T2*4+t), 4)}, v{VKA+t} offset:{(6+T2)*4096}", "ukr")
    q_finish()
    DA = 68
    a(f"""
    v_lshlrev_b32 {vA}, 16, {vBp}
    v_lshl_add_u32 {vA}, {vKg}, 4, {vA}
    s_lshl_b32 {sT0}, {sH}, 11
    s_and_b32 {sT1}, {sL1}, 3
    s_lshl_b32 {sT1}, {sT1}, 9
    s_add_u32 {sT0}, {sT0}, {sT1}
    s_lshl_b32 {sT1}, {sWv}, 7
    s_add_u32 {sT0}, {sT0}, {sT1}
    s_add_u32 {sT0}, {sT0}, {QA}
    v_mov_b32 v81, {vTag}
    v_mov_b32 v83, {vTag}
    v_mov_b32 v89, {vTag}
    v_mov_b32 v91, {vTag}
    v_and_b32 {vB_}, 7, {vLane}
    v_cmp_eq_u32 vcc, 0, {vB_}
    """)
    a.wait_lg()
    for t in range(4):
        for T2 in range(2):
            n = T2 * 4 + t
            c = "0" if t == 0 else R(DA + 4*T2, 4)
            a(f"v_mfma_f32_16x16x32_bf16 {R(DA+4*T2,4)}, {R(116+4*n,4)}, {R(VQF+4*t,4)}, {c}")
    a(f"""
    v_cvt_pk_bf16_f32 v80, v{DA}, v{DA+1}
    v_cvt_pk_bf16_f32 v82, v{DA+2}, v{DA+3}
    v_cvt_pk_bf16_f32 v88, v{DA+4}, v{DA+5}
    v_cvt_pk_bf16_f32 v90, v{DA+6}, v{DA+7}
    s_and_saveexec_b64 {EX}, vcc
    buffer_store_dwordx4 v[80:83], {vA}, {WS}, {sT0} offen sc1
    buffer_store_dwordx4 v[88:91], {vA}, {WS}, {sT0} offen offset:64 sc1
    s_mov_b64 exec, {EX}
    s_lshl_b32 {sT0}, {sL1}, 2
    s_add_u32 {sT0}, {sT0}, {sWv}
    s_lshl_b32 {sT0}, {sT0}, 2
    s_add_u32 {sT0}, {sT0}, {QAF}
    v_mov_b32 {vA}, 0
    v_cmp_eq_u32 vcc, 0, {vLane}
    s_and_saveexec_b64 {EX}, vcc
    buffer_store_dword {vTag}, {vA}, {WS}, {sT0} offen sc1
    s_mov_b64 exec, {EX}
    s_mov_b32 s20, s40
    s_mov_b32 s21, s41
    s_mov_b32 s22, 67108864
    """)
    stamp(6)
    Ld = a.newlabel("L_kd"); Ldd = a.newlabel("L_kdd")
    a.label(Ld)
    a(f"s_cmp_ge_u32 {sN}, 8")
    a(f"s_cbranch_scc1 {Ldd}")
    a(f"s_waitcnt vmcnt({max(cfg.s_dk - 4, 0)})")
    k_tile()
    a(f"s_branch {Ld}")
    a.label(Ldd)
    stamp(7)
    a(f"""
    s_bfe_u32 {sT0}, {sLA}, 0x40002
    s_lshl_b32 {sT0}, {sT0}, 1
    s_lshr_b32 {sT1}, {sWv}, 1
    s_add_u32 {sT0}, {sT0}, {sT1}
    s_lshl_b32 {sQb}, {sT0}, 13
    s_lshr_b32 {sT0}, {sLA}, 6
    s_lshl_b32 {sT0}, {sT0}, 10
    s_add_u32 {sQb}, {sQb}, {sT0}
    s_and_b32 {sT0}, {sWv}, 1
    s_lshl_b32 {sT0}, {sT0}, 9
    s_add_u32 {sQb}, {sQb}, {sT0}
    s_add_u32 {sQb}, {sQb}, {QP}
    """)
    a.vm = []
    q_issue()
    vnext = [0]
    def v_load(n):
        T, r = n // 4, n % 4
        if r == 0 or vnext[1] != T:
            a(f"s_add_u32 {sUO}, {sRot}, {T}")
            a(f"s_and_b32 {sUO}, {sUO}, 7")
            a(f"s_lshl_b32 {sUO}, {sUO}, 12")
            a(f"s_add_u32 {sUO}, {sKB}, {sUO}")
            vnext[1] = T
        a.vmem(f"buffer_load_dwordx4 a[{4*n}:{4*n+3}], v{VVO}, {VV}, {sUO} offen offset:{r*256}{NT}", f"v{n}")
    vnext.append(-1)
    def v_more(k):
        for _ in range(k):
            if vnext[0] < 32:
                v_load(vnext[0]); vnext[0] += 1
    v_more(cfg.s_nv1)
    RING = 116; NR = 8; SC = 148; PK = 180
    poll(q_issue, QTAGS, "q", 0)
    q_finish()
    stamp(2)
    steps = [(T, t) for T in range(8) for t in range(4)]
    def kread(idx):
        T, t = steps[idx]
        a.lds(f"ds_read_b128 {R(RING + 4*(idx % NR), 4)}, v{VKA+t} offset:{T*4096}", f"kr{idx}")
    for idx in range(NR): kread(idx)
    for idx, (T, t) in enumerate(steps):
        a.wait_lg(f"kr{idx}")
        c = "0" if t == 0 else R(SC+4*T, 4)
        a(f"v_mfma_f32_16x16x32_bf16 {R(SC+4*T,4)}, {R(RING + 4*(idx % NR),4)}, {R(VQF+4*t,4)}, {c}")
        if idx + NR < len(steps): kread(idx + NR)
        if cfg.s_nv2 and idx % (32 // cfg.s_nv2) == 0: v_more(1)
    vM, vL = "v196", "v197"
    a(f"v_max3_f32 {vM}, v{SC}, v{SC+1}, v{SC+2}")
    for k in range(3, 31, 2):
        a(f"v_max3_f32 {vM}, {vM}, v{SC+k}, v{SC+k+1}")
    a(f"v_max_f32 {vM}, {vM}, v{SC+31}")
    xlane_reduce(vM, "v_max_f32", vA)
    a(f"v_mul_f32 {vM}, {sC1}, {vM}")
    for k in range(32):
        a(f"v_fma_f32 v{SC+k}, v{SC+k}, {sC1}, -{vM}")
    for k in range(32):
        a(f"v_exp_f32 v{SC+k}, v{SC+k}")
        if cfg.s_nv3 and k % (32 // cfg.s_nv3) == 0: v_more(1)
    a(f"v_add_f32 {vL}, v{SC}, v{SC+1}")
    for k in range(2, 32):
        a(f"v_add_f32 {vL}, {vL}, v{SC+k}")
    for k in range(16):
        a(f"v_cvt_pk_bf16_f32 v{PK+k}, v{SC+2*k}, v{SC+2*k+1}")
    xlane_reduce(vL, "v_add_f32", vA)
    v_more(32)
    stamp(3)
    OACC = 68
    build_frag(FR0, f"v{PK}", 0)
    for n in range(32):
        cur = FR0 if n % 2 == 0 else FR1
        nxt = FR1 if n % 2 == 0 else FR0
        if n < 31: build_frag(nxt, f"v{PK + (n+1)//2}", (n+1) % 2)
        a.try_wait_vm(f"v{n}")
        c = "0" if n == 0 else R(OACC, 4)
        a(f"v_mfma_f32_16x16x32_bf16 {R(OACC,4)}, a[{4*n}:{4*n+3}], {R(cur,4)}, {c}")
    stamp(4)
    a(f"""
    v_lshlrev_b32 {vA}, 3, {vBp}
    s_lshl_b32 {sT0}, {sWv}, 4
    s_add_u32 {sT0}, {sT0}, {X + MLS}
    v_add_u32 {vA}, {sT0}, {vA}
    v_and_b32 {vB_}, 0x37, {vLane}
    v_cmp_eq_u32 vcc, 0, {vB_}
    s_and_saveexec_b64 {EX}, vcc
    """)
    a.lds(f"ds_write_b64 {vA}, v[196:197]", "mlw")
    a(f"s_mov_b64 exec, {EX}")
    red_write(OACC, vRedW, RED2)
    a(f"""
    v_lshrrev_b32 v102, 7, {vTau}
    v_and_b32 v103, 127, {vTau}
    v_lshlrev_b32 {vC}, 13, v102
    v_lshl_add_u32 {vC}, v103, 3, {vC}
    v_lshlrev_b32 v104, 7, v102
    v_lshlrev_b32 {vA}, 3, v102
    v_add_u32 {vA}, {X + MLS}, {vA}
    s_bfe_u32 {sT0}, {sLA}, 0x40002
    s_lshl_b32 {sT1}, {sT0}, 14
    s_and_b32 {sT2}, {sLA}, 3
    s_lshl_b32 {sT3}, {sT2}, 11
    s_add_u32 {sT1}, {sT1}, {sT3}
    s_lshr_b32 {sT3}, {sLA}, 6
    s_lshl_b32 {sT3}, {sT3}, 10
    s_add_u32 {sT1}, {sT1}, {sT3}
    s_add_u32 {sUO}, {sT1}, {UO}
    s_lshl_b32 {sT1}, {sT0}, 8
    s_lshr_b32 {sT3}, {sLA}, 6
    s_lshl_b32 {sT3}, {sT3}, 6
    s_add_u32 {sT1}, {sT1}, {sT3}
    s_lshl_b32 {sT2}, {sT2}, 4
    s_add_u32 {sT1}, {sT1}, {sT2}
    s_add_u32 {sUML}, {sT1}, {UML}
    v_mov_b32 v95, {vTag}
    v_mov_b32 v99, {vTag}
    v_mov_b32 v101, {vTag}
    """)
    a.barrier()
    for w in range(4):
        a.lds(f"ds_read_b64 v[{80+2*w}:{81+2*w}], {vA} offset:{16*w}", "mlr")
    for w in range(4):
        a.lds(f"ds_read_b32 v{88+w}, {vTau4} offset:{RED2 + w*1024}", "redr")
    a.wait_lg()
    a("v_max3_f32 v98, v80, v82, v84")
    a("v_max_f32 v98, v98, v86")
    for w in range(4):
        a(f"v_sub_f32 v{80+2*w}, v{80+2*w}, v98")
    for w in range(4):
        a(f"v_exp_f32 v{80+2*w}, v{80+2*w}")
    a("v_mul_f32 v94, v80, v88")
    a("v_mul_f32 v100, v80, v81")
    for w in range(1, 4):
        a(f"v_fmac_f32 v94, v{80+2*w}, v{88+w}")
        a(f"v_fmac_f32 v100, v{80+2*w}, v{81+2*w}")
    a(f"s_add_u32 {sT0}, {sUO}, {FOFF}")
    a(f"s_add_u32 {sT1}, {sUML}, {FOFF}")
    if cfg.fast: a(f"buffer_store_dwordx2 v[94:95], {vC}, {WS}, {sT0} offen")
    a(f"""
    v_cmp_eq_u32 vcc, 0, v103
    s_and_saveexec_b64 {EX}, vcc
    s_cbranch_execz L_s_noml
    buffer_store_dwordx4 v[98:101], v104, {WS}, {sT1} offen
    buffer_store_dwordx4 v[98:101], v104, {WS}, {sUML} offen sc1
    L_s_noml:
    s_mov_b64 exec, {EX}
    buffer_store_dwordx2 v[94:95], {vC}, {WS}, {sUO} offen sc1
    s_mov_b64 exec, {EX}
    """)
    stamp(5)
    a(f"s_lshr_b32 {sH}, {sL3}, 2")
    a(f"s_lshr_b32 {sR}, {sL3}, 2")
    wo_issue()
    a("s_branch L_stage4")

    a.label("L_roleB")
    a.vm = list(vm_B); a.lg = []; a.smem = False
    def c_throttled(g):
        d = cfg.b_d0 if g < cfg.b_gr else cfg.b_d
        if len(a.vm) > d - 4:
            keep = max(d - 4, 0)
            a(f"s_waitcnt vmcnt({keep})"); a.vm = a.vm[len(a.vm) - keep:] if keep else []
        c_group(g)
    gi = cfg.b_g1
    while gi < cfg.b_gw:
        c_throttled(gi); gi += 1
    x_loads(); w1_loads()
    for _ in range(cfg.b_gw2):
        if gi < 8: c_group(gi); gi += 1
    p1a_compute(0, False)
    stamp(1)
    a(f"s_lshr_b32 {sH}, {sL3}, 2")
    hello_issue()
    while gi < 8:
        c_throttled(gi); gi += 1
    stamp(2)
    S1 = 64; RG = 80; AC = 112; AQ = 120; A2 = 244
    vHx = "v243"; vB0, vB1 = "v206", "v207"
    a(f"""
    v_and_b32 {vA}, 3, {vLane}
    v_lshlrev_b32 {vA}, 2, {vA}
    v_bfe_u32 {vB_}, {vLane}, 2, 2
    v_or_b32 {vA}, {vA}, {vB_}
    v_lshrrev_b32 {vB_}, 5, {vLane}
    v_xor_b32 {vA}, {vA}, {vB_}
    v_lshlrev_b32 {vA}, 4, {vA}
    v_and_b32 {vB_}, 31, {vLane}
    v_lshl_add_u32 {vA}, {vB_}, 10, {vA}
    s_lshl_b32 {sT0}, {sWv}, 15
    v_add_u32 v{AC}, {sT0}, {vA}
    v_add_u32 v{AQ}, {X}, {vA}
    v_lshlrev_b32 {vHx}, 2, {vB_}
    v_add_u32 {vHx}, {X}, {vHx}
    """)
    for u in range(1, 8):
        a(f"v_xor_b32 v{AC+u}, {u << 5}, v{AC}")
        a(f"v_xor_b32 v{AQ+u}, {u << 5}, v{AQ}")
    a(f"""
    v_bfe_u32 v64, {vLane}, 2, 2
    v_lshrrev_b32 v65, 5, {vLane}
    v_bfe_u32 v66, {vLane}, 4, 1
    v_bfe_u32 v67, {vLane}, 1, 1
    v_lshl_add_u32 v66, v66, 1, v67
    v_xor_b32 v66, v66, v65
    v_lshl_add_u32 v66, v64, 2, v66
    v_lshlrev_b32 v66, 4, v66
    v_and_b32 v67, 1, {vLane}
    v_lshl_add_u32 v66, v67, 3, v66
    v_lshl_add_u32 v67, v65, 2, v64
    v_lshl_add_u32 v66, v67, 10, v66
    s_lshl_b32 {sT0}, {sWv}, 8
    v_add_u32 v66, {sT0}, v66
    """)
    for ct in range(4):
        a(f"v_xor_b32 v{A2+2*ct}, {ct << 6}, v66")
        a(f"v_xor_b32 v{A2+2*ct+1}, 32, v{A2+2*ct}")
        a(f"v_add_u32 v{A2+2*ct+1}, 8192, v{A2+2*ct+1}")
    a(f"""
    v_lshrrev_b32 {vA}, 1, {vLane}
    v_lshlrev_b32 {vA}, 4, {vA}
    v_and_b32 {vB_}, 1, {vLane}
    v_lshl_add_u32 {vA}, {vB_}, 3, {vA}
    s_lshl_b32 {sT0}, {sWv}, 1
    s_and_b32 {sT0}, {sT0}, 3
    s_lshl_b32 {sT0}, {sT0}, 4
    s_add_u32 {sT1}, {sT0}, 16
    v_xor_b32 {vB0}, {sT0}, {vA}
    v_xor_b32 {vB1}, {sT1}, {vA}
    s_lshl_b32 {sT0}, {sWv}, 13
    s_add_u32 {sT0}, {sT0}, {X}
    v_add_u32 {vB0}, {sT0}, {vB0}
    v_add_u32 {vB1}, {sT0}, {vB1}
    s_bfe_u32 {sT0}, {sW}, 0x10006
    s_lshl_b32 {sQb}, {sT0}, 16
    s_lshl_b32 {sT0}, {sWv}, 14
    s_add_u32 {sQb}, {sQb}, {sT0}
    s_add_u32 {sQb}, {sQb}, {QA}
    s_mov_b32 {sSpin}, {cfg.spin}
    s_mov_b32 {sPend}, 0xffff
    """)
    hello_finish()
    a.barrier()
    VG = 128
    if cfg.qaf:
        a(f"s_lshl_b32 {sT0}, {sWv}, 9")
        a(f"s_add_u32 {sUO}, {sT0}, {QAF}")
        def qaf_issue():
            a.vmem(f"buffer_load_dwordx2 v[86:87], v85, {WS}, {sUO} offen sc1", "qaf")
        a.vm = []
        qaf_issue()
        poll(qaf_issue, [86, 87], "qaf", 6)
        stamp(3)
    Ltry = a.newlabel("L_try"); Lok = a.newlabel("L_ok")
    a.label(Ltry)
    for k in range(16):
        sk = a.newlabel("L_sk")
        a(f"s_bitcmp1_b32 {sPend}, {k}")
        a(f"s_cbranch_scc0 {sk}")
        a(f"s_add_u32 {sT3}, {sQb}, {k*1024}")
        a(f"buffer_load_dwordx4 {R(VG+4*k,4)}, {vL16}, {WS}, {sT3} offen sc1")
        a.label(sk)
    a("s_waitcnt vmcnt(0)")
    tagcheck([VG + 4*k + j for k in range(16) for j in (1, 3)], Lok)
    for k in range(16):
        sk = a.newlabel("L_sk")
        a(f"""s_mov_b64 {EX}, exec
        v_cmpx_eq_u32 vcc, {vTag}, v{VG+4*k+1}
        v_cmpx_eq_u32 vcc, {vTag}, v{VG+4*k+3}
        s_nop 3
        s_cmp_eq_u64 exec, {EX}
        s_mov_b64 exec, {EX}
        s_cbranch_scc0 {sk}
        s_bitset0_b32 {sPend}, {k}""")
        a.label(sk)
    a(f"s_sub_u32 {sSpin}, {sSpin}, 1")
    a(f"s_cmp_eq_u32 {sSpin}, 0")
    a(f"s_cbranch_scc0 {Ltry}")
    timeout_mark(2)
    a.label(Lok)
    a.vm = []
    stamp(4)
    def uv_issue():
        a(f"""
        v_lshlrev_b32 v208, 16, {vKg}
        v_lshl_add_u32 v208, {vI}, 4, v208
        s_and_b32 {sT0}, {sL3}, 3
        s_lshl_b32 {sT0}, {sT0}, 7
        s_lshl_b32 {sT2}, {sWv}, 5
        s_add_u32 {sT0}, {sT0}, {sT2}
        s_lshl_b32 {sT0}, {sT0}, 13
        s_lshl_b32 {sT2}, {sH}, 8
        s_add_u32 {sT0}, {sT0}, {sT2}
        """)
        for tt in range(8):
            a(f"buffer_load_dwordx4 a[{32+4*tt}:{35+4*tt}], v208, {VV}, {sT0} offen{WNT}")
            if tt < 7: a(f"s_add_u32 {sT0}, {sT0}, 8192")
    for k in range(16):
        u, half = k >> 1, k & 1
        if half == 0:
            a(f"v_xor_b32 v204, {(u & 3) << 6}, {vB0 if u < 4 else vB1}")
        a(f"v_mov_b32 v{VG+4*k+1}, v{VG+4*k+2}")
        a.lds(f"ds_write_b64 v204, v[{VG+4*k}:{VG+4*k+1}] offset:{u*1024 + half*512}", "qw")
    a.barrier()
    D1 = 4
    def g1read(t):
        s = RG + 8 * (t % D1)
        a.lds(f"ds_read_b128 {R(s,4)}, v{AC + (t & 7)} offset:{(t >> 3)*256}", f"g1c{t}")
        a.lds(f"ds_read_b128 {R(s+4,4)}, v{AQ + (t & 7)} offset:{(t >> 3)*256}", f"g1q{t}")
    for t in range(D1): g1read(t)
    if cfg.b_wpre:
        uv_issue(); wo_issue()
    for t in range(32):
        a.wait_lg(f"g1q{t}")
        s = RG + 8 * (t % D1)
        c = "0" if t == 0 else R(S1, 16)
        a(f"v_mfma_f32_32x32x16_bf16 {R(S1,16)}, {R(s,4)}, {R(s+4,4)}, {c}")
        if t + D1 < 32: g1read(t + D1)
    stamp(5)
    vM, vL = "v196", "v197"
    a(f"s_lshl_b32 {sT0}, {sWv}, 7")
    a(f"v_add_u32 v205, {sT0}, {vHx}")
    a(f"v_max3_f32 {vM}, v{S1}, v{S1+1}, v{S1+2}")
    for k in range(3, 15, 2):
        a(f"v_max3_f32 {vM}, {vM}, v{S1+k}, v{S1+k+1}")
    a(f"v_max_f32 {vM}, {vM}, v{S1+15}")
    a(f"v_mov_b32 {vA}, {vM}")
    a(f"v_permlane32_swap_b32 {vM}, {vA}")
    a(f"v_max_f32 {vM}, {vM}, {vA}")
    a.barrier()
    a.lds(f"ds_write_b32 v205, {vM} offset:{MX}", "mxw")
    a.barrier()
    for w in range(4):
        a.lds(f"ds_read_b32 v{80+w}, {vHx} offset:{MX + 128*w}", "mxr")
    a(f"s_lshl_b32 {sT0}, {sWv}, 11")
    a(f"s_add_u32 {sT0}, {sT0}, {X}")
    a(f"v_add_u32 v204, {sT0}, {vL16}")
    a.wait_lg()
    a(f"v_max3_f32 {vM}, v80, v81, v82")
    a(f"v_max_f32 {vM}, {vM}, v83")
    a(f"v_mul_f32 {vM}, {sC1}, {vM}")
    for k in range(16):
        a(f"v_fma_f32 v{S1+k}, v{S1+k}, {sC1}, -{vM}")
    for k in range(16):
        a(f"v_exp_f32 v{S1+k}, v{S1+k}")
    for k in range(4):
        a(f"v_cvt_pk_bf16_f32 v{80+k}, v{S1+2*k}, v{S1+2*k+1}")
    a.lds(f"ds_write_b128 v204, v[80:83] offset:{PF}", "pfw")
    for k in range(4, 8):
        a(f"v_cvt_pk_bf16_f32 v{80+k}, v{S1+2*k}, v{S1+2*k+1}")
    a.lds(f"ds_write_b128 v204, v[84:87] offset:{PF + 1024}", "pfw")
    a(f"v_add_f32 {vL}, v{S1}, v{S1+1}")
    for k in range(2, 16):
        a(f"v_add_f32 {vL}, {vL}, v{S1+k}")
    a(f"v_mov_b32 {vB_}, {vL}")
    a(f"v_permlane32_swap_b32 {vL}, {vB_}")
    a(f"v_add_f32 {vL}, {vL}, {vB_}")
    a.lds(f"ds_write_b32 v205, {vL} offset:{LS}", "lsw")
    a(f"v_add_u32 v204, {X}, {vL16}")
    a.barrier()
    PFR = 208
    for kt in range(8):
        a.lds(f"ds_read_b128 {R(PFR+4*kt,4)}, v204 offset:{PF + 1024*kt}", "pfr")
    for w in range(4):
        a.lds(f"ds_read_b32 v{80+w}, {vHx} offset:{LS + 128*w}", "lsr")
    a.wait_lg()
    a(f"v_add_f32 v80, v80, v81")
    a(f"v_add_f32 v82, v82, v83")
    a(f"v_add_f32 {vL}, v80, v82")
    a.barrier()
    stamp(12)
    OA = 128; RG2 = 80; D2 = 6
    st2 = [(kt, ct) for kt in range(8) for ct in range(4)]
    def g2read(idx):
        kt, ct = st2[idx]
        if kt == 4 and ct == 0:
            for q in range(8): a(f"v_add_u32 v{A2+q}, 65536, v{A2+q}")
        s = RG2 + 4 * (idx % D2)
        off = (kt & 3) * 16384
        a.lds(f"ds_read_b64_tr_b16 v[{s}:{s+1}], v{A2+2*ct} offset:{off}", f"g2a{idx}")
        a.lds(f"ds_read_b64_tr_b16 v[{s+2}:{s+3}], v{A2+2*ct+1} offset:{off}", f"g2b{idx}")
    for idx in range(D2): g2read(idx)
    for idx, (kt, ct) in enumerate(st2):
        a.wait_lg(f"g2b{idx}")
        s = RG2 + 4 * (idx % D2)
        c = "0" if kt == 0 else R(OA + 16*ct, 16)
        a(f"v_mfma_f32_32x32x16_bf16 {R(OA+16*ct,16)}, {R(s,4)}, {R(PFR+4*kt,4)}, {c}")
        if idx + D2 < len(st2): g2read(idx + D2)
    stamp(6)
    a(f"""
    v_and_b32 {vA}, 31, {vLane}
    v_lshlrev_b32 v204, 10, {vA}
    v_and_b32 {vA}, 7, {vLane}
    v_lshl_add_u32 v204, {vA}, 4, v204
    v_lshrrev_b32 {vA}, 5, {vLane}
    v_lshl_add_u32 v204, {vA}, 3, v204
    s_lshl_b32 {sT0}, {sWv}, 8
    s_add_u32 {sT0}, {sT0}, {X}
    v_add_u32 v204, {sT0}, v204
    """)
    for ct in range(4):
        for g in range(4):
            i0 = OA + 16*ct + 4*g
            t = 80 + 2 * ((ct*4+g) % 8)
            a(f"v_cvt_pk_bf16_f32 v{t}, v{i0}, v{i0+1}")
            a(f"v_cvt_pk_bf16_f32 v{t+1}, v{i0+2}, v{i0+3}")
            ad = f"v{96 + (ct*4+g) % 8}"
            a(f"v_xor_b32 {ad}, {(4*ct+g) << 4}, v204")
            a.lds(f"ds_write_b64 {ad}, v[{t}:{t+1}]", "tbw")
            if (ct*4+g) % 8 == 7 and ct < 3: a.wait_lg()
    a(f"""
    s_lshl_b32 {sT0}, {sWv}, 13
    s_add_u32 {sT0}, {sT0}, {X}
    v_add_u32 v204, {sT0}, {vL16}
    v_lshlrev_b32 v205, 15, {vKg}
    v_lshl_add_u32 v205, {vI}, 4, v205
    s_sub_u32 {sT1}, {sW}, 128
    s_lshl_b32 {sT1}, {sT1}, 8
    s_lshl_b32 {sT0}, {sWv}, 20
    s_add_u32 {sT1}, {sT1}, {sT0}
    s_add_u32 {sT1}, {sT1}, {PB}
    """)
    for u in range(8):
        a(f"v_xor_b32 v{104+u}, {u << 4}, v204")
    a.barrier()
    for u in range(8):
        a.lds(f"ds_read_b128 {R(128+4*u,4)}, v{104+u} offset:{u*1024}", f"tbr{u}")
    for u in range(8):
        a.wait_lg(f"tbr{u}")
        a.vmem(f"buffer_store_dwordx4 {R(128+4*u,4)}, v205, {WS}, {sT1} offen sc1", "pb_st")
        if u < 7: a(f"s_add_u32 {sT1}, {sT1}, 131072")
    stamp(7)
    if not cfg.b_wpre: uv_issue()
    a(f"""
    v_mov_b32 v80, {vM}
    v_mov_b32 v81, {vTag}
    v_mov_b32 v82, {vL}
    v_mov_b32 v83, {vTag}
    v_lshlrev_b32 {vA}, 11, {vLane}
    s_sub_u32 {sT1}, {sW}, 128
    s_lshl_b32 {sT1}, {sT1}, 4
    s_add_u32 {sT1}, {sT1}, {PBML}
    s_lshl_b32 {sQb}, {sH}, 11
    s_add_u32 {sQb}, {sQb}, {PBML}
    v_lshlrev_b32 v204, 4, {vTau}
    """)
    a(f"s_waitcnt vmcnt({0 if cfg.b_wpre else 8})")
    a("s_barrier")
    a(f"""
    v_cmp_gt_u32 vcc, 32, {vTau}
    s_and_saveexec_b64 {EX}, vcc
    s_cbranch_execz L_b_noml
    buffer_store_dwordx4 v[80:83], {vA}, {WS}, {sT1} offen sc1
    L_b_noml:
    s_mov_b64 exec, {EX}
    """)
    stamp(8)
    if not cfg.b_wpre: wo_issue()
    a(f"s_cmp_ge_u32 {sWv}, 2")
    a("s_cbranch_scc1 L_b_skipml")
    def ml_issue():
        a.vmem(f"buffer_load_dwordx4 v[80:83], v204, {WS}, {sQb} offen sc1", "pbml")
    a.vm = []
    ml_issue()
    poll(ml_issue, [81, 83], "pbml", 3)
    a("v_mov_b32 v84, v80")
    wave_reduce("v84", "v_max_f32", vA)
    a("v_sub_f32 v80, v80, v84")
    a("v_exp_f32 v80, v80")
    a(f"v_lshlrev_b32 {vC}, 1, {vTau}")
    a("v_mul_f32 v85, v80, v82")
    wave_reduce("v85", "v_add_f32", vA)
    a("v_rcp_f32 v85, v85")
    a(f"v_add_u32 {vC}, {X}, {vC}")
    a("v_mul_f32 v80, v80, v85")
    a("v_cvt_pk_bf16_f32 v80, v80, v80")
    a.lds(f"ds_write_b16 {vC}, v80 offset:{XS2}", "xs2w")
    a.wait_lg()
    a.label("L_b_skipml")
    a.vm = []
    vXa = "v205"
    a(f"""
    s_lshl_b32 {sT0}, {sL3}, 15
    s_lshl_b32 {sT1}, {sWv}, 13
    s_add_u32 {sT0}, {sT0}, {sT1}
    s_add_u32 {sT0}, {sT0}, {PB}
    v_lshlrev_b32 v204, 11, {vKg}
    v_lshl_add_u32 v204, {vI}, 4, v204
    s_lshl_b32 {sT1}, {sWv}, 6
    s_add_u32 {sT1}, {sT1}, {X}
    v_lshlrev_b32 {vXa}, 4, {vKg}
    v_add_u32 {vXa}, {sT1}, {vXa}
    s_add_u32 {sUO}, {sL3}, {(UO + 0x40000)//2048}
    s_lshl_b32 {sUO}, {sUO}, 11
    """)
    a.barrier()
    stamp(9)
    for tt in range(8):
        a.vmem(f"buffer_load_dwordx4 {R(128+4*tt,4)}, v204, {WS}, {sT0} offen offset:{256*tt} sc1", f"pb{tt}")
    a.lds(f"ds_read_b128 v[88:91], {vXa} offset:{XS2}", "xf")
    a(f"s_lshr_b32 {sT0}, {sWv}, 1")
    a(f"v_cmp_eq_u32 vcc, {sT0}, {vBp}")
    a.wait_lg()
    for r in range(4):
        a(f"v_cndmask_b32 v{88+r}, 0, v{88+r}, vcc")
    gemv8([R(128+4*tt, 4) for tt in range(8)], 88, ACC, [f"pb{tt}" for tt in range(8)])
    red_write(ACC, vRedW, REDA)
    a(f"v_lshlrev_b32 {vC}, 1, {vTau}")
    a(f"v_add_u32 {vC}, {X}, {vC}")
    a(f"v_lshl_add_u32 {vXa}, {vBp}, 8, {vXa}")
    a.barrier()
    red_sum4(80, 84, REDA, 1024)
    a("v_cvt_pk_bf16_f32 v80, v80, v80")
    a.lds(f"ds_write_b16 {vC}, v80 offset:{XS3}", "xs3w")
    a.barrier()
    a.lds(f"ds_read_b128 v[88:91], {vXa} offset:{XS3}", "xf")
    a.wait_lg()
    gemv8([f"a[{32+4*tt}:{35+4*tt}]" for tt in range(8)], 88, ACC, None)
    red_write(ACC, vRedW, REDB)
    a(f"""
    v_mov_b32 v81, {vTag}
    v_mov_b32 v92, 0
    v_mov_b32 v93, {vTag}
    v_mov_b32 v94, 0x3e800000
    v_mov_b32 v95, {vTag}
    v_lshrrev_b32 {vA}, 7, {vTau}
    v_lshlrev_b32 {vA}, 6, {vA}
    s_lshl_b32 {sT0}, {sH}, 7
    s_and_b32 {sT1}, {sL3}, 3
    s_lshl_b32 {sT1}, {sT1}, 4
    s_add_u32 {sT0}, {sT0}, {sT1}
    s_add_u32 {sT0}, {sT0}, {UML + 0x1000}
    s_add_u32 {sT1}, {sT0}, {FOFF}
    v_and_b32 {vB_}, 127, {vTau}
    v_cmp_eq_u32 vcc, 0, {vB_}
    s_and_saveexec_b64 {EX}, vcc
    s_cbranch_execz L_b_noml2
    buffer_store_dwordx4 v[92:95], {vA}, {WS}, {sT1} offen
    buffer_store_dwordx4 v[92:95], {vA}, {WS}, {sT0} offen sc1
    L_b_noml2:
    s_mov_b64 exec, {EX}
    """)
    a.barrier()
    red_sum4(80, 84, REDB, 1024)
    a(f"s_add_u32 {sT0}, {sUO}, {FOFF}")
    if cfg.fast: a(f"buffer_store_dwordx2 v[80:81], {vTau8}, {WS}, {sT0} offen")
    a(f"buffer_store_dwordx2 v[80:81], {vTau8}, {WS}, {sUO} offen sc1")
    stamp(10)
    a(f"s_add_u32 {sR}, {sH}, 32")

    a.label("L_stage4")
    a.vm = []; a.lg = []; a.smem = cfg.stamps
    a(f"""
    s_and_b32 {sT0}, {sL3}, 3
    s_cmp_eq_u32 {sT0}, 3
    s_cbranch_scc1 L_final
    s_lshl_b32 {sUO}, {sBr}, 18
    s_lshl_b32 {sT0}, {sH}, 13
    s_add_u32 {sUO}, {sUO}, {sT0}
    s_add_u32 {sUO}, {sUO}, {UO}
    s_lshl_b32 {sUML}, {sBr}, 12
    s_lshl_b32 {sT0}, {sH}, 7
    s_add_u32 {sUML}, {sUML}, {sT0}
    s_add_u32 {sUML}, {sUML}, {UML}
    s_add_u32 {sUO}, {sUO}, {sFast}
    s_add_u32 {sUML}, {sUML}, {sFast}
    v_lshrrev_b32 v207, 7, {vTau}
    v_lshlrev_b32 v207, 6, v207
    """)
    def u_issue():
        a(f"s_add_u32 {sT3}, {sUO}, 4096")
        a.vmem(f"buffer_load_dwordx2 v[80:81], {vTau8}, {WS}, {sUO} offen sc1", "u")
        a.vmem(f"buffer_load_dwordx2 v[82:83], {vTau8}, {WS}, {sUO} offen offset:2048 sc1", "u")
        a.vmem(f"buffer_load_dwordx2 v[84:85], {vTau8}, {WS}, {sT3} offen sc1", "u")
        a.vmem(f"buffer_load_dwordx2 v[86:87], {vTau8}, {WS}, {sT3} offen offset:2048 sc1", "u")
        for s in range(4):
            a.vmem(f"buffer_load_dwordx4 v[{88+4*s}:{91+4*s}], v207, {WS}, {sUML} offen offset:{16*s} sc1", "u")
    u_issue()
    a(f"""
    v_lshlrev_b32 v110, 1, {vTau}
    v_add_u32 v110, {X}, v110
    s_lshl_b32 {sT0}, {sWv}, 6
    s_add_u32 {sT0}, {sT0}, {X}
    v_lshlrev_b32 v111, 4, {vKg}
    v_lshl_add_u32 v111, {vBp}, 8, v111
    v_add_u32 v111, {sT0}, v111
    v_lshlrev_b32 v112, 10, {vBp}
    v_lshl_add_u32 v112, {vKg}, 7, v112
    v_and_b32 {vA}, 7, {vLane}
    v_lshl_add_u32 v112, {vA}, 2, v112
    s_lshl_b32 {sT0}, {sWv}, 11
    s_add_u32 {sT0}, {sT0}, {X}
    v_add_u32 v112, {sT0}, v112
    v_lshrrev_b32 v113, 7, {vTau}
    v_and_b32 v114, 127, {vTau}
    v_lshlrev_b32 v115, 10, v113
    v_lshl_add_u32 v115, v114, 3, v115
    v_add_u32 v115, {X}, v115
    v_mul_u32_u24 v116, 4608, v113
    v_lshl_add_u32 v116, v114, 4, v116
    s_lshl_b32 {sT0}, {sBr}, 5
    s_add_u32 {sT0}, {sT0}, {sH}
    s_mul_i32 {sT0}, {sT0}, 9216
    s_and_b32 {sT1}, {sL3}, 3
    s_mul_i32 {sT1}, {sT1}, 1536
    s_add_u32 {sT0}, {sT0}, {sT1}
    s_add_u32 {sQb}, {sT0}, {OP}
    """)
    poll(u_issue, [81, 83, 85, 87] + [88+4*s+j for s in range(4) for j in (1, 3)], "u", 4)
    stamp(13)
    a("v_max3_f32 v104, v88, v92, v96")
    a("v_max_f32 v104, v104, v100")
    for s in range(4): a(f"v_sub_f32 v{88+4*s}, v{88+4*s}, v104")
    for s in range(4): a(f"v_exp_f32 v{88+4*s}, v{88+4*s}")
    a("v_mul_f32 v105, v88, v80")
    a("v_mul_f32 v106, v88, v90")
    for s in range(1, 4):
        a(f"v_fmac_f32 v105, v{88+4*s}, v{80+2*s}")
        a(f"v_fmac_f32 v106, v{88+4*s}, v{90+4*s}")
    a("v_rcp_f32 v106, v106")
    a("v_mul_f32 v105, v105, v106")
    a("v_cvt_pk_bf16_f32 v105, v105, v105")
    a.lds(f"ds_write_b16 v110, v105 offset:{XS}", "xsw")
    a.barrier()
    a.lds(f"ds_read_b128 v[88:91], v111 offset:{XS}", "xf")
    a.wait_lg()
    A0, AA, AB = 68, 92, 96
    build_frag(FR0, "v88", 0)
    for tt in range(8):
        cur = FR0 if tt % 2 == 0 else FR1
        nxt = FR1 if tt % 2 == 0 else FR0
        if tt < 7: build_frag(nxt, f"v{88 + (tt+1)//2}", (tt+1) % 2)
        c = "0" if tt == 0 else R(A0, 4)
        a(f"v_mfma_f32_16x16x32_bf16 {R(A0,4)}, a[{128+4*tt}:{131+4*tt}], {R(cur,4)}, {c}")
        acc = AA if tt % 2 == 0 else AB
        c = "0" if tt < 2 else R(acc, 4)
        a(f"v_mfma_f32_16x16x32_bf16 {R(acc,4)}, a[{160+4*(tt//2)}:{163+4*(tt//2)}], {R(cur,4)}, {c}")
    a(f"v_cmp_gt_u32 vcc, 32, {vLane}")
    red_write(A0, "v112", RED4)
    for r in range(4):
        a(f"v_cndmask_b32 v{AA+r}, v{AB+r}, v{AA+r}, vcc")
    red_write(AA, "v112", RED4 + 512)
    a.barrier()
    for w in range(4):
        a.lds(f"ds_read_b64 v[{80+2*w}:{81+2*w}], v115 offset:{RED4 + 2048*w}", "r4")
        a.lds(f"ds_read_b64 v[{88+2*w}:{89+2*w}], v115 offset:{RED4 + 2048*w + 256}", "r4")
    a(f"v_cmp_le_u32 vcc, 64, v114")
    a(f"v_mov_b32 v101, {vTag}")
    a(f"v_mov_b32 v103, {vTag}")
    a.wait_lg()
    for k in range(2):
        a(f"v_add_f32 v{80+k}, v{80+k}, v{82+k}")
        a(f"v_add_f32 v{84+k}, v{84+k}, v{86+k}")
        a(f"v_add_f32 v{88+k}, v{88+k}, v{90+k}")
        a(f"v_add_f32 v{92+k}, v{92+k}, v{94+k}")
        a(f"v_add_f32 v{80+k}, v{80+k}, v{84+k}")
        a(f"v_add_f32 v{88+k}, v{88+k}, v{92+k}")
        a(f"v_cndmask_b32 v{88+k}, 0, v{88+k}, vcc")
        a(f"v_add_f32 v{100+2*k}, v{80+k}, v{88+k}")
    a(f"""
    v_cmp_gt_u32 vcc, 96, v114
    s_and_saveexec_b64 {EX}, vcc
    buffer_store_dwordx4 v[100:103], v116, {WS}, {sQb} offen sc1
    s_mov_b64 exec, {EX}
    """)
    stamp(11)
    a("s_branch L_done")

    a.label("L_final")
    a.vm = []; a.lg = []
    a(f"""
    s_cmp_ge_u32 {sR}, 36
    s_cbranch_scc1 L_done
    s_cmp_ge_u32 {sR}, 18
    s_cselect_b32 {sT0}, 1, 0
    s_cselect_b32 {sT1}, 18, 0
    s_sub_u32 {sT1}, {sR}, {sT1}
    s_mul_i32 {sT2}, {sT0}, 4608
    s_lshl_b32 {sT3}, {sT1}, 8
    s_add_u32 {sT2}, {sT2}, {sT3}
    s_mul_i32 {sT3}, {sWv}, {16*9216}
    s_add_u32 {sQb}, {sT2}, {sT3}
    s_add_u32 {sQb}, {sQb}, {OP}
    v_mul_u32_u24 v204, 9216, {vKg}
    v_lshl_add_u32 v204, {vI}, 4, v204
    s_mul_i32 {sUO}, {sT0}, 2304
    s_lshl_b32 {sT1}, {sT1}, 6
    s_add_u32 {sUO}, {sUO}, {sT1}
    """)
    def f_issue():
        for n in range(4):
            a(f"s_add_u32 {sT3}, {sQb}, {n*4*9216}")
            a.vmem(f"buffer_load_dwordx4 v[{80+4*n}:{83+4*n}], v204, {WS}, {sT3} offen sc1", "f")
    f_issue()
    a(f"""
    s_lshl_b32 {sT0}, {sWv}, 7
    s_add_u32 {sT0}, {sT0}, {X}
    v_lshlrev_b32 v110, 3, {vI}
    v_add_u32 v110, {sT0}, v110
    v_lshlrev_b32 v111, 8, {vKg}
    v_lshl_add_u32 v111, {vI}, 3, v111
    v_add_u32 v111, {X}, v111
    v_mul_u32_u24 v112, 1152, {vKg}
    v_lshl_add_u32 v112, {vI}, 2, v112
    """)
    poll(f_issue, [80+4*n+j for n in range(4) for j in (1, 3)], "f", 5)
    stamp(13)
    a("v_add_f32 v80, v80, v84")
    a("v_add_f32 v88, v88, v92")
    a("v_add_f32 v82, v82, v86")
    a("v_add_f32 v90, v90, v94")
    a("v_add_f32 v80, v80, v88")
    a("v_add_f32 v81, v82, v90")
    xlane_reduce("v80", "v_add_f32", vA)
    xlane_reduce("v81", "v_add_f32", vB_)
    a(f"""
    v_cmp_gt_u32 vcc, 16, {vLane}
    s_and_saveexec_b64 {EX}, vcc
    """)
    a.lds(f"ds_write_b64 v110, v[80:81] offset:{RF}", "rfw")
    a(f"s_mov_b64 exec, {EX}")
    a.barrier()
    a(f"""
    v_cmp_gt_u32 vcc, 32, {vTau}
    s_and_saveexec_b64 {EX}, vcc
    s_cbranch_execz L_f_skip
    ds_read_b64 v[80:81], v111 offset:{RF}
    ds_read_b64 v[82:83], v111 offset:{RF + 128}
    s_waitcnt lgkmcnt(0)
    v_add_f32 v80, v80, v82
    v_add_f32 v81, v81, v83
    v_cvt_pk_bf16_f32 v80, v80, v81
    buffer_store_dword v80, v112, {OUT}, {sUO} offen
    s_cmp_lg_u32 {sR}, 0
    s_cbranch_scc1 L_f_skip
    v_mov_b32 {vA}, 0
    v_cmp_eq_u32 vcc, 0, {vTau}
    s_and_b64 exec, exec, vcc
    buffer_store_dword {vTag}, {vA}, {WS}, 0 offen sc1
    L_f_skip:
    s_mov_b64 exec, {EX}
    """)
    stamp(11)
    a.label("L_done")
    if cfg.stamps:
        a(f"""
        s_waitcnt lgkmcnt(0)
        s_lshl_b32 {sT0}, {sW}, 2
        s_add_u32 {sT0}, {sT0}, {sWv}
        s_lshl_b32 {sT0}, {sT0}, 7
        s_add_u32 {sT0}, {sT0}, {STAMP}
        v_mov_b32 {vA}, 0
        v_cmp_eq_u32 vcc, 0, {vLane}
        s_and_saveexec_b64 {EX}, vcc
        """)
        for k in range(NST):
            a(f"v_mov_b32 v80, s{66+2*k}")
            a(f"v_mov_b32 v81, s{67+2*k}")
            a(f"buffer_store_dwordx2 v[80:81], {vA}, {WS}, {sT0} offen offset:{8*k}")
            a("s_nop 1")
        a(f"s_mov_b64 exec, {EX}")
    a.label("L_end")
    a("s_endpgm")
    return a

HEADER = open("cdna_kernels/" + KN + ".s.ref").read().split("; Override launch")[0]
def build(cfg):
    a = gen(cfg)
    body = a.text()
    name = KN + "_kernel"
    s = HEADER
    s += "; Override launch geometry by editing the next line.\n"
    s += "; @launch grid=(256,1,1) block=(256,1,1) lds=163840\n"
    s += '.amdgcn_target "amdgcn-amd-amdhsa--gfx950"\n.text\n'
    s += f".globl {name}\n.p2align 8\n.type {name},@function\n{name}:\n"
    s += body
    s += f"""
.section .rodata,"a"
.p2align 6
.amdhsa_kernel {name}
  .amdhsa_next_free_vgpr 512
  .amdhsa_next_free_sgpr 102
  .amdhsa_accum_offset 256
  .amdhsa_group_segment_fixed_size 0
  .amdhsa_kernarg_size 112
  .amdhsa_user_sgpr_count 2
  .amdhsa_user_sgpr_kernarg_segment_ptr 1
  .amdhsa_system_sgpr_workgroup_id_x 1
.end_amdhsa_kernel
"""
    return s

if __name__ == "__main__":
    ap = argparse.ArgumentParser()
    ap.add_argument("-o", default="cdna_kernels/" + KN + ".s")
    ap.add_argument("--set", nargs="*", default=[])
    args = ap.parse_args()
    cfg = Cfg()
    for kv in args.set:
        k, v = kv.split("=")
        assert hasattr(cfg, k), k
        setattr(cfg, k, type(getattr(cfg, k))(int(v)))
    open(args.o, "w").write(build(cfg))
```

```python
import sys, argparse, struct
from asmcore import Asm
KN = "concat_heads__sliding_block_cached__compressed_kv_cla__decode"

QP   = 0x1000
QA   = 0x90000
UO   = 0xC0000
UML  = 0x140000
PBML = 0x150000
HELLO = 0x178000
FOFF = 0x1000000
QAF  = 0x170000
OP   = 0x180000
PB   = 0x400000
STAMP = 0x8000000
X = 131072
RED1, QB, RED2, MLS = 0, 4096, 8192, 12288
XS, RED4, RF = 16384, 20480, 28672
XS2, REDA, XS3, REDB = 0, 4096, 8192, 12288
MX, LS, PF = 0, 512, 1024
C1 = (128 ** -0.5) * 1.4426950408889634
def f2u(x): return struct.unpack("<I", struct.pack("<f", x))[0]

class Cfg:
    nt = True
    wnt = True
    stamps = False
    rot = True
    spin = 200000
    s_kp = 1
    s_dk = 12
    s_nv1 = 8
    s_nv2 = 8
    s_nv3 = 8
    b_g1 = 1
    b_d = 12
    b_gw = 4
    b_gw2 = 2
    qaf = True
    ukearly = True
    fast = True
    b_d0 = 4
    b_gr = 2
    b_wpre = True
    dbgt = False

def gen(cfg):
    a = Asm()
    NT = " nt" if cfg.nt else ""
    WNT = " nt" if cfg.wnt else ""
    sN, sPend, sW, sWv = "s0", "s1", "s2", "s3"
    WS, XR, W1, KV, VV, WO, OUT = "s[4:7]", "s[8:11]", "s[12:15]", "s[16:19]", "s[20:23]", "s[24:27]", "s[28:31]"
    EX = "s[32:33]"
    sT0, sT1, sT2, sT3 = "s42", "s43", "s44", "s45"
    sTag, sKB, sSpin, sH, sQb, sUO, sUML, sR, sBr, sW1, sX1, sRot, sC1 = [f"s{k}" for k in range(46, 59)]
    sEp = "s64"; sL1 = "s59"; sLA = "s62"; sL3 = "s63"; sFast = "s65"
    NST = 16
    def stamp(k):
        if cfg.stamps:
            a(f"s_memrealtime s[{66+2*k}:{67+2*k}]"); a.smem = True
    vTau, vLane, vI, vKg = "v0", "v1", "v2", "v3"
    SEL = [[f"v{4+hs*4+r}" for r in range(4)] for hs in range(2)]
    vTag, vBp, vRedW, vTau4, vTau8 = "v12", "v13", "v14", "v15", "v16"
    vA, vB_, vC = "v17", "v18", "v19"
    vXo, vWo, vL16 = "v20", "v21", "v31"
    VX = 22
    VW = 32
    ACC = 68; FR0 = 72; FR1 = 76
    VQ = 86; VQF = 96

    def R(base, n, k="v"): return f"{k}[{base}:{base+n-1}]"
    def build_frag(dst, src, hs):
        for r in range(4):
            a(f"v_perm_b32 v{dst+r}, {src}, {src}, {SEL[hs][r]}")
    def red_write(acc, vaddr, off):
        for r in range(4):
            a.lds(f"ds_write_b32 {vaddr}, v{acc+r} offset:{off + r*32}", "redw")
    def red_sum4(dst, tmp, off, stride):
        for w in range(4):
            a.lds(f"ds_read_b32 v{tmp+w}, {vTau4} offset:{off + w*stride}", "redr")
        a.wait_lg()
        a(f"v_add_f32 v{tmp}, v{tmp}, v{tmp+1}")
        a(f"v_add_f32 v{tmp+2}, v{tmp+2}, v{tmp+3}")
        a(f"v_add_f32 v{dst}, v{tmp}, v{tmp+2}")
    def tagcheck(tagregs, Lok):
        a(f"s_mov_b64 {EX}, exec")
        for t in tagregs:
            a(f"v_cmpx_eq_u32 vcc, {vTag}, v{t}")
        a("s_nop 3")
        a(f"s_cmp_eq_u64 exec, {EX}")
        a(f"s_mov_b64 exec, {EX}")
        a(f"s_cbranch_scc1 {Lok}")
    def timeout_mark(dbgcode):
        a(f"""s_mov_b32 s32, s60
        s_mov_b32 s33, s61
        s_mov_b32 s34, 256
        s_mov_b32 s35, 0x20000
        v_mov_b32 {vA}, {4*dbgcode}
        v_mov_b32 {vB_}, 1
        buffer_store_dword {vB_}, {vA}, s[32:35], 0 offen
        s_waitcnt vmcnt(0)""")
    def poll(issue, tagregs, waitname, dbgcode):
        Lchk = a.newlabel("L_chk"); Lok = a.newlabel("L_ok"); Lto = a.newlabel("L_to")
        a.wait_vm(waitname)
        saved_vm = list(a.vm)
        a(f"s_mov_b32 {sSpin}, {cfg.spin}")
        a.label(Lchk)
        tagcheck(tagregs, Lok)
        a(f"s_sub_u32 {sSpin}, {sSpin}, 1")
        a(f"s_cmp_eq_u32 {sSpin}, 0")
        a(f"s_cbranch_scc1 {Lto}")
        a.vm = []
        issue()
        a("s_waitcnt vmcnt(0)")
        a(f"s_branch {Lchk}")
        a.label(Lto)
        timeout_mark(dbgcode)
        a.label(Lok)
        a.vm = saved_vm
    def xlane_reduce(v, op, tmp):
        a(f"v_mov_b32 {tmp}, {v}")
        a(f"v_permlane16_swap_b32 {v}, {tmp}")
        a(f"{op} {v}, {v}, {tmp}")
        a(f"v_mov_b32 {tmp}, {v}")
        a(f"v_permlane32_swap_b32 {v}, {tmp}")
        a(f"{op} {v}, {v}, {tmp}")
    def wave_reduce(v, op, tmp):
        for d in ("quad_perm:[1,0,3,2]", "quad_perm:[2,3,0,1]", "row_half_mirror", "row_mirror"):
            a(f"{op}_dpp {v}, {v}, {v} {d} row_mask:0xf bank_mask:0xf")
        xlane_reduce(v, op, tmp)
    def x_loads():
        for tt in range(9):
            a.vmem(f"buffer_load_ushort v{VX+tt}, {vXo}, {XR}, {sX1} offen offset:{2*tt}", "x")
    def w1_loads():
        for tt in range(9):
            a(f"s_add_u32 {sT2}, {sW1}, {tt*8192}")
            a.vmem(f"buffer_load_dwordx4 {R(VW+4*tt,4)}, {vWo}, {W1}, {sT2} offen{WNT}", f"w1_{tt}")
    def hello_issue():
        a(f"s_and_b32 {sT2}, {sW}, 7")
        a(f"s_lshl_b32 {sT2}, {sT2}, 7")
        a(f"s_lshr_b32 {sT3}, {sW}, 7")
        a(f"s_lshl_b32 {sT3}, {sT3}, 6")
        a(f"s_add_u32 {sT2}, {sT2}, {sT3}")
        a(f"s_add_u32 {sT2}, {sT2}, {HELLO}")
        a(f"v_lshlrev_b32 v82, 2, {vI}")
        a.vmem(f"buffer_load_dword v83, v82, {WS}, {sT2} offen sc1", "hello")
    def hello_finish():
        a.try_wait_vm("hello")
        a(f"v_cmp_ne_u32 vcc, {vTag}, v83")
        a(f"s_mov_b32 {sFast}, {FOFF if cfg.fast else 0}")
        a("s_nop 0")
        a(f"s_cmp_eq_u64 vcc, 0")
        a(f"s_cselect_b32 {sFast}, {sFast}, 0")
    def p1a_compute(qoff, dual):
        a.wait_vm("x")
        build_frag(FR0, f"v{VX}", 0)
        for tt in range(9):
            cur = FR0 if tt % 2 == 0 else FR1
            nxt = FR1 if tt % 2 == 0 else FR0
            if tt < 8: build_frag(nxt, f"v{VX+tt+1}", 0)
            a.wait_vm(f"w1_{tt}")
            c = "0" if tt == 0 else R(ACC, 4)
            a(f"v_mfma_f32_16x16x32_bf16 {R(ACC,4)}, {R(VW+4*tt,4)}, {R(cur,4)}, {c}")
        red_write(ACC, vRedW, RED1)
        a(f"v_mov_b32 v81, {vTag}")
        a(f"s_lshl_b32 {sT0}, {sL1}, 11")
        a(f"s_add_u32 {sT0}, {sT0}, {QP + qoff}")
        a(f"s_add_u32 {sT1}, {sT0}, {FOFF}")
        if dual: hello_issue()
        a.barrier()
        red_sum4(80, 72, RED1, 1024)
        if dual and cfg.fast: a.vmem(f"buffer_store_dwordx2 v[80:81], {vTau8}, {WS}, {sT1} offen", "qp_st")
        a.vmem(f"buffer_store_dwordx2 v[80:81], {vTau8}, {WS}, {sT0} offen sc1", "qp_st")
    def q_issue():
        a(f"s_add_u32 {sT3}, {sQb}, 4096")
        a.vmem(f"buffer_load_dwordx2 v[{VQ}:{VQ+1}], v85, {WS}, {sQb} offen sc1", "q")
        a.vmem(f"buffer_load_dwordx2 v[{VQ+2}:{VQ+3}], v85, {WS}, {sQb} offen offset:2048 sc1", "q")
        a.vmem(f"buffer_load_dwordx2 v[{VQ+4}:{VQ+5}], v85, {WS}, {sT3} offen sc1", "q")
        a.vmem(f"buffer_load_dwordx2 v[{VQ+6}:{VQ+7}], v85, {WS}, {sT3} offen offset:2048 sc1", "q")
    QTAGS = [VQ+1, VQ+3, VQ+5, VQ+7]
    def q_finish():
        a(f"v_add_f32 v{VQ}, v{VQ}, v{VQ+2}")
        a(f"v_add_f32 v{VQ+4}, v{VQ+4}, v{VQ+6}")
        a(f"v_lshlrev_b32 {vA}, 1, {vTau}")
        a(f"v_add_f32 v{VQ}, v{VQ}, v{VQ+4}")
        a(f"v_add_u32 {vA}, {X}, {vA}")
        a(f"v_cvt_pk_bf16_f32 v{VQ}, v{VQ}, v{VQ}")
        a.lds(f"ds_write_b16 {vA}, v{VQ} offset:{QB}", "qb")
        a(f"v_lshlrev_b32 {vA}, 8, {vBp}")
        a(f"v_lshl_add_u32 {vA}, {vKg}, 4, {vA}")
        a(f"v_add_u32 {vA}, {X}, {vA}")
        a.barrier()
        for t in range(4):
            a.lds(f"ds_read_b128 {R(VQF+4*t,4)}, {vA} offset:{QB + 64*t}", "qf")
    def wo_issue():
        Lskip = a.newlabel("L_nowo")
        a(f"""
        s_and_b32 {sT0}, {sL3}, 3
        s_cmp_eq_u32 {sT0}, 3
        s_cbranch_scc1 {Lskip}
        v_mul_u32_u24 v240, 9216, {vKg}
        v_lshl_add_u32 v241, {vI}, 4, v240
        v_lshrrev_b32 {vA}, 3, {vI}
        v_mul_u32_u24 {vA}, 1152, {vA}
        v_and_b32 {vB_}, 7, {vI}
        v_lshl_add_u32 {vA}, {vB_}, 4, {vA}
        v_add_u32 v242, v240, {vA}
        v_add_u32 v242, 256, v242
        s_lshr_b32 {sT1}, {sL3}, 2
        s_lshl_b32 {sT1}, {sT1}, 7
        s_lshl_b32 {sT2}, {sWv}, 5
        s_add_u32 {sT1}, {sT1}, {sT2}
        s_mul_i32 {sT1}, {sT1}, 1152
        s_mul_i32 {sT0}, {sT0}, 384
        s_add_u32 {sT1}, {sT1}, {sT0}
        s_add_u32 {sT2}, {sT1}, 4608
        """)
        for tt in range(8):
            a(f"buffer_load_dwordx4 a[{128+4*tt}:{131+4*tt}], v241, {WO}, {sT1 if tt < 4 else sT2} offen offset:{(tt % 4)*1152}{WNT}")
        for u in range(4):
            a(f"buffer_load_dwordx4 a[{160+4*u}:{163+4*u}], v242, {WO}, {sT1 if u < 2 else sT2} offen offset:{(u % 2)*2304}{WNT}")
        a.label(Lskip)
    def gemv8(src_regs, xf, acc, waitnames):
        build_frag(FR0, f"v{xf}", 0)
        for tt in range(8):
            cur = FR0 if tt % 2 == 0 else FR1
            nxt = FR1 if tt % 2 == 0 else FR0
            if tt < 7: build_frag(nxt, f"v{xf + (tt+1)//2}", (tt+1) % 2)
            if waitnames: a.try_wait_vm(waitnames[tt])
            c = "0" if tt == 0 else R(acc, 4)
            a(f"v_mfma_f32_16x16x32_bf16 {R(acc,4)}, {src_regs[tt]}, {R(cur,4)}, {c}")

    a(f"""
    s_cmp_ge_u32 s2, 256
    s_cbranch_scc1 L_end
    s_load_dwordx16 s[36:51], s[0:1], 0
    s_load_dwordx8 s[52:59], s[0:1], 64
    s_load_dwordx4 s[60:63], s[0:1], 96
    """)
    if cfg.stamps:
        for k in range(NST): a(f"s_mov_b64 s[{66+2*k}:{67+2*k}], 0")
    stamp(0)
    a(f"""
    v_and_b32 {vLane}, 63, {vTau}
    v_lshrrev_b32 {vA}, 6, {vTau}
    v_and_b32 {vI}, 15, {vTau}
    v_bfe_u32 {vKg}, {vTau}, 4, 2
    v_readfirstlane_b32 {sWv}, {vA}
    v_bfe_u32 {vBp}, {vTau}, 3, 1
    v_mul_u32_u24 {vXo}, 1152, {vBp}
    v_mul_u32_u24 {vA}, 18, {vKg}
    v_add_u32 {vXo}, {vXo}, {vA}
    v_mul_u32_u24 {vWo}, 73728, {vKg}
    v_lshlrev_b32 {vA}, 4, {vI}
    v_add_u32 {vWo}, {vWo}, {vA}
    v_lshlrev_b32 {vL16}, 4, {vLane}
    s_waitcnt lgkmcnt(0)
    s_load_dword {sEp}, s[62:63], 0
    s_cmp_ge_u32 {sW}, 128
    s_mov_b32 s4, s62
    s_mov_b32 s5, s63
    s_mov_b32 s6, 0x10000000
    s_mov_b32 s7, 0x20000
    s_cselect_b32 s8, s36, s46
    s_cselect_b32 s9, s37, s47
    s_mov_b32 s10, 2304
    s_mov_b32 s11, 0x20000
    s_cselect_b32 s12, s42, s50
    s_cselect_b32 s13, s43, s51
    s_mov_b32 s14, 4718592
    s_mov_b32 s15, 0x20000
    s_cselect_b32 s16, s48, s38
    s_cselect_b32 s17, s49, s39
    s_mov_b32 s18, 67108864
    s_cselect_b32 s18, 16777216, s18
    s_mov_b32 s19, 0x20000
    s_cselect_b32 s20, s54, s52
    s_cselect_b32 s21, s55, s53
    s_mov_b32 s22, 4194304
    s_mov_b32 s23, 0x20000
    s_cselect_b32 s24, s56, s44
    s_cselect_b32 s25, s57, s45
    s_mov_b32 s26, 4718592
    s_mov_b32 s27, 0x20000
    s_mov_b32 s28, s58
    s_mov_b32 s29, s59
    s_mov_b32 s30, 4608
    s_mov_b32 s31, 0x20000
    ; x = w&7, q = (w>>3)&3, e = (w>>5)&1, f = (w>>6)&1
    s_and_b32 {sT0}, {sW}, 7
    s_bfe_u32 {sT1}, {sW}, 0x20003
    s_bfe_u32 {sT2}, {sW}, 0x20005
    s_lshl_b32 {sT2}, {sT2}, 3
    s_add_u32 {sT2}, {sT2}, {sT0}          ; hX = x + 8*((w>>5)&3)
    s_lshl_b32 {sT2}, {sT2}, 2
    s_add_u32 {sT2}, {sT2}, {sT1}
    s_bfe_u32 {sT3}, {sW}, 0x10006
    s_lshl_b32 {sT3}, {sT3}, 3
    s_add_u32 {sT3}, {sT3}, {sT0}          ; hkv = x + 8f
    s_bfe_u32 {sT0}, {sW}, 0x10005         ; e
    s_lshl_b32 {sLA}, {sT0}, 6
    s_lshl_b32 {sL3}, {sT3}, 2
    s_add_u32 {sLA}, {sLA}, {sL3}
    s_add_u32 {sLA}, {sLA}, {sT1}
    s_lshl_b32 {sT3}, {sT3}, 1
    s_add_u32 {sT3}, {sT3}, {sT0}          ; 2hkv + e
    s_lshl_b32 {sT3}, {sT3}, 2
    s_add_u32 {sT3}, {sT3}, {sT1}
    s_cmp_ge_u32 {sW}, 128
    s_cselect_b32 {sL1}, {sT3}, {sT2}
    s_cselect_b32 {sL3}, {sT2}, {sT3}
    s_lshr_b32 {sH}, {sL1}, 2
    s_lshr_b32 {sBr}, {sW}, 7
    s_mov_b32 {sFast}, 0
    s_and_b32 {sT0}, {sL1}, 3
    s_mul_i32 {sT0}, {sT0}, 144
    s_mul_i32 {sT1}, {sWv}, 36
    s_add_u32 {sT0}, {sT0}, {sT1}
    s_lshl_b32 {sX1}, {sT0}, 1
    s_lshl_b32 {sW1}, {sT0}, 13
    s_lshl_b32 {sT1}, {sH}, 8
    s_add_u32 {sW1}, {sW1}, {sT1}
    """)
    a.smem = True
    def c_group(g):
        a(f"""
        s_add_u32 {sT1}, {sRot}, {4*g}
        s_and_b32 {sT1}, {sT1}, 31
        s_lshl_b32 {sT1}, {sT1}, 10
        s_add_u32 {sT1}, {sKB}, {sT1}
        s_lshl_b32 {sT2}, {sWv}, 15
        s_add_u32 m0, {sT2}, {g*4096}
        """)
        for q in range(4):
            f = (q << 2) | (g & 3)
            a(f"v_xor_b32 v{202+q}, {f << 4}, {vL16}")
        for q in range(4):
            a.vmem(f"buffer_load_dwordx4 v{202+q}, {KV}, {sT1} offen offset:{q*1024}{NT} lds", "c")
    a(f"s_cmp_ge_u32 {sW}, 128")
    a("s_cbranch_scc1 L_firstB")
    x_loads()
    w1_loads()
    vWuk = "v205"
    def uk_loads(track):
        a(f"""
        v_xor_b32 {vA}, {vI}, {vKg}
        v_lshlrev_b32 {vA}, 4, {vA}
        v_lshl_add_u32 v206, {vKg}, 13, {vA}
        v_xor_b32 v207, 64, v206
        v_xor_b32 v208, 128, v206
        v_xor_b32 v209, 192, v206
        s_and_b32 {sT0}, {sL1}, 3
        s_lshl_b32 {sT0}, {sT0}, 7
        s_lshl_b32 {sT1}, {sWv}, 5
        s_add_u32 {sT0}, {sT0}, {sT1}
        s_lshl_b32 {sT0}, {sT0}, 13
        s_lshl_b32 {sT1}, {sH}, 8
        s_add_u32 {sT0}, {sT0}, {sT1}
        s_lshl_b32 {sT1}, {sWv}, 15
        """)
        for n in range(8):
            a(f"s_add_u32 m0, {sT1}, {6*4096 + n*1024}")
            a(f"s_add_u32 {sT2}, {sT0}, {n*4*8192}")
            a.vmem(f"buffer_load_dwordx4 v{206 + n % 4}, {VV}, {sT2} offen{WNT} lds", "uk")
    vm_S = list(a.vm)
    a("s_branch L_firstdone")
    a.label("L_firstB")
    a.vm = []
    a(f"""
    s_sub_u32 {sKB}, {sW}, 128
    s_lshl_b32 {sKB}, {sKB}, 17
    s_lshl_b32 {sT0}, {sWv}, 15
    s_add_u32 {sKB}, {sKB}, {sT0}
    s_mul_i32 {sRot}, {sW}, {20 if cfg.rot else 0}
    s_mul_i32 {sT0}, {sWv}, {12 if cfg.rot else 0}
    s_add_u32 {sRot}, {sRot}, {sT0}
    """)
    for g in range(cfg.b_g1): c_group(g)
    vm_B = list(a.vm)
    a.label("L_firstdone")
    a(f"""
    v_and_b32 {vA}, 1, {vLane}
    v_cmp_eq_u32 vcc, 1, {vA}
    v_mov_b32 {vB_}, 0x0c0c0100
    v_mov_b32 {vC}, 0x01000c0c
    v_cndmask_b32 v68, {vB_}, {vC}, vcc
    v_mov_b32 {vB_}, 0x0c0c0302
    v_mov_b32 {vC}, 0x03020c0c
    v_cndmask_b32 v69, {vB_}, {vC}, vcc
    v_bfe_u32 {vA}, {vLane}, 1, 2
    v_mov_b32 {vB_}, 0x0c0c0c0c
    """)
    for r in range(4):
        a(f"v_cmp_eq_u32 vcc, {r}, {vA}")
        a(f"v_cndmask_b32 {SEL[0][r]}, {vB_}, v68, vcc")
        a(f"v_cndmask_b32 {SEL[1][r]}, {vB_}, v69, vcc")
    a(f"""
    v_lshlrev_b32 {vTau4}, 2, {vTau}
    v_add_u32 {vTau4}, {X}, {vTau4}
    v_lshlrev_b32 {vTau8}, 3, {vTau}
    v_lshlrev_b32 {vRedW}, 9, {vBp}
    v_lshl_add_u32 {vRedW}, {vKg}, 7, {vRedW}
    v_and_b32 {vA}, 7, {vLane}
    v_lshl_add_u32 {vRedW}, {vA}, 2, {vRedW}
    s_lshl_b32 {sT0}, {sWv}, 10
    s_add_u32 {sT0}, {sT0}, {X}
    v_add_u32 {vRedW}, {sT0}, {vRedW}
    v_lshlrev_b32 v85, 3, {vLane}
    s_mov_b32 {sC1}, {f2u(C1):#x}
    """)
    a.wait_lg()
    a(f"s_mul_i32 {sTag}, {sEp}, 0x9E3779B1")
    a(f"s_add_u32 {sTag}, {sTag}, 0x7F4A7C15")
    a(f"v_mov_b32 {vTag}, {sTag}")
    a(f"""
    s_and_b32 {sT0}, {sW}, 7
    s_lshl_b32 {sT0}, {sT0}, 7
    s_lshr_b32 {sT1}, {sW}, 3
    s_lshl_b32 {sT1}, {sT1}, 2
    s_add_u32 {sT0}, {sT0}, {sT1}
    s_add_u32 {sT0}, {sT0}, {HELLO}
    v_mov_b32 {vA}, 0
    v_cmp_eq_u32 vcc, 0, {vTau}
    s_and_saveexec_b64 {EX}, vcc
    s_cbranch_execz L_nohello
    buffer_store_dword {vTag}, {vA}, {WS}, {sT0} offen
    L_nohello:
    s_mov_b64 exec, {EX}
    """)
    a(f"s_cmp_ge_u32 {sW}, 128")
    a("s_cbranch_scc1 L_roleB")

    a.vm = list(vm_S)
    if cfg.ukearly:
        a("s_barrier")
        uk_loads(True)
    VKO = 200; VVO = 204
    a(f"""
    s_lshr_b32 {sT0}, {sLA}, 2
    s_lshl_b32 {sKB}, {sT0}, 21
    s_and_b32 {sT0}, {sLA}, 3
    s_lshl_b32 {sT0}, {sT0}, 17
    s_add_u32 {sKB}, {sKB}, {sT0}
    s_add_u32 {sKB}, {sKB}, {6144*256}
    s_lshl_b32 {sT0}, {sWv}, 15
    s_add_u32 {sKB}, {sKB}, {sT0}
    v_xor_b32 {vA}, {vI}, {vKg}
    v_lshlrev_b32 {vA}, 4, {vA}
    v_lshl_add_u32 v{VKO}, {vKg}, 8, {vA}
    v_xor_b32 v{VKO+1}, 64, v{VKO}
    v_xor_b32 v{VKO+2}, 128, v{VKO}
    v_xor_b32 v{VKO+3}, 192, v{VKO}
    v_lshlrev_b32 {vA}, 4, {vI}
    v_lshl_add_u32 v{VVO}, {vKg}, 10, {vA}
    s_mul_i32 {sRot}, {sW}, {5 if cfg.rot else 0}
    s_mul_i32 {sT0}, {sWv}, {3 if cfg.rot else 0}
    s_add_u32 {sRot}, {sRot}, {sT0}
    s_mov_b32 {sN}, 0
    s_add_u32 {sT0}, {sH}, 32
    s_lshl_b32 {sQb}, {sT0}, 13
    s_lshl_b32 {sT0}, {sWv}, 9
    s_add_u32 {sQb}, {sQb}, {sT0}
    s_add_u32 {sQb}, {sQb}, {QP}
    """)
    def k_tile():
        a(f"""
        s_add_u32 {sT0}, {sRot}, {sN}
        s_and_b32 {sT0}, {sT0}, 7
        s_lshl_b32 {sT0}, {sT0}, 12
        s_add_u32 {sT1}, {sKB}, {sT0}
        s_lshl_b32 {sT0}, {sWv}, 15
        s_lshl_b32 {sT2}, {sN}, 12
        s_add_u32 m0, {sT0}, {sT2}
        s_add_u32 {sN}, {sN}, 1
        """)
        for q in range(4):
            a(f"buffer_load_dwordx4 v{VKO+q}, {KV}, {sT1} offen offset:{q*1024}{NT} lds")
    VKA = 112
    for t in range(4):
        a(f"v_add_u32 {vA}, {4*t}, {vKg}")
        a(f"v_xor_b32 {vA}, {vA}, {vI}")
        a(f"v_lshlrev_b32 {vA}, 4, {vA}")
        a(f"v_lshl_add_u32 v{VKA+t}, {vI}, 8, {vA}")
    a(f"s_lshl_b32 {sT0}, {sWv}, 15")
    for t in range(4):
        a(f"v_add_u32 v{VKA+t}, {sT0}, v{VKA+t}")
    p1a_compute(128 * 2048, True)
    stamp(1)
    if not cfg.ukearly: uk_loads(True)
    hello_finish()
    a(f"s_add_u32 {sQb}, {sQb}, {sFast}")
    if cfg.stamps: a(f"s_mov_b32 s{66+2*14}, {sFast}"); a(f"s_mov_b32 s{67+2*14}, 0")
    a(f"s_mov_b32 {sSpin}, {cfg.spin}")
    Ltry = a.newlabel("L_try"); Lchk = a.newlabel("L_chk"); Lok = a.newlabel("L_ok")
    a.label(Ltry)
    q_issue()
    g = cfg.s_kp
    labs = [a.newlabel("L_pw") for _ in range(g)]
    for gi in range(g):
        a(f"s_cmp_ge_u32 {sN}, 6")
        a(f"s_cbranch_scc1 {labs[gi]}")
        k_tile()
    a(f"s_waitcnt vmcnt({4*g})")
    if g: a(f"s_branch {Lchk}")
    for gi in range(g):
        a.label(labs[gi])
        a(f"s_waitcnt vmcnt({4*gi})")
        if gi < g - 1: a(f"s_branch {Lchk}")
    a.label(Lchk)
    tagcheck(QTAGS, Lok)
    a(f"s_sub_u32 {sSpin}, {sSpin}, 1")
    a(f"s_cmp_eq_u32 {sSpin}, 0")
    a(f"s_cbranch_scc0 {Ltry}")
    timeout_mark(1)
    a.label(Lok)
    stamp(8)
    if cfg.stamps: a(f"s_sub_u32 s{66+2*15}, {cfg.spin}, {sSpin}"); a(f"s_mov_b32 s{67+2*15}, 0")
    a.vm = []
    for T2 in range(2):
        for t in range(4):
            a.lds(f"ds_read_b128 {R(116 + 4*(T2*4+t), 4)}, v{VKA+t} offset:{(6+T2)*4096}", "ukr")
    q_finish()
    DA = 68
    a(f"""
    v_lshlrev_b32 {vA}, 16, {vBp}
    v_lshl_add_u32 {vA}, {vKg}, 4, {vA}
    s_lshl_b32 {sT0}, {sH}, 11
    s_and_b32 {sT1}, {sL1}, 3
    s_lshl_b32 {sT1}, {sT1}, 9
    s_add_u32 {sT0}, {sT0}, {sT1}
    s_lshl_b32 {sT1}, {sWv}, 7
    s_add_u32 {sT0}, {sT0}, {sT1}
    s_add_u32 {sT0}, {sT0}, {QA}
    v_mov_b32 v81, {vTag}
    v_mov_b32 v83, {vTag}
    v_mov_b32 v89, {vTag}
    v_mov_b32 v91, {vTag}
    v_and_b32 {vB_}, 7, {vLane}
    v_cmp_eq_u32 vcc, 0, {vB_}
    """)
    a.wait_lg()
    for t in range(4):
        for T2 in range(2):
            n = T2 * 4 + t
            c = "0" if t == 0 else R(DA + 4*T2, 4)
            a(f"v_mfma_f32_16x16x32_bf16 {R(DA+4*T2,4)}, {R(116+4*n,4)}, {R(VQF+4*t,4)}, {c}")
    a(f"""
    v_cvt_pk_bf16_f32 v80, v{DA}, v{DA+1}
    v_cvt_pk_bf16_f32 v82, v{DA+2}, v{DA+3}
    v_cvt_pk_bf16_f32 v88, v{DA+4}, v{DA+5}
    v_cvt_pk_bf16_f32 v90, v{DA+6}, v{DA+7}
    s_and_saveexec_b64 {EX}, vcc
    buffer_store_dwordx4 v[80:83], {vA}, {WS}, {sT0} offen sc1
    buffer_store_dwordx4 v[88:91], {vA}, {WS}, {sT0} offen offset:64 sc1
    s_mov_b64 exec, {EX}
    s_lshl_b32 {sT0}, {sL1}, 2
    s_add_u32 {sT0}, {sT0}, {sWv}
    s_lshl_b32 {sT0}, {sT0}, 2
    s_add_u32 {sT0}, {sT0}, {QAF}
    v_mov_b32 {vA}, 0
    v_cmp_eq_u32 vcc, 0, {vLane}
    s_and_saveexec_b64 {EX}, vcc
    buffer_store_dword {vTag}, {vA}, {WS}, {sT0} offen sc1
    s_mov_b64 exec, {EX}
    s_mov_b32 s20, s40
    s_mov_b32 s21, s41
    s_mov_b32 s22, 67108864
    """)
    stamp(6)
    Ld = a.newlabel("L_kd"); Ldd = a.newlabel("L_kdd")
    a.label(Ld)
    a(f"s_cmp_ge_u32 {sN}, 8")
    a(f"s_cbranch_scc1 {Ldd}")
    a(f"s_waitcnt vmcnt({max(cfg.s_dk - 4, 0)})")
    k_tile()
    a(f"s_branch {Ld}")
    a.label(Ldd)
    stamp(7)
    a(f"""
    s_bfe_u32 {sT0}, {sLA}, 0x40002
    s_lshl_b32 {sT0}, {sT0}, 1
    s_lshr_b32 {sT1}, {sWv}, 1
    s_add_u32 {sT0}, {sT0}, {sT1}
    s_lshl_b32 {sQb}, {sT0}, 13
    s_lshr_b32 {sT0}, {sLA}, 6
    s_lshl_b32 {sT0}, {sT0}, 10
    s_add_u32 {sQb}, {sQb}, {sT0}
    s_and_b32 {sT0}, {sWv}, 1
    s_lshl_b32 {sT0}, {sT0}, 9
    s_add_u32 {sQb}, {sQb}, {sT0}
    s_add_u32 {sQb}, {sQb}, {QP}
    """)
    a.vm = []
    q_issue()
    vnext = [0]
    def v_load(n):
        T, r = n // 4, n % 4
        if r == 0 or vnext[1] != T:
            a(f"s_add_u32 {sUO}, {sRot}, {T}")
            a(f"s_and_b32 {sUO}, {sUO}, 7")
            a(f"s_lshl_b32 {sUO}, {sUO}, 12")
            a(f"s_add_u32 {sUO}, {sKB}, {sUO}")
            vnext[1] = T
        a.vmem(f"buffer_load_dwordx4 a[{4*n}:{4*n+3}], v{VVO}, {VV}, {sUO} offen offset:{r*256}{NT}", f"v{n}")
    vnext.append(-1)
    def v_more(k):
        for _ in range(k):
            if vnext[0] < 32:
                v_load(vnext[0]); vnext[0] += 1
    v_more(cfg.s_nv1)
    RING = 116; NR = 8; SC = 148; PK = 180
    poll(q_issue, QTAGS, "q", 0)
    q_finish()
    stamp(2)
    steps = [(T, t) for T in range(8) for t in range(4)]
    def kread(idx):
        T, t = steps[idx]
        a.lds(f"ds_read_b128 {R(RING + 4*(idx % NR), 4)}, v{VKA+t} offset:{T*4096}", f"kr{idx}")
    for idx in range(NR): kread(idx)
    for idx, (T, t) in enumerate(steps):
        a.wait_lg(f"kr{idx}")
        c = "0" if t == 0 else R(SC+4*T, 4)
        a(f"v_mfma_f32_16x16x32_bf16 {R(SC+4*T,4)}, {R(RING + 4*(idx % NR),4)}, {R(VQF+4*t,4)}, {c}")
        if idx + NR < len(steps): kread(idx + NR)
        if cfg.s_nv2 and idx % (32 // cfg.s_nv2) == 0: v_more(1)
    vM, vL = "v196", "v197"
    a(f"v_max3_f32 {vM}, v{SC}, v{SC+1}, v{SC+2}")
    for k in range(3, 31, 2):
        a(f"v_max3_f32 {vM}, {vM}, v{SC+k}, v{SC+k+1}")
    a(f"v_max_f32 {vM}, {vM}, v{SC+31}")
    xlane_reduce(vM, "v_max_f32", vA)
    a(f"v_mul_f32 {vM}, {sC1}, {vM}")
    for k in range(32):
        a(f"v_fma_f32 v{SC+k}, v{SC+k}, {sC1}, -{vM}")
    for k in range(32):
        a(f"v_exp_f32 v{SC+k}, v{SC+k}")
        if cfg.s_nv3 and k % (32 // cfg.s_nv3) == 0: v_more(1)
    a(f"v_add_f32 {vL}, v{SC}, v{SC+1}")
    for k in range(2, 32):
        a(f"v_add_f32 {vL}, {vL}, v{SC+k}")
    for k in range(16):
        a(f"v_cvt_pk_bf16_f32 v{PK+k}, v{SC+2*k}, v{SC+2*k+1}")
    xlane_reduce(vL, "v_add_f32", vA)
    v_more(32)
    stamp(3)
    OACC = 68
    build_frag(FR0, f"v{PK}", 0)
    for n in range(32):
        cur = FR0 if n % 2 == 0 else FR1
        nxt = FR1 if n % 2 == 0 else FR0
        if n < 31: build_frag(nxt, f"v{PK + (n+1)//2}", (n+1) % 2)
        a.try_wait_vm(f"v{n}")
        c = "0" if n == 0 else R(OACC, 4)
        a(f"v_mfma_f32_16x16x32_bf16 {R(OACC,4)}, a[{4*n}:{4*n+3}], {R(cur,4)}, {c}")
    stamp(4)
    a(f"""
    v_lshlrev_b32 {vA}, 3, {vBp}
    s_lshl_b32 {sT0}, {sWv}, 4
    s_add_u32 {sT0}, {sT0}, {X + MLS}
    v_add_u32 {vA}, {sT0}, {vA}
    v_and_b32 {vB_}, 0x37, {vLane}
    v_cmp_eq_u32 vcc, 0, {vB_}
    s_and_saveexec_b64 {EX}, vcc
    """)
    a.lds(f"ds_write_b64 {vA}, v[196:197]", "mlw")
    a(f"s_mov_b64 exec, {EX}")
    red_write(OACC, vRedW, RED2)
    a(f"""
    v_lshrrev_b32 v102, 7, {vTau}
    v_and_b32 v103, 127, {vTau}
    v_lshlrev_b32 {vC}, 13, v102
    v_lshl_add_u32 {vC}, v103, 3, {vC}
    v_lshlrev_b32 v104, 7, v102
    v_lshlrev_b32 {vA}, 3, v102
    v_add_u32 {vA}, {X + MLS}, {vA}
    s_bfe_u32 {sT0}, {sLA}, 0x40002
    s_lshl_b32 {sT1}, {sT0}, 14
    s_and_b32 {sT2}, {sLA}, 3
    s_lshl_b32 {sT3}, {sT2}, 11
    s_add_u32 {sT1}, {sT1}, {sT3}
    s_lshr_b32 {sT3}, {sLA}, 6
    s_lshl_b32 {sT3}, {sT3}, 10
    s_add_u32 {sT1}, {sT1}, {sT3}
    s_add_u32 {sUO}, {sT1}, {UO}
    s_lshl_b32 {sT1}, {sT0}, 8
    s_lshr_b32 {sT3}, {sLA}, 6
    s_lshl_b32 {sT3}, {sT3}, 6
    s_add_u32 {sT1}, {sT1}, {sT3}
    s_lshl_b32 {sT2}, {sT2}, 4
    s_add_u32 {sT1}, {sT1}, {sT2}
    s_add_u32 {sUML}, {sT1}, {UML}
    v_mov_b32 v95, {vTag}
    v_mov_b32 v99, {vTag}
    v_mov_b32 v101, {vTag}
    """)
    a.barrier()
    for w in range(4):
        a.lds(f"ds_read_b64 v[{80+2*w}:{81+2*w}], {vA} offset:{16*w}", "mlr")
    for w in range(4):
        a.lds(f"ds_read_b32 v{88+w}, {vTau4} offset:{RED2 + w*1024}", "redr")
    a.wait_lg()
    a("v_max3_f32 v98, v80, v82, v84")
    a("v_max_f32 v98, v98, v86")
    for w in range(4):
        a(f"v_sub_f32 v{80+2*w}, v{80+2*w}, v98")
    for w in range(4):
        a(f"v_exp_f32 v{80+2*w}, v{80+2*w}")
    a("v_mul_f32 v94, v80, v88")
    a("v_mul_f32 v100, v80, v81")
    for w in range(1, 4):
        a(f"v_fmac_f32 v94, v{80+2*w}, v{88+w}")
        a(f"v_fmac_f32 v100, v{80+2*w}, v{81+2*w}")
    a(f"s_add_u32 {sT0}, {sUO}, {FOFF}")
    a(f"s_add_u32 {sT1}, {sUML}, {FOFF}")
    if cfg.fast: a(f"buffer_store_dwordx2 v[94:95], {vC}, {WS}, {sT0} offen")
    a(f"""
    v_cmp_eq_u32 vcc, 0, v103
    s_and_saveexec_b64 {EX}, vcc
    s_cbranch_execz L_s_noml
    buffer_store_dwordx4 v[98:101], v104, {WS}, {sT1} offen
    buffer_store_dwordx4 v[98:101], v104, {WS}, {sUML} offen sc1
    L_s_noml:
    s_mov_b64 exec, {EX}
    buffer_store_dwordx2 v[94:95], {vC}, {WS}, {sUO} offen sc1
    s_mov_b64 exec, {EX}
    """)
    stamp(5)
    a(f"s_lshr_b32 {sH}, {sL3}, 2")
    a(f"s_lshr_b32 {sR}, {sL3}, 2")
    wo_issue()
    a("s_branch L_stage4")

    a.label("L_roleB")
    a.vm = list(vm_B); a.lg = []; a.smem = False
    def c_throttled(g):
        d = cfg.b_d0 if g < cfg.b_gr else cfg.b_d
        if len(a.vm) > d - 4:
            keep = max(d - 4, 0)
            a(f"s_waitcnt vmcnt({keep})"); a.vm = a.vm[len(a.vm) - keep:] if keep else []
        c_group(g)
    gi = cfg.b_g1
    while gi < cfg.b_gw:
        c_throttled(gi); gi += 1
    x_loads(); w1_loads()
    for _ in range(cfg.b_gw2):
        if gi < 8: c_group(gi); gi += 1
    p1a_compute(0, False)
    stamp(1)
    a(f"s_lshr_b32 {sH}, {sL3}, 2")
    hello_issue()
    while gi < 8:
        c_throttled(gi); gi += 1
    stamp(2)
    S1 = 64; RG = 80; AC = 112; AQ = 120; A2 = 244
    vHx = "v243"; vB0, vB1 = "v206", "v207"
    a(f"""
    v_and_b32 {vA}, 3, {vLane}
    v_lshlrev_b32 {vA}, 2, {vA}
    v_bfe_u32 {vB_}, {vLane}, 2, 2
    v_or_b32 {vA}, {vA}, {vB_}
    v_lshrrev_b32 {vB_}, 5, {vLane}
    v_xor_b32 {vA}, {vA}, {vB_}
    v_lshlrev_b32 {vA}, 4, {vA}
    v_and_b32 {vB_}, 31, {vLane}
    v_lshl_add_u32 {vA}, {vB_}, 10, {vA}
    s_lshl_b32 {sT0}, {sWv}, 15
    v_add_u32 v{AC}, {sT0}, {vA}
    v_add_u32 v{AQ}, {X}, {vA}
    v_lshlrev_b32 {vHx}, 2, {vB_}
    v_add_u32 {vHx}, {X}, {vHx}
    """)
    for u in range(1, 8):
        a(f"v_xor_b32 v{AC+u}, {u << 5}, v{AC}")
        a(f"v_xor_b32 v{AQ+u}, {u << 5}, v{AQ}")
    a(f"""
    v_bfe_u32 v64, {vLane}, 2, 2
    v_lshrrev_b32 v65, 5, {vLane}
    v_bfe_u32 v66, {vLane}, 4, 1
    v_bfe_u32 v67, {vLane}, 1, 1
    v_lshl_add_u32 v66, v66, 1, v67
    v_xor_b32 v66, v66, v65
    v_lshl_add_u32 v66, v64, 2, v66
    v_lshlrev_b32 v66, 4, v66
    v_and_b32 v67, 1, {vLane}
    v_lshl_add_u32 v66, v67, 3, v66
    v_lshl_add_u32 v67, v65, 2, v64
    v_lshl_add_u32 v66, v67, 10, v66
    s_lshl_b32 {sT0}, {sWv}, 8
    v_add_u32 v66, {sT0}, v66
    """)
    for ct in range(4):
        a(f"v_xor_b32 v{A2+2*ct}, {ct << 6}, v66")
        a(f"v_xor_b32 v{A2+2*ct+1}, 32, v{A2+2*ct}")
        a(f"v_add_u32 v{A2+2*ct+1}, 8192, v{A2+2*ct+1}")
    a(f"""
    v_lshrrev_b32 {vA}, 1, {vLane}
    v_lshlrev_b32 {vA}, 4, {vA}
    v_and_b32 {vB_}, 1, {vLane}
    v_lshl_add_u32 {vA}, {vB_}, 3, {vA}
    s_lshl_b32 {sT0}, {sWv}, 1
    s_and_b32 {sT0}, {sT0}, 3
    s_lshl_b32 {sT0}, {sT0}, 4
    s_add_u32 {sT1}, {sT0}, 16
    v_xor_b32 {vB0}, {sT0}, {vA}
    v_xor_b32 {vB1}, {sT1}, {vA}
    s_lshl_b32 {sT0}, {sWv}, 13
    s_add_u32 {sT0}, {sT0}, {X}
    v_add_u32 {vB0}, {sT0}, {vB0}
    v_add_u32 {vB1}, {sT0}, {vB1}
    s_bfe_u32 {sT0}, {sW}, 0x10006
    s_lshl_b32 {sQb}, {sT0}, 16
    s_lshl_b32 {sT0}, {sWv}, 14
    s_add_u32 {sQb}, {sQb}, {sT0}
    s_add_u32 {sQb}, {sQb}, {QA}
    s_mov_b32 {sSpin}, {cfg.spin}
    s_mov_b32 {sPend}, 0xffff
    """)
    hello_finish()
    a.barrier()
    VG = 128
    if cfg.qaf:
        a(f"s_lshl_b32 {sT0}, {sWv}, 9")
        a(f"s_add_u32 {sUO}, {sT0}, {QAF}")
        def qaf_issue():
            a.vmem(f"buffer_load_dwordx2 v[86:87], v85, {WS}, {sUO} offen sc1", "qaf")
        a.vm = []
        qaf_issue()
        poll(qaf_issue, [86, 87], "qaf", 6)
        stamp(3)
    Ltry = a.newlabel("L_try"); Lok = a.newlabel("L_ok")
    a.label(Ltry)
    for k in range(16):
        sk = a.newlabel("L_sk")
        a(f"s_bitcmp1_b32 {sPend}, {k}")
        a(f"s_cbranch_scc0 {sk}")
        a(f"s_add_u32 {sT3}, {sQb}, {k*1024}")
        a(f"buffer_load_dwordx4 {R(VG+4*k,4)}, {vL16}, {WS}, {sT3} offen sc1")
        a.label(sk)
    a("s_waitcnt vmcnt(0)")
    tagcheck([VG + 4*k + j for k in range(16) for j in (1, 3)], Lok)
    for k in range(16):
        sk = a.newlabel("L_sk")
        a(f"""s_mov_b64 {EX}, exec
        v_cmpx_eq_u32 vcc, {vTag}, v{VG+4*k+1}
        v_cmpx_eq_u32 vcc, {vTag}, v{VG+4*k+3}
        s_nop 3
        s_cmp_eq_u64 exec, {EX}
        s_mov_b64 exec, {EX}
        s_cbranch_scc0 {sk}
        s_bitset0_b32 {sPend}, {k}""")
        a.label(sk)
    a(f"s_sub_u32 {sSpin}, {sSpin}, 1")
    a(f"s_cmp_eq_u32 {sSpin}, 0")
    a(f"s_cbranch_scc0 {Ltry}")
    timeout_mark(2)
    a.label(Lok)
    a.vm = []
    stamp(4)
    def uv_issue():
        a(f"""
        v_lshlrev_b32 v208, 16, {vKg}
        v_lshl_add_u32 v208, {vI}, 4, v208
        s_and_b32 {sT0}, {sL3}, 3
        s_lshl_b32 {sT0}, {sT0}, 7
        s_lshl_b32 {sT2}, {sWv}, 5
        s_add_u32 {sT0}, {sT0}, {sT2}
        s_lshl_b32 {sT0}, {sT0}, 13
        s_lshl_b32 {sT2}, {sH}, 8
        s_add_u32 {sT0}, {sT0}, {sT2}
        """)
        for tt in range(8):
            a(f"buffer_load_dwordx4 a[{32+4*tt}:{35+4*tt}], v208, {VV}, {sT0} offen{WNT}")
            if tt < 7: a(f"s_add_u32 {sT0}, {sT0}, 8192")
    for k in range(16):
        u, half = k >> 1, k & 1
        if half == 0:
            a(f"v_xor_b32 v204, {(u & 3) << 6}, {vB0 if u < 4 else vB1}")
        a(f"v_mov_b32 v{VG+4*k+1}, v{VG+4*k+2}")
        a.lds(f"ds_write_b64 v204, v[{VG+4*k}:{VG+4*k+1}] offset:{u*1024 + half*512}", "qw")
    a.barrier()
    D1 = 4
    def g1read(t):
        s = RG + 8 * (t % D1)
        a.lds(f"ds_read_b128 {R(s,4)}, v{AC + (t & 7)} offset:{(t >> 3)*256}", f"g1c{t}")
        a.lds(f"ds_read_b128 {R(s+4,4)}, v{AQ + (t & 7)} offset:{(t >> 3)*256}", f"g1q{t}")
    for t in range(D1): g1read(t)
    if cfg.b_wpre:
        uv_issue(); wo_issue()
    for t in range(32):
        a.wait_lg(f"g1q{t}")
        s = RG + 8 * (t % D1)
        c = "0" if t == 0 else R(S1, 16)
        a(f"v_mfma_f32_32x32x16_bf16 {R(S1,16)}, {R(s,4)}, {R(s+4,4)}, {c}")
        if t + D1 < 32: g1read(t + D1)
    stamp(5)
    vM, vL = "v196", "v197"
    a(f"s_lshl_b32 {sT0}, {sWv}, 7")
    a(f"v_add_u32 v205, {sT0}, {vHx}")
    a(f"v_max3_f32 {vM}, v{S1}, v{S1+1}, v{S1+2}")
    for k in range(3, 15, 2):
        a(f"v_max3_f32 {vM}, {vM}, v{S1+k}, v{S1+k+1}")
    a(f"v_max_f32 {vM}, {vM}, v{S1+15}")
    a(f"v_mov_b32 {vA}, {vM}")
    a(f"v_permlane32_swap_b32 {vM}, {vA}")
    a(f"v_max_f32 {vM}, {vM}, {vA}")
    a.barrier()
    a.lds(f"ds_write_b32 v205, {vM} offset:{MX}", "mxw")
    a.barrier()
    for w in range(4):
        a.lds(f"ds_read_b32 v{80+w}, {vHx} offset:{MX + 128*w}", "mxr")
    a(f"s_lshl_b32 {sT0}, {sWv}, 11")
    a(f"s_add_u32 {sT0}, {sT0}, {X}")
    a(f"v_add_u32 v204, {sT0}, {vL16}")
    a.wait_lg()
    a(f"v_max3_f32 {vM}, v80, v81, v82")
    a(f"v_max_f32 {vM}, {vM}, v83")
    a(f"v_mul_f32 {vM}, {sC1}, {vM}")
    for k in range(16):
        a(f"v_fma_f32 v{S1+k}, v{S1+k}, {sC1}, -{vM}")
    for k in range(16):
        a(f"v_exp_f32 v{S1+k}, v{S1+k}")
    for k in range(4):
        a(f"v_cvt_pk_bf16_f32 v{80+k}, v{S1+2*k}, v{S1+2*k+1}")
    a.lds(f"ds_write_b128 v204, v[80:83] offset:{PF}", "pfw")
    for k in range(4, 8):
        a(f"v_cvt_pk_bf16_f32 v{80+k}, v{S1+2*k}, v{S1+2*k+1}")
    a.lds(f"ds_write_b128 v204, v[84:87] offset:{PF + 1024}", "pfw")
    a(f"v_add_f32 {vL}, v{S1}, v{S1+1}")
    for k in range(2, 16):
        a(f"v_add_f32 {vL}, {vL}, v{S1+k}")
    a(f"v_mov_b32 {vB_}, {vL}")
    a(f"v_permlane32_swap_b32 {vL}, {vB_}")
    a(f"v_add_f32 {vL}, {vL}, {vB_}")
    a.lds(f"ds_write_b32 v205, {vL} offset:{LS}", "lsw")
    a(f"v_add_u32 v204, {X}, {vL16}")
    a.barrier()
    PFR = 208
    for kt in range(8):
        a.lds(f"ds_read_b128 {R(PFR+4*kt,4)}, v204 offset:{PF + 1024*kt}", "pfr")
    for w in range(4):
        a.lds(f"ds_read_b32 v{80+w}, {vHx} offset:{LS + 128*w}", "lsr")
    a.wait_lg()
    a(f"v_add_f32 v80, v80, v81")
    a(f"v_add_f32 v82, v82, v83")
    a(f"v_add_f32 {vL}, v80, v82")
    a.barrier()
    stamp(12)
    OA = 128; RG2 = 80; D2 = 6
    st2 = [(kt, ct) for kt in range(8) for ct in range(4)]
    def g2read(idx):
        kt, ct = st2[idx]
        if kt == 4 and ct == 0:
            for q in range(8): a(f"v_add_u32 v{A2+q}, 65536, v{A2+q}")
        s = RG2 + 4 * (idx % D2)
        off = (kt & 3) * 16384
        a.lds(f"ds_read_b64_tr_b16 v[{s}:{s+1}], v{A2+2*ct} offset:{off}", f"g2a{idx}")
        a.lds(f"ds_read_b64_tr_b16 v[{s+2}:{s+3}], v{A2+2*ct+1} offset:{off}", f"g2b{idx}")
    for idx in range(D2): g2read(idx)
    for idx, (kt, ct) in enumerate(st2):
        a.wait_lg(f"g2b{idx}")
        s = RG2 + 4 * (idx % D2)
        c = "0" if kt == 0 else R(OA + 16*ct, 16)
        a(f"v_mfma_f32_32x32x16_bf16 {R(OA+16*ct,16)}, {R(s,4)}, {R(PFR+4*kt,4)}, {c}")
        if idx + D2 < len(st2): g2read(idx + D2)
    stamp(6)
    a(f"""
    v_and_b32 {vA}, 31, {vLane}
    v_lshlrev_b32 v204, 10, {vA}
    v_and_b32 {vA}, 7, {vLane}
    v_lshl_add_u32 v204, {vA}, 4, v204
    v_lshrrev_b32 {vA}, 5, {vLane}
    v_lshl_add_u32 v204, {vA}, 3, v204
    s_lshl_b32 {sT0}, {sWv}, 8
    s_add_u32 {sT0}, {sT0}, {X}
    v_add_u32 v204, {sT0}, v204
    """)
    for ct in range(4):
        for g in range(4):
            i0 = OA + 16*ct + 4*g
            t = 80 + 2 * ((ct*4+g) % 8)
            a(f"v_cvt_pk_bf16_f32 v{t}, v{i0}, v{i0+1}")
            a(f"v_cvt_pk_bf16_f32 v{t+1}, v{i0+2}, v{i0+3}")
            ad = f"v{96 + (ct*4+g) % 8}"
            a(f"v_xor_b32 {ad}, {(4*ct+g) << 4}, v204")
            a.lds(f"ds_write_b64 {ad}, v[{t}:{t+1}]", "tbw")
            if (ct*4+g) % 8 == 7 and ct < 3: a.wait_lg()
    a(f"""
    s_lshl_b32 {sT0}, {sWv}, 13
    s_add_u32 {sT0}, {sT0}, {X}
    v_add_u32 v204, {sT0}, {vL16}
    v_lshlrev_b32 v205, 15, {vKg}
    v_lshl_add_u32 v205, {vI}, 4, v205
    s_sub_u32 {sT1}, {sW}, 128
    s_lshl_b32 {sT1}, {sT1}, 8
    s_lshl_b32 {sT0}, {sWv}, 20
    s_add_u32 {sT1}, {sT1}, {sT0}
    s_add_u32 {sT1}, {sT1}, {PB}
    """)
    for u in range(8):
        a(f"v_xor_b32 v{104+u}, {u << 4}, v204")
    a.barrier()
    for u in range(8):
        a.lds(f"ds_read_b128 {R(128+4*u,4)}, v{104+u} offset:{u*1024}", f"tbr{u}")
    for u in range(8):
        a.wait_lg(f"tbr{u}")
        a.vmem(f"buffer_store_dwordx4 {R(128+4*u,4)}, v205, {WS}, {sT1} offen sc1", "pb_st")
        if u < 7: a(f"s_add_u32 {sT1}, {sT1}, 131072")
    stamp(7)
    if not cfg.b_wpre: uv_issue()
    a(f"""
    v_mov_b32 v80, {vM}
    v_mov_b32 v81, {vTag}
    v_mov_b32 v82, {vL}
    v_mov_b32 v83, {vTag}
    v_lshlrev_b32 {vA}, 11, {vLane}
    s_sub_u32 {sT1}, {sW}, 128
    s_lshl_b32 {sT1}, {sT1}, 4
    s_add_u32 {sT1}, {sT1}, {PBML}
    s_lshl_b32 {sQb}, {sH}, 11
    s_add_u32 {sQb}, {sQb}, {PBML}
    v_lshlrev_b32 v204, 4, {vTau}
    """)
    a(f"s_waitcnt vmcnt({0 if cfg.b_wpre else 8})")
    a("s_barrier")
    a(f"""
    v_cmp_gt_u32 vcc, 32, {vTau}
    s_and_saveexec_b64 {EX}, vcc
    s_cbranch_execz L_b_noml
    buffer_store_dwordx4 v[80:83], {vA}, {WS}, {sT1} offen sc1
    L_b_noml:
    s_mov_b64 exec, {EX}
    """)
    stamp(8)
    if not cfg.b_wpre: wo_issue()
    a(f"s_cmp_ge_u32 {sWv}, 2")
    a("s_cbranch_scc1 L_b_skipml")
    def ml_issue():
        a.vmem(f"buffer_load_dwordx4 v[80:83], v204, {WS}, {sQb} offen sc1", "pbml")
    a.vm = []
    ml_issue()
    poll(ml_issue, [81, 83], "pbml", 3)
    a("v_mov_b32 v84, v80")
    wave_reduce("v84", "v_max_f32", vA)
    a("v_sub_f32 v80, v80, v84")
    a("v_exp_f32 v80, v80")
    a(f"v_lshlrev_b32 {vC}, 1, {vTau}")
    a("v_mul_f32 v85, v80, v82")
    wave_reduce("v85", "v_add_f32", vA)
    a("v_rcp_f32 v85, v85")
    a(f"v_add_u32 {vC}, {X}, {vC}")
    a("v_mul_f32 v80, v80, v85")
    a("v_cvt_pk_bf16_f32 v80, v80, v80")
    a.lds(f"ds_write_b16 {vC}, v80 offset:{XS2}", "xs2w")
    a.wait_lg()
    a.label("L_b_skipml")
    a.vm = []
    vXa = "v205"
    a(f"""
    s_lshl_b32 {sT0}, {sL3}, 15
    s_lshl_b32 {sT1}, {sWv}, 13
    s_add_u32 {sT0}, {sT0}, {sT1}
    s_add_u32 {sT0}, {sT0}, {PB}
    v_lshlrev_b32 v204, 11, {vKg}
    v_lshl_add_u32 v204, {vI}, 4, v204
    s_lshl_b32 {sT1}, {sWv}, 6
    s_add_u32 {sT1}, {sT1}, {X}
    v_lshlrev_b32 {vXa}, 4, {vKg}
    v_add_u32 {vXa}, {sT1}, {vXa}
    s_add_u32 {sUO}, {sL3}, {(UO + 0x40000)//2048}
    s_lshl_b32 {sUO}, {sUO}, 11
    """)
    a.barrier()
    stamp(9)
    for tt in range(8):
        a.vmem(f"buffer_load_dwordx4 {R(128+4*tt,4)}, v204, {WS}, {sT0} offen offset:{256*tt} sc1", f"pb{tt}")
    a.lds(f"ds_read_b128 v[88:91], {vXa} offset:{XS2}", "xf")
    a(f"s_lshr_b32 {sT0}, {sWv}, 1")
    a(f"v_cmp_eq_u32 vcc, {sT0}, {vBp}")
    a.wait_lg()
    for r in range(4):
        a(f"v_cndmask_b32 v{88+r}, 0, v{88+r}, vcc")
    gemv8([R(128+4*tt, 4) for tt in range(8)], 88, ACC, [f"pb{tt}" for tt in range(8)])
    red_write(ACC, vRedW, REDA)
    a(f"v_lshlrev_b32 {vC}, 1, {vTau}")
    a(f"v_add_u32 {vC}, {X}, {vC}")
    a(f"v_lshl_add_u32 {vXa}, {vBp}, 8, {vXa}")
    a.barrier()
    red_sum4(80, 84, REDA, 1024)
    a("v_cvt_pk_bf16_f32 v80, v80, v80")
    a.lds(f"ds_write_b16 {vC}, v80 offset:{XS3}", "xs3w")
    a.barrier()
    a.lds(f"ds_read_b128 v[88:91], {vXa} offset:{XS3}", "xf")
    a.wait_lg()
    gemv8([f"a[{32+4*tt}:{35+4*tt}]" for tt in range(8)], 88, ACC, None)
    red_write(ACC, vRedW, REDB)
    a(f"""
    v_mov_b32 v81, {vTag}
    v_mov_b32 v92, 0
    v_mov_b32 v93, {vTag}
    v_mov_b32 v94, 0x3e800000
    v_mov_b32 v95, {vTag}
    v_lshrrev_b32 {vA}, 7, {vTau}
    v_lshlrev_b32 {vA}, 6, {vA}
    s_lshl_b32 {sT0}, {sH}, 7
    s_and_b32 {sT1}, {sL3}, 3
    s_lshl_b32 {sT1}, {sT1}, 4
    s_add_u32 {sT0}, {sT0}, {sT1}
    s_add_u32 {sT0}, {sT0}, {UML + 0x1000}
    s_add_u32 {sT1}, {sT0}, {FOFF}
    v_and_b32 {vB_}, 127, {vTau}
    v_cmp_eq_u32 vcc, 0, {vB_}
    s_and_saveexec_b64 {EX}, vcc
    s_cbranch_execz L_b_noml2
    buffer_store_dwordx4 v[92:95], {vA}, {WS}, {sT1} offen
    buffer_store_dwordx4 v[92:95], {vA}, {WS}, {sT0} offen sc1
    L_b_noml2:
    s_mov_b64 exec, {EX}
    """)
    a.barrier()
    red_sum4(80, 84, REDB, 1024)
    a(f"s_add_u32 {sT0}, {sUO}, {FOFF}")
    if cfg.fast: a(f"buffer_store_dwordx2 v[80:81], {vTau8}, {WS}, {sT0} offen")
    a(f"buffer_store_dwordx2 v[80:81], {vTau8}, {WS}, {sUO} offen sc1")
    stamp(10)
    a(f"s_add_u32 {sR}, {sH}, 32")

    a.label("L_stage4")
    a.vm = []; a.lg = []; a.smem = cfg.stamps
    a(f"""
    s_and_b32 {sT0}, {sL3}, 3
    s_cmp_eq_u32 {sT0}, 3
    s_cbranch_scc1 L_final
    s_lshl_b32 {sUO}, {sBr}, 18
    s_lshl_b32 {sT0}, {sH}, 13
    s_add_u32 {sUO}, {sUO}, {sT0}
    s_add_u32 {sUO}, {sUO}, {UO}
    s_lshl_b32 {sUML}, {sBr}, 12
    s_lshl_b32 {sT0}, {sH}, 7
    s_add_u32 {sUML}, {sUML}, {sT0}
    s_add_u32 {sUML}, {sUML}, {UML}
    s_add_u32 {sUO}, {sUO}, {sFast}
    s_add_u32 {sUML}, {sUML}, {sFast}
    v_lshrrev_b32 v207, 7, {vTau}
    v_lshlrev_b32 v207, 6, v207
    """)
    def u_issue():
        a(f"s_add_u32 {sT3}, {sUO}, 4096")
        a.vmem(f"buffer_load_dwordx2 v[80:81], {vTau8}, {WS}, {sUO} offen sc1", "u")
        a.vmem(f"buffer_load_dwordx2 v[82:83], {vTau8}, {WS}, {sUO} offen offset:2048 sc1", "u")
        a.vmem(f"buffer_load_dwordx2 v[84:85], {vTau8}, {WS}, {sT3} offen sc1", "u")
        a.vmem(f"buffer_load_dwordx2 v[86:87], {vTau8}, {WS}, {sT3} offen offset:2048 sc1", "u")
        for s in range(4):
            a.vmem(f"buffer_load_dwordx4 v[{88+4*s}:{91+4*s}], v207, {WS}, {sUML} offen offset:{16*s} sc1", "u")
    u_issue()
    a(f"""
    v_lshlrev_b32 v110, 1, {vTau}
    v_add_u32 v110, {X}, v110
    s_lshl_b32 {sT0}, {sWv}, 6
    s_add_u32 {sT0}, {sT0}, {X}
    v_lshlrev_b32 v111, 4, {vKg}
    v_lshl_add_u32 v111, {vBp}, 8, v111
    v_add_u32 v111, {sT0}, v111
    v_lshlrev_b32 v112, 10, {vBp}
    v_lshl_add_u32 v112, {vKg}, 7, v112
    v_and_b32 {vA}, 7, {vLane}
    v_lshl_add_u32 v112, {vA}, 2, v112
    s_lshl_b32 {sT0}, {sWv}, 11
    s_add_u32 {sT0}, {sT0}, {X}
    v_add_u32 v112, {sT0}, v112
    v_lshrrev_b32 v113, 7, {vTau}
    v_and_b32 v114, 127, {vTau}
    v_lshlrev_b32 v115, 10, v113
    v_lshl_add_u32 v115, v114, 3, v115
    v_add_u32 v115, {X}, v115
    v_mul_u32_u24 v116, 4608, v113
    v_lshl_add_u32 v116, v114, 4, v116
    s_lshl_b32 {sT0}, {sBr}, 5
    s_add_u32 {sT0}, {sT0}, {sH}
    s_mul_i32 {sT0}, {sT0}, 9216
    s_and_b32 {sT1}, {sL3}, 3
    s_mul_i32 {sT1}, {sT1}, 1536
    s_add_u32 {sT0}, {sT0}, {sT1}
    s_add_u32 {sQb}, {sT0}, {OP}
    """)
    poll(u_issue, [81, 83, 85, 87] + [88+4*s+j for s in range(4) for j in (1, 3)], "u", 4)
    stamp(13)
    a("v_max3_f32 v104, v88, v92, v96")
    a("v_max_f32 v104, v104, v100")
    for s in range(4): a(f"v_sub_f32 v{88+4*s}, v{88+4*s}, v104")
    for s in range(4): a(f"v_exp_f32 v{88+4*s}, v{88+4*s}")
    a("v_mul_f32 v105, v88, v80")
    a("v_mul_f32 v106, v88, v90")
    for s in range(1, 4):
        a(f"v_fmac_f32 v105, v{88+4*s}, v{80+2*s}")
        a(f"v_fmac_f32 v106, v{88+4*s}, v{90+4*s}")
    a("v_rcp_f32 v106, v106")
    a("v_mul_f32 v105, v105, v106")
    a("v_cvt_pk_bf16_f32 v105, v105, v105")
    a.lds(f"ds_write_b16 v110, v105 offset:{XS}", "xsw")
    a.barrier()
    a.lds(f"ds_read_b128 v[88:91], v111 offset:{XS}", "xf")
    a.wait_lg()
    A0, AA, AB = 68, 92, 96
    build_frag(FR0, "v88", 0)
    for tt in range(8):
        cur = FR0 if tt % 2 == 0 else FR1
        nxt = FR1 if tt % 2 == 0 else FR0
        if tt < 7: build_frag(nxt, f"v{88 + (tt+1)//2}", (tt+1) % 2)
        c = "0" if tt == 0 else R(A0, 4)
        a(f"v_mfma_f32_16x16x32_bf16 {R(A0,4)}, a[{128+4*tt}:{131+4*tt}], {R(cur,4)}, {c}")
        acc = AA if tt % 2 == 0 else AB
        c = "0" if tt < 2 else R(acc, 4)
        a(f"v_mfma_f32_16x16x32_bf16 {R(acc,4)}, a[{160+4*(tt//2)}:{163+4*(tt//2)}], {R(cur,4)}, {c}")
    a(f"v_cmp_gt_u32 vcc, 32, {vLane}")
    red_write(A0, "v112", RED4)
    for r in range(4):
        a(f"v_cndmask_b32 v{AA+r}, v{AB+r}, v{AA+r}, vcc")
    red_write(AA, "v112", RED4 + 512)
    a.barrier()
    for w in range(4):
        a.lds(f"ds_read_b64 v[{80+2*w}:{81+2*w}], v115 offset:{RED4 + 2048*w}", "r4")
        a.lds(f"ds_read_b64 v[{88+2*w}:{89+2*w}], v115 offset:{RED4 + 2048*w + 256}", "r4")
    a(f"v_cmp_le_u32 vcc, 64, v114")
    a(f"v_mov_b32 v101, {vTag}")
    a(f"v_mov_b32 v103, {vTag}")
    a.wait_lg()
    for k in range(2):
        a(f"v_add_f32 v{80+k}, v{80+k}, v{82+k}")
        a(f"v_add_f32 v{84+k}, v{84+k}, v{86+k}")
        a(f"v_add_f32 v{88+k}, v{88+k}, v{90+k}")
        a(f"v_add_f32 v{92+k}, v{92+k}, v{94+k}")
        a(f"v_add_f32 v{80+k}, v{80+k}, v{84+k}")
        a(f"v_add_f32 v{88+k}, v{88+k}, v{92+k}")
        a(f"v_cndmask_b32 v{88+k}, 0, v{88+k}, vcc")
        a(f"v_add_f32 v{100+2*k}, v{80+k}, v{88+k}")
    a(f"""
    v_cmp_gt_u32 vcc, 96, v114
    s_and_saveexec_b64 {EX}, vcc
    buffer_store_dwordx4 v[100:103], v116, {WS}, {sQb} offen sc1
    s_mov_b64 exec, {EX}
    """)
    stamp(11)
    a("s_branch L_done")

    a.label("L_final")
    a.vm = []; a.lg = []
    a(f"""
    s_cmp_ge_u32 {sR}, 36
    s_cbranch_scc1 L_done
    s_cmp_ge_u32 {sR}, 18
    s_cselect_b32 {sT0}, 1, 0
    s_cselect_b32 {sT1}, 18, 0
    s_sub_u32 {sT1}, {sR}, {sT1}
    s_mul_i32 {sT2}, {sT0}, 4608
    s_lshl_b32 {sT3}, {sT1}, 8
    s_add_u32 {sT2}, {sT2}, {sT3}
    s_mul_i32 {sT3}, {sWv}, {16*9216}
    s_add_u32 {sQb}, {sT2}, {sT3}
    s_add_u32 {sQb}, {sQb}, {OP}
    v_mul_u32_u24 v204, 9216, {vKg}
    v_lshl_add_u32 v204, {vI}, 4, v204
    s_mul_i32 {sUO}, {sT0}, 2304
    s_lshl_b32 {sT1}, {sT1}, 6
    s_add_u32 {sUO}, {sUO}, {sT1}
    """)
    def f_issue():
        for n in range(4):
            a(f"s_add_u32 {sT3}, {sQb}, {n*4*9216}")
            a.vmem(f"buffer_load_dwordx4 v[{80+4*n}:{83+4*n}], v204, {WS}, {sT3} offen sc1", "f")
    f_issue()
    a(f"""
    s_lshl_b32 {sT0}, {sWv}, 7
    s_add_u32 {sT0}, {sT0}, {X}
    v_lshlrev_b32 v110, 3, {vI}
    v_add_u32 v110, {sT0}, v110
    v_lshlrev_b32 v111, 8, {vKg}
    v_lshl_add_u32 v111, {vI}, 3, v111
    v_add_u32 v111, {X}, v111
    v_mul_u32_u24 v112, 1152, {vKg}
    v_lshl_add_u32 v112, {vI}, 2, v112
    """)
    poll(f_issue, [80+4*n+j for n in range(4) for j in (1, 3)], "f", 5)
    stamp(13)
    a("v_add_f32 v80, v80, v84")
    a("v_add_f32 v88, v88, v92")
    a("v_add_f32 v82, v82, v86")
    a("v_add_f32 v90, v90, v94")
    a("v_add_f32 v80, v80, v88")
    a("v_add_f32 v81, v82, v90")
    xlane_reduce("v80", "v_add_f32", vA)
    xlane_reduce("v81", "v_add_f32", vB_)
    a(f"""
    v_cmp_gt_u32 vcc, 16, {vLane}
    s_and_saveexec_b64 {EX}, vcc
    """)
    a.lds(f"ds_write_b64 v110, v[80:81] offset:{RF}", "rfw")
    a(f"s_mov_b64 exec, {EX}")
    a.barrier()
    a(f"""
    v_cmp_gt_u32 vcc, 32, {vTau}
    s_and_saveexec_b64 {EX}, vcc
    s_cbranch_execz L_f_skip
    ds_read_b64 v[80:81], v111 offset:{RF}
    ds_read_b64 v[82:83], v111 offset:{RF + 128}
    s_waitcnt lgkmcnt(0)
    v_add_f32 v80, v80, v82
    v_add_f32 v81, v81, v83
    v_cvt_pk_bf16_f32 v80, v80, v81
    buffer_store_dword v80, v112, {OUT}, {sUO} offen
    s_cmp_lg_u32 {sR}, 0
    s_cbranch_scc1 L_f_skip
    v_mov_b32 {vA}, 0
    v_cmp_eq_u32 vcc, 0, {vTau}
    s_and_b64 exec, exec, vcc
    buffer_store_dword {vTag}, {vA}, {WS}, 0 offen sc1
    L_f_skip:
    s_mov_b64 exec, {EX}
    """)
    stamp(11)
    a.label("L_done")
    if cfg.stamps:
        a(f"""
        s_waitcnt lgkmcnt(0)
        s_lshl_b32 {sT0}, {sW}, 2
        s_add_u32 {sT0}, {sT0}, {sWv}
        s_lshl_b32 {sT0}, {sT0}, 7
        s_add_u32 {sT0}, {sT0}, {STAMP}
        v_mov_b32 {vA}, 0
        v_cmp_eq_u32 vcc, 0, {vLane}
        s_and_saveexec_b64 {EX}, vcc
        """)
        for k in range(NST):
            a(f"v_mov_b32 v80, s{66+2*k}")
            a(f"v_mov_b32 v81, s{67+2*k}")
            a(f"buffer_store_dwordx2 v[80:81], {vA}, {WS}, {sT0} offen offset:{8*k}")
            a("s_nop 1")
        if cfg.dbgt:
            a(f"""
            s_memrealtime s[98:99]
            s_mov_b32 s32, s60
            s_mov_b32 s33, s61
            s_mov_b32 s34, 256
            s_mov_b32 s35, 0x20000
            s_waitcnt lgkmcnt(0)
            s_not_b32 {sT0}, s66
            v_mov_b32 v80, {sT0}
            v_mov_b32 v81, s66
            v_mov_b32 v82, s98
            buffer_atomic_umax v80, {vA}, s[32:35], 0 offen sc1
            buffer_atomic_umax v81, {vA}, s[32:35], 0 offen offset:4 sc1
            buffer_atomic_umax v82, {vA}, s[32:35], 0 offen offset:8 sc1
            s_cmp_ge_u32 {sW}, 128
            s_cbranch_scc1 L_dbgB
            """)
            for j, k in enumerate((1, 8, 7, 2, 4, 5)):
                a(f"v_mov_b32 v{84+j}, s{66+2*k}")
                a(f"buffer_atomic_umax v{84+j}, {vA}, s[32:35], 0 offen offset:{12+4*j} sc1")
            a("s_branch L_dbgE")
            a.label("L_dbgB")
            for j, k in enumerate((2, 4, 5, 7, 9, 10, 13)):
                a(f"v_mov_b32 v{84+j}, s{66+2*k}")
                a(f"buffer_atomic_umax v{84+j}, {vA}, s[32:35], 0 offen offset:{36+4*j} sc1")
            a.label("L_dbgE")
            a("s_waitcnt vmcnt(0)")
        else:
            a(f"s_mov_b64 exec, {EX}")
    a.label("L_end")
    a("s_endpgm")
    return a

HEADER = open("cdna_kernels/" + KN + ".s.ref").read().split("; Override launch")[0]
def build(cfg):
    a = gen(cfg)
    body = a.text()
    name = KN + "_kernel"
    s = HEADER
    s += "; Override launch geometry by editing the next line.\n"
    s += "; @launch grid=(256,1,1) block=(256,1,1) lds=163840\n"
    s += '.amdgcn_target "amdgcn-amd-amdhsa--gfx950"\n.text\n'
    s += f".globl {name}\n.p2align 8\n.type {name},@function\n{name}:\n"
    s += body
    s += f"""
.section .rodata,"a"
.p2align 6
.amdhsa_kernel {name}
  .amdhsa_next_free_vgpr 512
  .amdhsa_next_free_sgpr 102
  .amdhsa_accum_offset 256
  .amdhsa_group_segment_fixed_size 0
  .amdhsa_kernarg_size 112
  .amdhsa_user_sgpr_count 2
  .amdhsa_user_sgpr_kernarg_segment_ptr 1
  .amdhsa_system_sgpr_workgroup_id_x 1
.end_amdhsa_kernel
"""
    return s

if __name__ == "__main__":
    ap = argparse.ArgumentParser()
    ap.add_argument("-o", default="cdna_kernels/" + KN + ".s")
    ap.add_argument("--set", nargs="*", default=[])
    args = ap.parse_args()
    cfg = Cfg()
    for kv in args.set:
        k, v = kv.split("=")
        assert hasattr(cfg, k), k
        setattr(cfg, k, type(getattr(cfg, k))(int(v)))
    open(args.o, "w").write(build(cfg))
```

```python
import sys, argparse, struct
from asmcore import Asm
KN = "concat_heads__sliding_block_cached__compressed_kv_cla__decode"

QP   = 0x1000
QA   = 0x90000
UO   = 0xC0000
UML  = 0x140000
PBML = 0x150000
HELLO = 0x178000
FOFF = 0x1000000
QAF  = 0x170000
OP   = 0x180000
PB   = 0x400000
STAMP = 0x8000000
X = 131072
RED1, QB, RED2, MLS = 0, 4096, 8192, 12288
XS, RED4, RF = 16384, 20480, 28672
XS2, REDA, XS3, REDB = 0, 4096, 8192, 12288
MX, LS, PF = 0, 512, 1024
C1 = (128 ** -0.5) * 1.4426950408889634
def f2u(x): return struct.unpack("<I", struct.pack("<f", x))[0]

class Cfg:
    nt = True
    wnt = True
    stamps = False
    rot = True
    spin = 200000
    s_xord = 2
    b_r1 = 2
    s_r1 = 0
    s_uk0 = 0
    s_k0 = 2
    s_d0 = 8
    s_k1 = 2
    s_dk = 16
    s_dv = 0
    s_wo = 16
    s_nv1 = 16
    s_nv2 = 16
    s_nv3 = 0
    b_g1 = 1
    b_d = 16
    b_qpos = 9
    b_qsc1 = False
    b_uv = 0
    b_wo = 2
    fast = True
    b_d0 = 4
    b_gr = 0
    pt = 0
    fstamps = False
    cstamps = False
    dbgt = False

def gen(cfg):
    a = Asm()
    NT = " nt" if cfg.nt else ""
    WNT = " nt" if cfg.wnt else ""
    sN, sPend, sW, sWv = "s0", "s1", "s2", "s3"
    WS, XR, W1, KV, VV, WO, OUT = "s[4:7]", "s[8:11]", "s[12:15]", "s[16:19]", "s[20:23]", "s[24:27]", "s[28:31]"
    EX = "s[32:33]"
    sT0, sT1, sT2, sT3 = "s42", "s43", "s44", "s45"
    sTag, sKB, sSpin, sH, sQb, sUO, sUML, sR, sBr, sW1, sX1, sRot, sC1 = [f"s{k}" for k in range(46, 59)]
    sCB = "s99"; sEp = "s64"; sL1 = "s59"; sLA = "s62"; sL3 = "s63"; sFast = "s65"
    NST = 16
    mute = set()
    def stamp(k, force=False):
        if k in mute and not force: return
        if cfg.stamps:
            a(f"s_memrealtime s[{66+2*k}:{67+2*k}]"); a.smem = True
    vTau, vLane, vI, vKg = "v0", "v1", "v2", "v3"
    SEL = [[f"v{4+hs*4+r}" for r in range(4)] for hs in range(2)]
    vTag, vBp, vRedW, vTau4, vTau8 = "v12", "v13", "v14", "v15", "v16"
    vA, vB_, vC = "v17", "v18", "v19"
    vXo, vWo, vL16 = "v20", "v21", "v31"
    VX = 22
    VW = 32
    ACC = 68; FR0 = 72; FR1 = 76
    VQ = 86; VQF = 96

    def R(base, n, k="v"): return f"{k}[{base}:{base+n-1}]"
    def build_frag(dst, src, hs):
        for r in range(4):
            a(f"v_perm_b32 v{dst+r}, {src}, {src}, {SEL[hs][r]}")
    def red_write(acc, vaddr, off):
        for r in range(4):
            a.lds(f"ds_write_b32 {vaddr}, v{acc+r} offset:{off + r*32}", "redw")
    def red_sum4(dst, tmp, off, stride):
        for w in range(4):
            a.lds(f"ds_read_b32 v{tmp+w}, {vTau4} offset:{off + w*stride}", "redr")
        a.wait_lg()
        a(f"v_add_f32 v{tmp}, v{tmp}, v{tmp+1}")
        a(f"v_add_f32 v{tmp+2}, v{tmp+2}, v{tmp+3}")
        a(f"v_add_f32 v{dst}, v{tmp}, v{tmp+2}")
    def tagcheck(tagregs, Lok):
        a(f"s_mov_b64 {EX}, exec")
        for t in tagregs:
            a(f"v_cmpx_eq_u32 vcc, {vTag}, v{t}")
        a("s_nop 3")
        a(f"s_cmp_eq_u64 exec, {EX}")
        a(f"s_mov_b64 exec, {EX}")
        a(f"s_cbranch_scc1 {Lok}")
    def timeout_mark(dbgcode):
        a(f"""s_mov_b32 s32, s60
        s_mov_b32 s33, s61
        s_mov_b32 s34, 256
        s_mov_b32 s35, 0x20000
        v_mov_b32 {vA}, {4*dbgcode}
        v_mov_b32 {vB_}, 1
        buffer_store_dword {vB_}, {vA}, s[32:35], 0 offen
        s_waitcnt vmcnt(0)""")
    def poll(issue, tagregs, waitname, dbgcode, fix=None):
        Lchk = a.newlabel("L_chk"); Lok = a.newlabel("L_ok"); Lto = a.newlabel("L_to")
        a.try_wait_vm(waitname)
        if fix and fix[0]: fix[0]()
        saved_vm = list(a.vm)
        a(f"s_mov_b32 {sSpin}, {cfg.spin}")
        a.label(Lchk)
        tagcheck(tagregs, Lok)
        a(f"s_sub_u32 {sSpin}, {sSpin}, 1")
        a(f"s_cmp_eq_u32 {sSpin}, 0")
        a(f"s_cbranch_scc1 {Lto}")
        a.vm = []
        if fix: fix[1]()
        issue()
        a("s_waitcnt vmcnt(0)")
        if fix and len(fix) > 2: fix[2]()
        a(f"s_branch {Lchk}")
        a.label(Lto)
        timeout_mark(dbgcode)
        a.label(Lok)
        a.vm = saved_vm
    def xlane_reduce(v, op, tmp):
        a(f"v_mov_b32 {tmp}, {v}")
        a(f"v_permlane16_swap_b32 {v}, {tmp}")
        a(f"{op} {v}, {v}, {tmp}")
        a(f"v_mov_b32 {tmp}, {v}")
        a(f"v_permlane32_swap_b32 {v}, {tmp}")
        a(f"{op} {v}, {v}, {tmp}")
    def wave_reduce(v, op, tmp):
        for d in ("quad_perm:[1,0,3,2]", "quad_perm:[2,3,0,1]", "row_half_mirror", "row_mirror"):
            a(f"{op}_dpp {v}, {v}, {v} {d} row_mask:0xf bank_mask:0xf")
        xlane_reduce(v, op, tmp)
    def x_loads():
        for tt in range(9):
            a.vmem(f"buffer_load_ushort v{VX+tt}, {vXo}, {XR}, {sX1} offen offset:{2*tt}", "x")
    def w1_loads(t0=0, t1=9):
        for tt in range(t0, t1):
            a(f"s_add_u32 {sT2}, {sW1}, {tt*8192}")
            a.vmem(f"buffer_load_dwordx4 {R(VW+4*tt,4)}, {vWo}, {W1}, {sT2} offen{WNT}", f"w1_{tt}")
    def hello_issue():
        a(f"s_and_b32 {sT2}, {sW}, 7")
        a(f"s_lshl_b32 {sT2}, {sT2}, 7")
        a(f"s_lshr_b32 {sT3}, {sW}, 7")
        a(f"s_lshl_b32 {sT3}, {sT3}, 6")
        a(f"s_add_u32 {sT2}, {sT2}, {sT3}")
        a(f"s_add_u32 {sT2}, {sT2}, {HELLO}")
        a(f"v_lshlrev_b32 v82, 2, {vI}")
        a.vmem(f"buffer_load_dword v83, v82, {WS}, {sT2} offen sc1", "hello")
    def hello_finish():
        a.try_wait_vm("hello")
        a(f"v_cmp_ne_u32 vcc, {vTag}, v83")
        a(f"s_mov_b32 {sFast}, {FOFF if cfg.fast else 0}")
        a("s_nop 0")
        a(f"s_cmp_eq_u64 vcc, 0")
        a(f"s_cselect_b32 {sFast}, {sFast}, 0")
    def p1a_compute(qoff, role, hello, between=None):
        a.try_wait_vm("x")
        if cfg.fstamps and hello: stamp(3)
        build_frag(FR0, f"v{VX}", 0)
        for tt in range(9):
            cur = FR0 if tt % 2 == 0 else FR1
            nxt = FR1 if tt % 2 == 0 else FR0
            if tt < 8: build_frag(nxt, f"v{VX+tt+1}", 0)
            a.try_wait_vm(f"w1_{tt}")
            if cfg.fstamps and hello and tt == 0: stamp(12)
            c = "0" if tt == 0 else R(ACC, 4)
            a(f"v_mfma_f32_16x16x32_bf16 {R(ACC,4)}, {R(VW+4*tt,4)}, {R(cur,4)}, {c}")
            if between: between(tt)
        if cfg.fstamps and hello: stamp(4)
        red_write(ACC, vRedW, RED1)
        a(f"v_mov_b32 v81, {vTag}")
        a(f"s_lshl_b32 {sT0}, {role}, 11")
        a(f"s_add_u32 {sT0}, {sT0}, {QP + qoff}")
        a(f"s_add_u32 {sT1}, {sT0}, {FOFF}")
        if hello: hello_issue()
        a.barrier()
        red_sum4(80, 72, RED1, 1024)
        if cfg.fast: a.vmem(f"buffer_store_dwordx2 v[80:81], {vTau8}, {WS}, {sT1} offen", "qp_st")
        a.vmem(f"buffer_store_dwordx2 v[80:81], {vTau8}, {WS}, {sT0} offen sc1", "qp_st")
    def q_issue():
        a(f"s_add_u32 {sT3}, {sQb}, 4096")
        a.vmem(f"buffer_load_dwordx2 v[{VQ}:{VQ+1}], v85, {WS}, {sQb} offen sc1", "q")
        a.vmem(f"buffer_load_dwordx2 v[{VQ+2}:{VQ+3}], v85, {WS}, {sQb} offen offset:2048 sc1", "q")
        a.vmem(f"buffer_load_dwordx2 v[{VQ+4}:{VQ+5}], v85, {WS}, {sT3} offen sc1", "q")
        a.vmem(f"buffer_load_dwordx2 v[{VQ+6}:{VQ+7}], v85, {WS}, {sT3} offen offset:2048 sc1", "q")
    QTAGS = [VQ+1, VQ+3, VQ+5, VQ+7]
    def q_finish():
        a(f"v_add_f32 v{VQ}, v{VQ}, v{VQ+2}")
        a(f"v_add_f32 v{VQ+4}, v{VQ+4}, v{VQ+6}")
        a(f"v_lshlrev_b32 {vA}, 1, {vTau}")
        a(f"v_add_f32 v{VQ}, v{VQ}, v{VQ+4}")
        a(f"v_add_u32 {vA}, {X}, {vA}")
        a(f"v_cvt_pk_bf16_f32 v{VQ}, v{VQ}, v{VQ}")
        a.lds(f"ds_write_b16 {vA}, v{VQ} offset:{QB}", "qb")
        a(f"v_lshlrev_b32 {vA}, 8, {vBp}")
        a(f"v_lshl_add_u32 {vA}, {vKg}, 4, {vA}")
        a(f"v_add_u32 {vA}, {X}, {vA}")
        a.barrier()
        for t in range(4):
            a.lds(f"ds_read_b128 {R(VQF+4*t,4)}, {vA} offset:{QB + 64*t}", "qf")
    def wo_setup(sA, sB):
        a(f"""
        v_mul_u32_u24 v240, 9216, {vKg}
        v_lshl_add_u32 v241, {vI}, 4, v240
        v_lshrrev_b32 {vA}, 3, {vI}
        v_mul_u32_u24 {vA}, 1152, {vA}
        v_and_b32 {vB_}, 7, {vI}
        v_lshl_add_u32 {vA}, {vB_}, 4, {vA}
        v_add_u32 v242, v240, {vA}
        v_add_u32 v242, 256, v242
        s_and_b32 {sB}, {sL3}, 3
        s_lshr_b32 {sA}, {sL3}, 2
        s_lshl_b32 {sA}, {sA}, 2
        s_add_u32 {sA}, {sA}, {sWv}
        s_mul_i32 {sA}, {sA}, {32*1152}
        s_mul_i32 {sB}, {sB}, 384
        s_add_u32 {sA}, {sA}, {sB}
        s_add_u32 {sB}, {sA}, 4608
        """)
    def wo_load(n, sA, sB):
        if n < 8:
            a.vmem(f"buffer_load_dwordx4 a[{128+4*n}:{131+4*n}], v241, {WO}, {sA if n < 4 else sB} offen offset:{(n % 4)*1152}{WNT}", "wo")
        else:
            u = n - 8
            a.vmem(f"buffer_load_dwordx4 a[{160+4*u}:{163+4*u}], v242, {WO}, {sA if u < 2 else sB} offen offset:{(u % 2)*2304}{WNT}", "wo")
    def gemv8(src_regs, xf, acc, waitnames):
        build_frag(FR0, f"v{xf}", 0)
        for tt in range(8):
            cur = FR0 if tt % 2 == 0 else FR1
            nxt = FR1 if tt % 2 == 0 else FR0
            if tt < 7: build_frag(nxt, f"v{xf + (tt+1)//2}", (tt+1) % 2)
            if waitnames: a.try_wait_vm(waitnames[tt])
            c = "0" if tt == 0 else R(acc, 4)
            a(f"v_mfma_f32_16x16x32_bf16 {R(acc,4)}, {src_regs[tt]}, {R(cur,4)}, {c}")

    a(f"""
    s_cmp_ge_u32 s2, 256
    s_cbranch_scc1 L_end
    s_load_dwordx16 s[36:51], s[0:1], 0
    s_load_dwordx8 s[52:59], s[0:1], 64
    s_load_dwordx4 s[60:63], s[0:1], 96
    """)
    if cfg.stamps:
        for k in range(NST): a(f"s_mov_b64 s[{66+2*k}:{67+2*k}], 0")
    stamp(0)
    a(f"""
    v_and_b32 {vLane}, 63, {vTau}
    v_lshrrev_b32 {vA}, 6, {vTau}
    v_and_b32 {vI}, 15, {vTau}
    v_bfe_u32 {vKg}, {vTau}, 4, 2
    v_readfirstlane_b32 {sWv}, {vA}
    v_bfe_u32 {vBp}, {vTau}, 3, 1
    v_mul_u32_u24 {vXo}, 1152, {vBp}
    v_mul_u32_u24 {vA}, 18, {vKg}
    v_add_u32 {vXo}, {vXo}, {vA}
    v_mul_u32_u24 {vWo}, 73728, {vKg}
    v_lshlrev_b32 {vA}, 4, {vI}
    v_add_u32 {vWo}, {vWo}, {vA}
    v_lshlrev_b32 {vL16}, 4, {vLane}
    s_waitcnt lgkmcnt(0)
    s_load_dword {sEp}, s[62:63], 0
    FSTAMP_A
    s_cmp_ge_u32 {sW}, 128
    s_mov_b32 s100, s42
    s_mov_b32 s101, s43
    s_mov_b32 s4, s62
    s_mov_b32 s5, s63
    s_mov_b32 s6, 0x10000000
    s_mov_b32 s7, 0x20000
    s_mov_b32 s8, s46
    s_mov_b32 s9, s47
    s_mov_b32 s10, 2304
    s_mov_b32 s11, 0x20000
    s_mov_b32 s12, s50
    s_mov_b32 s13, s51
    s_mov_b32 s14, 4718592
    s_mov_b32 s15, 0x20000
    s_cselect_b32 s16, s48, s38
    s_cselect_b32 s17, s49, s39
    s_mov_b32 s18, 67108864
    s_cselect_b32 s18, 16777216, s18
    s_mov_b32 s19, 0x20000
    s_cselect_b32 s20, s54, s52
    s_cselect_b32 s21, s55, s53
    s_mov_b32 s22, 4194304
    s_mov_b32 s23, 0x20000
    s_cselect_b32 s24, s56, s44
    s_cselect_b32 s25, s57, s45
    s_mov_b32 s26, 4718592
    s_mov_b32 s27, 0x20000
    s_mov_b32 s28, s58
    s_mov_b32 s29, s59
    s_mov_b32 s30, 4608
    s_mov_b32 s31, 0x20000
    ; x = w&7, q = (w>>3)&3, e = (w>>5)&1, f = (w>>6)&1
    s_and_b32 {sT0}, {sW}, 7
    s_bfe_u32 {sT1}, {sW}, 0x20003
    s_bfe_u32 {sT2}, {sW}, 0x20005
    s_lshl_b32 {sT2}, {sT2}, 3
    s_add_u32 {sT2}, {sT2}, {sT0}          ; hX = x + 8*((w>>5)&3)
    s_lshl_b32 {sT2}, {sT2}, 2
    s_add_u32 {sT2}, {sT2}, {sT1}
    s_bfe_u32 {sT3}, {sW}, 0x10006
    s_lshl_b32 {sT3}, {sT3}, 3
    s_add_u32 {sT3}, {sT3}, {sT0}          ; hkv = x + 8f
    s_bfe_u32 {sT0}, {sW}, 0x10005         ; e
    s_lshl_b32 {sLA}, {sT0}, 6
    s_lshl_b32 {sL3}, {sT3}, 2
    s_add_u32 {sLA}, {sLA}, {sL3}
    s_add_u32 {sLA}, {sLA}, {sT1}
    s_lshl_b32 {sT3}, {sT3}, 1
    s_add_u32 {sT3}, {sT3}, {sT0}          ; 2hkv + e
    s_lshl_b32 {sT3}, {sT3}, 2
    s_add_u32 {sT3}, {sT3}, {sT1}
    s_cmp_ge_u32 {sW}, 128
    s_mov_b32 {sL1}, {sT2}
    s_cselect_b32 {sL3}, {sT2}, {sT3}
    s_and_b32 {sT0}, {sL3}, 3
    s_cmp_eq_u32 {sT0}, 3
    s_cselect_b32 s26, 0, s26
    s_lshr_b32 {sH}, {sL1}, 2
    s_lshr_b32 {sBr}, {sW}, 7
    s_mov_b32 {sFast}, 0
    s_and_b32 {sT0}, {sL1}, 3
    s_mul_i32 {sT0}, {sT0}, 144
    s_mul_i32 {sT1}, {sWv}, 36
    s_add_u32 {sT0}, {sT0}, {sT1}
    s_lshl_b32 {sX1}, {sT0}, 1
    s_lshl_b32 {sW1}, {sT0}, 13
    s_lshl_b32 {sT1}, {sH}, 8
    s_add_u32 {sW1}, {sW1}, {sT1}
    """)
    if cfg.fstamps:
        i_ = [i for i, it in enumerate(a.items) if it == ("i", "FSTAMP_A")][0]
        a.items[i_] = ("i", f"s_memrealtime s[{66+2*9}:{67+2*9}]")
    else:
        a.items = [it for it in a.items if it != ("i", "FSTAMP_A")]
    a.smem = True
    def c_group(g, q0=0, q1=4):
        if q0 == 0: a(f"""
        s_add_u32 {sT1}, {sRot}, {4*g}
        s_and_b32 {sT1}, {sT1}, 31
        s_lshl_b32 {sT1}, {sT1}, 10
        s_add_u32 {sCB}, {sKB}, {sT1}
        s_lshl_b32 {sT2}, {sWv}, 15
        s_add_u32 m0, {sT2}, {g*4096}
        """)
        for q in range(4):
            f = (q << 2) | (g & 3)
            if q0 == 0: a(f"v_xor_b32 v{202+q}, {f << 4}, {vL16}")
        for q in range(q0, q1):
            row = 4 * g + q
            if 0 < row <= cfg.b_r1: a.wait_vm(f"c{g}" if q else f"c{g-1}")
            a.vmem(f"buffer_load_dwordx4 v{202+q}, {KV}, {sCB} offen offset:{q*1024}{NT} lds", f"c{g}")
        if cfg.cstamps and q1 == 4: stamp(5 + g, True)
    a(f"""
    v_xor_b32 {vA}, {vI}, {vKg}
    v_lshlrev_b32 {vA}, 4, {vA}
    v_lshl_add_u32 v206, {vKg}, 13, {vA}
    v_xor_b32 v207, 64, v206
    v_xor_b32 v208, 128, v206
    v_xor_b32 v209, 192, v206
    """)
    a(f"s_cmp_ge_u32 {sW}, 128")
    a("s_cbranch_scc1 L_roleB")
    if cfg.s_xord == 0:
        x_loads(); w1_loads()
    elif cfg.s_xord == 1:
        w1_loads(); x_loads()
    else:
        w1_loads(0, 1); x_loads(); w1_loads(1, 9)
    a(f"""
    s_and_b32 {sUO}, {sL1}, 3
    s_lshl_b32 {sUO}, {sUO}, 7
    s_lshl_b32 {sT1}, {sWv}, 5
    s_add_u32 {sUO}, {sUO}, {sT1}
    s_lshl_b32 {sUO}, {sUO}, 13
    s_lshl_b32 {sT1}, {sH}, 8
    s_add_u32 {sUO}, {sUO}, {sT1}
    s_lshl_b32 {sUML}, {sWv}, 15
    """)
    ukn = [0]
    def uk_load():
        n = ukn[0]
        if n >= 8: return
        ukn[0] += 1
        a(f"s_add_u32 m0, {sUML}, {6*4096 + n*1024}")
        a(f"s_add_u32 {sT2}, {sUO}, {n*4*8192}")
        a.vmem(f"buffer_load_dwordx4 v{206 + n % 4}, {VV}, {sT2} offen{WNT} lds", "uk")
    if cfg.s_uk0:
        a("s_barrier")
        for _ in range(cfg.s_uk0): uk_load()
    def common():
        Lnh = a.newlabel("L_nohello")
        a.smem = True
        a(f"""
        v_and_b32 {vA}, 1, {vLane}
        v_cmp_eq_u32 vcc, 1, {vA}
        v_mov_b32 {vB_}, 0x0c0c0100
        v_mov_b32 {vC}, 0x01000c0c
        v_cndmask_b32 v68, {vB_}, {vC}, vcc
        v_mov_b32 {vB_}, 0x0c0c0302
        v_mov_b32 {vC}, 0x03020c0c
        v_cndmask_b32 v69, {vB_}, {vC}, vcc
        v_bfe_u32 {vA}, {vLane}, 1, 2
        v_mov_b32 {vB_}, 0x0c0c0c0c
        """)
        for r in range(4):
            a(f"v_cmp_eq_u32 vcc, {r}, {vA}")
            a(f"v_cndmask_b32 {SEL[0][r]}, {vB_}, v68, vcc")
            a(f"v_cndmask_b32 {SEL[1][r]}, {vB_}, v69, vcc")
        a(f"""
        v_lshlrev_b32 {vTau4}, 2, {vTau}
        v_add_u32 {vTau4}, {X}, {vTau4}
        v_lshlrev_b32 {vTau8}, 3, {vTau}
        v_lshlrev_b32 {vRedW}, 9, {vBp}
        v_lshl_add_u32 {vRedW}, {vKg}, 7, {vRedW}
        v_and_b32 {vA}, 7, {vLane}
        v_lshl_add_u32 {vRedW}, {vA}, 2, {vRedW}
        s_lshl_b32 {sT0}, {sWv}, 10
        s_add_u32 {sT0}, {sT0}, {X}
        v_add_u32 {vRedW}, {sT0}, {vRedW}
        v_lshlrev_b32 v85, 3, {vLane}
        s_mov_b32 {sC1}, {f2u(C1):#x}
        """)
        a.wait_lg()
        if cfg.fstamps: stamp(10)
        a(f"s_mul_i32 {sTag}, {sEp}, 0x9E3779B1")
        a(f"s_add_u32 {sTag}, {sTag}, 0x7F4A7C15")
        a(f"v_mov_b32 {vTag}, {sTag}")
        a(f"""
        s_and_b32 {sT0}, {sW}, 7
        s_lshl_b32 {sT0}, {sT0}, 7
        s_lshr_b32 {sT1}, {sW}, 3
        s_lshl_b32 {sT1}, {sT1}, 2
        s_add_u32 {sT0}, {sT0}, {sT1}
        s_add_u32 {sT0}, {sT0}, {HELLO}
        v_mov_b32 {vA}, 0
        v_cmp_eq_u32 vcc, 0, {vTau}
        s_and_saveexec_b64 {EX}, vcc
        s_cbranch_execz {Lnh}
        buffer_store_dword {vTag}, {vA}, {WS}, {sT0} offen
        {Lnh}:
        s_mov_b64 exec, {EX}
        """)
    common()
    def pretouch(role):
        if not (cfg.pt and cfg.fast): return
        if role == "B2":
            n0 = len(a.items); pretouch("B")
            import re as _re
            for i in range(n0, len(a.items)):
                k, t = a.items[i]
                if k == "i":
                    t = _re.sub(r"v\[244:247\]", "v[236:239]", t); t = _re.sub(r"v\[244:245\]", "v[236:237]", t)
                    t = _re.sub(r"v24(\d)", lambda m: f"v{232 + int(m.group(1))}", t)
                    a.items[i] = (k, t)
            return
        Lsk = a.newlabel("L_ptskip")
        a(f"""
        v_not_b32 v245, {vTag}
        v_mov_b32 v244, 0
        v_mov_b32 v246, 0
        v_mov_b32 v247, v245
        v_lshrrev_b32 v240, 7, {vTau}
        v_and_b32 v241, 127, {vTau}
        """)
        if role == "S":
            a(f"""
            v_lshlrev_b32 v242, 13, v240
            v_lshl_add_u32 v242, v241, 3, v242
            v_lshlrev_b32 v243, 7, v240
            s_lshl_b32 {sT0}, {sL1}, 11
            s_add_u32 {sT0}, {sT0}, {QP + 128*2048 + FOFF}
            s_lshl_b32 {sT1}, {sL3}, 11
            s_add_u32 {sT1}, {sT1}, {QP + FOFF}
            """)
            if cfg.pt == 1:
                a.vmem(f"buffer_store_dwordx2 v[244:245], {vTau8}, {WS}, {sT0} offen", "pt")
                a.vmem(f"buffer_store_dwordx2 v[244:245], {vTau8}, {WS}, {sT1} offen", "pt")
            a(f"""
            s_bfe_u32 {sT0}, {sLA}, 0x40002
            s_lshl_b32 {sT1}, {sT0}, 14
            s_and_b32 {sT2}, {sLA}, 3
            s_lshl_b32 {sT3}, {sT2}, 11
            s_add_u32 {sT1}, {sT1}, {sT3}
            s_lshr_b32 {sT3}, {sLA}, 6
            s_lshl_b32 {sT3}, {sT3}, 10
            s_add_u32 {sT1}, {sT1}, {sT3}
            s_add_u32 {sT1}, {sT1}, {UO + FOFF}
            """)
            a.vmem(f"buffer_store_dwordx2 v[244:245], v242, {WS}, {sT1} offen", "pt")
            a(f"""
            s_lshl_b32 {sT1}, {sT0}, 8
            s_lshr_b32 {sT3}, {sLA}, 6
            s_lshl_b32 {sT3}, {sT3}, 6
            s_add_u32 {sT1}, {sT1}, {sT3}
            s_lshl_b32 {sT2}, {sT2}, 4
            s_add_u32 {sT1}, {sT1}, {sT2}
            s_add_u32 {sT1}, {sT1}, {UML + FOFF}
            """)
        else:
            a(f"""
            v_lshlrev_b32 v243, 6, v240
            s_add_u32 {sT0}, {sL3}, {(UO + 0x40000)//2048}
            s_lshl_b32 {sT0}, {sT0}, 11
            s_add_u32 {sT0}, {sT0}, {FOFF}
            """)
            a.vmem(f"buffer_store_dwordx2 v[244:245], {vTau8}, {WS}, {sT0} offen", "pt")
            a(f"""
            s_lshr_b32 {sT0}, {sL3}, 2
            s_lshl_b32 {sT0}, {sT0}, 7
            s_and_b32 {sT1}, {sL3}, 3
            s_lshl_b32 {sT1}, {sT1}, 4
            s_add_u32 {sT0}, {sT0}, {sT1}
            s_add_u32 {sT1}, {sT0}, {UML + 0x1000 + FOFF}
            """)
        a(f"""
        v_cmp_eq_u32 vcc, 0, v241
        s_and_saveexec_b64 {EX}, vcc
        s_cbranch_execz {Lsk}
        buffer_store_dwordx4 v[244:247], v243, {WS}, {sT1} offen
        {Lsk}:
        s_mov_b64 exec, {EX}
        """)
    if cfg.pt == 1: pretouch("S")
    VKO = 200; VVO = 204
    a(f"""
    s_lshr_b32 {sT0}, {sLA}, 2
    s_lshl_b32 {sKB}, {sT0}, 21
    s_and_b32 {sT0}, {sLA}, 3
    s_lshl_b32 {sT0}, {sT0}, 17
    s_add_u32 {sKB}, {sKB}, {sT0}
    s_add_u32 {sKB}, {sKB}, {6144*256}
    s_lshl_b32 {sT0}, {sWv}, 15
    s_add_u32 {sKB}, {sKB}, {sT0}
    v_xor_b32 {vA}, {vI}, {vKg}
    v_lshlrev_b32 {vA}, 4, {vA}
    v_lshl_add_u32 v{VKO}, {vKg}, 8, {vA}
    v_xor_b32 v{VKO+1}, 64, v{VKO}
    v_xor_b32 v{VKO+2}, 128, v{VKO}
    v_xor_b32 v{VKO+3}, 192, v{VKO}
    v_lshlrev_b32 {vA}, 4, {vI}
    v_lshl_add_u32 v{VVO}, {vKg}, 10, {vA}
    s_mul_i32 {sRot}, {sW}, {5 if cfg.rot else 0}
    s_mul_i32 {sT0}, {sWv}, {3 if cfg.rot else 0}
    s_add_u32 {sRot}, {sRot}, {sT0}
    s_add_u32 {sT0}, {sH}, 32
    s_lshl_b32 {sN}, {sT0}, 13
    s_lshl_b32 {sT0}, {sWv}, 9
    s_add_u32 {sN}, {sN}, {sT0}
    s_add_u32 {sN}, {sN}, {QP}
    s_add_u32 {sQb}, {sN}, {FOFF if cfg.fast else 0}
    """)
    def k_tile(n):
        a(f"""
        s_add_u32 {sT0}, {sRot}, {n}
        s_and_b32 {sT0}, {sT0}, 7
        s_lshl_b32 {sT0}, {sT0}, 12
        s_add_u32 {sT1}, {sKB}, {sT0}
        s_lshl_b32 {sT0}, {sWv}, 15
        s_add_u32 m0, {sT0}, {n << 12}
        """)
        for q in range(4):
            row = 4 * n + q
            if 0 < row <= cfg.s_r1: a.wait_vm(f"k{n}" if q else f"k{n-1}")
            a.vmem(f"buffer_load_dwordx4 v{VKO+q}, {KV}, {sT1} offen offset:{q*1024}{NT} lds", f"k{n}")
    def throttle(depth):
        keep = max(depth - 4, 0)
        if len(a.vm) > keep:
            a(f"s_waitcnt vmcnt({keep})"); a.vm = a.vm[len(a.vm) - keep:] if keep else []
    VKA = 112
    for t in range(4):
        a(f"v_add_u32 {vA}, {4*t}, {vKg}")
        a(f"v_xor_b32 {vA}, {vA}, {vI}")
        a(f"v_lshlrev_b32 {vA}, 4, {vA}")
        a(f"v_lshl_add_u32 v{VKA+t}, {vI}, 8, {vA}")
    a(f"s_lshl_b32 {sT0}, {sWv}, 15")
    for t in range(4):
        a(f"v_add_u32 v{VKA+t}, {sT0}, v{VKA+t}")
    p1a_compute(128 * 2048, sL1, True, between=lambda tt: uk_load())
    while ukn[0] < 8: uk_load()
    stamp(1)
    q_issue()
    def refix():
        a(f"s_add_u32 {sQb}, {sN}, {sFast}")
        hello_issue()
    poll(q_issue, QTAGS, "q", 1, fix=(hello_finish, refix, hello_finish))
    stamp(8)
    if cfg.stamps: a(f"s_mov_b32 s{66+2*14}, {sFast}"); a(f"s_mov_b32 s{67+2*14}, 0")
    if cfg.stamps: a(f"s_sub_u32 s{66+2*15}, {cfg.spin}, {sSpin}"); a(f"s_mov_b32 s{67+2*15}, 0")
    a.vm = []
    for T2 in range(2):
        for t in range(4):
            a.lds(f"ds_read_b128 {R(116 + 4*(T2*4+t), 4)}, v{VKA+t} offset:{(6+T2)*4096}", "ukr")
    q_finish()
    DA = 68
    a(f"""
    v_lshlrev_b32 {vA}, 16, {vBp}
    v_lshl_add_u32 {vA}, {vKg}, 4, {vA}
    s_lshl_b32 {sT0}, {sH}, 11
    s_and_b32 {sT1}, {sL1}, 3
    s_lshl_b32 {sT1}, {sT1}, 9
    s_add_u32 {sT0}, {sT0}, {sT1}
    s_lshl_b32 {sT1}, {sWv}, 7
    s_add_u32 {sT0}, {sT0}, {sT1}
    s_add_u32 {sT0}, {sT0}, {QA}
    v_mov_b32 v81, {vTag}
    v_mov_b32 v83, {vTag}
    v_mov_b32 v89, {vTag}
    v_mov_b32 v91, {vTag}
    v_and_b32 {vB_}, 7, {vLane}
    v_cmp_eq_u32 vcc, 0, {vB_}
    """)
    a.wait_lg()
    for t in range(4):
        for T2 in range(2):
            n = T2 * 4 + t
            c = "0" if t == 0 else R(DA + 4*T2, 4)
            a(f"v_mfma_f32_16x16x32_bf16 {R(DA+4*T2,4)}, {R(116+4*n,4)}, {R(VQF+4*t,4)}, {c}")
    a(f"""
    v_cvt_pk_bf16_f32 v80, v{DA}, v{DA+1}
    v_cvt_pk_bf16_f32 v82, v{DA+2}, v{DA+3}
    v_cvt_pk_bf16_f32 v88, v{DA+4}, v{DA+5}
    v_cvt_pk_bf16_f32 v90, v{DA+6}, v{DA+7}
    s_and_saveexec_b64 {EX}, vcc
    buffer_store_dwordx4 v[80:83], {vA}, {WS}, {sT0} offen sc1
    buffer_store_dwordx4 v[88:91], {vA}, {WS}, {sT0} offen offset:64 sc1
    s_mov_b64 exec, {EX}
    s_mov_b32 s20, s40
    s_mov_b32 s21, s41
    s_mov_b32 s22, 67108864
    """)
    stamp(6)
    if cfg.pt == 2: pretouch("S")
    a(f"""
    s_mov_b32 s8, s36
    s_mov_b32 s9, s37
    s_mov_b32 s12, s100
    s_mov_b32 s13, s101
    s_and_b32 {sT0}, {sL3}, 3
    s_mul_i32 {sT0}, {sT0}, 144
    s_mul_i32 {sT1}, {sWv}, 36
    s_add_u32 {sT0}, {sT0}, {sT1}
    s_lshl_b32 {sX1}, {sT0}, 1
    s_lshl_b32 {sW1}, {sT0}, 13
    s_lshr_b32 {sT1}, {sL3}, 2
    s_lshl_b32 {sT1}, {sT1}, 8
    s_add_u32 {sW1}, {sW1}, {sT1}
    """)
    hello_issue()
    kn = 0
    for _ in range(cfg.s_k0):
        throttle(cfg.s_d0); k_tile(kn); kn += 1
    x_loads(); w1_loads()
    for _ in range(cfg.s_k1):
        k_tile(kn); kn += 1
    hello_finish()
    p1a_compute(0, sL3, False)
    stamp(9)
    while kn < 8:
        throttle(cfg.s_dk); k_tile(kn); kn += 1
    stamp(7)
    a(f"""
    s_bfe_u32 {sT0}, {sLA}, 0x40002
    s_lshl_b32 {sT0}, {sT0}, 1
    s_lshr_b32 {sT1}, {sWv}, 1
    s_add_u32 {sT0}, {sT0}, {sT1}
    s_lshl_b32 {sQb}, {sT0}, 13
    s_lshr_b32 {sT0}, {sLA}, 6
    s_lshl_b32 {sT0}, {sT0}, 10
    s_add_u32 {sQb}, {sQb}, {sT0}
    s_and_b32 {sT0}, {sWv}, 1
    s_lshl_b32 {sT0}, {sT0}, 9
    s_add_u32 {sQb}, {sQb}, {sT0}
    s_add_u32 {sN}, {sQb}, {QP}
    s_add_u32 {sQb}, {sN}, {sFast}
    """)
    q_issue()
    vnext = [0]
    def v_load(n):
        T, r = n // 4, n % 4
        if cfg.s_dv and len(a.vm) >= cfg.s_dv:
            keep = cfg.s_dv - 1
            a(f"s_waitcnt vmcnt({keep})"); a.vm = a.vm[len(a.vm) - keep:]
        if r == 0 or vnext[1] != T:
            a(f"s_add_u32 {sUO}, {sRot}, {T}")
            a(f"s_and_b32 {sUO}, {sUO}, 7")
            a(f"s_lshl_b32 {sUO}, {sUO}, 12")
            a(f"s_add_u32 {sUO}, {sKB}, {sUO}")
            vnext[1] = T
        a.vmem(f"buffer_load_dwordx4 a[{4*n}:{4*n+3}], v{VVO}, {VV}, {sUO} offen offset:{r*256}{NT}", f"v{n}")
    vnext.append(-1)
    def v_more(k):
        for _ in range(k):
            if vnext[0] < 32:
                v_load(vnext[0]); vnext[0] += 1
    v_more(cfg.s_nv1)
    RING = 116; NR = 8; SC = 148; PK = 180
    poll(q_issue, QTAGS, "q", 0)
    q_finish()
    stamp(2)
    steps = [(T, t) for T in range(8) for t in range(4)]
    def kread(idx):
        T, t = steps[idx]
        a.lds(f"ds_read_b128 {R(RING + 4*(idx % NR), 4)}, v{VKA+t} offset:{T*4096}", f"kr{idx}")
    for idx in range(NR): kread(idx)
    for idx, (T, t) in enumerate(steps):
        a.wait_lg(f"kr{idx}")
        c = "0" if t == 0 else R(SC+4*T, 4)
        a(f"v_mfma_f32_16x16x32_bf16 {R(SC+4*T,4)}, {R(RING + 4*(idx % NR),4)}, {R(VQF+4*t,4)}, {c}")
        if idx + NR < len(steps): kread(idx + NR)
        if cfg.s_nv2 and idx % (32 // cfg.s_nv2) == 0: v_more(1)
    vM, vL = "v196", "v197"
    a(f"v_max3_f32 {vM}, v{SC}, v{SC+1}, v{SC+2}")
    for k in range(3, 31, 2):
        a(f"v_max3_f32 {vM}, {vM}, v{SC+k}, v{SC+k+1}")
    a(f"v_max_f32 {vM}, {vM}, v{SC+31}")
    xlane_reduce(vM, "v_max_f32", vA)
    a(f"v_mul_f32 {vM}, {sC1}, {vM}")
    for k in range(32):
        a(f"v_fma_f32 v{SC+k}, v{SC+k}, {sC1}, -{vM}")
    for k in range(32):
        a(f"v_exp_f32 v{SC+k}, v{SC+k}")
        if cfg.s_nv3 and k % (32 // cfg.s_nv3) == 0: v_more(1)
    a(f"v_add_f32 {vL}, v{SC}, v{SC+1}")
    for k in range(2, 32):
        a(f"v_add_f32 {vL}, {vL}, v{SC+k}")
    for k in range(16):
        a(f"v_cvt_pk_bf16_f32 v{PK+k}, v{SC+2*k}, v{SC+2*k+1}")
    xlane_reduce(vL, "v_add_f32", vA)
    v_more(32)
    if not cfg.fstamps: stamp(3)
    OACC = 68
    wo_setup(sQb, sUML)
    won = 0
    build_frag(FR0, f"v{PK}", 0)
    for n in range(32):
        cur = FR0 if n % 2 == 0 else FR1
        nxt = FR1 if n % 2 == 0 else FR0
        if n < 31: build_frag(nxt, f"v{PK + (n+1)//2}", (n+1) % 2)
        a.try_wait_vm(f"v{n}")
        c = "0" if n == 0 else R(OACC, 4)
        a(f"v_mfma_f32_16x16x32_bf16 {R(OACC,4)}, a[{4*n}:{4*n+3}], {R(cur,4)}, {c}")
        if n >= cfg.s_wo and won < 12:
            wo_load(won, sQb, sUML); won += 1
    if cfg.s_wo < 99:
        while won < 12: wo_load(won, sQb, sUML); won += 1
    if not cfg.fstamps: stamp(4)
    a(f"""
    v_lshlrev_b32 {vA}, 3, {vBp}
    s_lshl_b32 {sT0}, {sWv}, 4
    s_add_u32 {sT0}, {sT0}, {X + MLS}
    v_add_u32 {vA}, {sT0}, {vA}
    v_and_b32 {vB_}, 0x37, {vLane}
    v_cmp_eq_u32 vcc, 0, {vB_}
    s_and_saveexec_b64 {EX}, vcc
    """)
    a.lds(f"ds_write_b64 {vA}, v[196:197]", "mlw")
    a(f"s_mov_b64 exec, {EX}")
    red_write(OACC, vRedW, RED2)
    a(f"""
    v_lshrrev_b32 v102, 7, {vTau}
    v_and_b32 v103, 127, {vTau}
    v_lshlrev_b32 {vC}, 13, v102
    v_lshl_add_u32 {vC}, v103, 3, {vC}
    v_lshlrev_b32 v104, 7, v102
    v_lshlrev_b32 {vA}, 3, v102
    v_add_u32 {vA}, {X + MLS}, {vA}
    s_bfe_u32 {sT0}, {sLA}, 0x40002
    s_lshl_b32 {sT1}, {sT0}, 14
    s_and_b32 {sT2}, {sLA}, 3
    s_lshl_b32 {sT3}, {sT2}, 11
    s_add_u32 {sT1}, {sT1}, {sT3}
    s_lshr_b32 {sT3}, {sLA}, 6
    s_lshl_b32 {sT3}, {sT3}, 10
    s_add_u32 {sT1}, {sT1}, {sT3}
    s_add_u32 {sUO}, {sT1}, {UO}
    s_lshl_b32 {sT1}, {sT0}, 8
    s_lshr_b32 {sT3}, {sLA}, 6
    s_lshl_b32 {sT3}, {sT3}, 6
    s_add_u32 {sT1}, {sT1}, {sT3}
    s_lshl_b32 {sT2}, {sT2}, 4
    s_add_u32 {sT1}, {sT1}, {sT2}
    s_add_u32 {sUML}, {sT1}, {UML}
    v_mov_b32 v95, {vTag}
    v_mov_b32 v99, {vTag}
    v_mov_b32 v101, {vTag}
    """)
    a.barrier()
    for w in range(4):
        a.lds(f"ds_read_b64 v[{80+2*w}:{81+2*w}], {vA} offset:{16*w}", "mlr")
    for w in range(4):
        a.lds(f"ds_read_b32 v{88+w}, {vTau4} offset:{RED2 + w*1024}", "redr")
    a.wait_lg()
    a("v_max3_f32 v98, v80, v82, v84")
    a("v_max_f32 v98, v98, v86")
    for w in range(4):
        a(f"v_sub_f32 v{80+2*w}, v{80+2*w}, v98")
    for w in range(4):
        a(f"v_exp_f32 v{80+2*w}, v{80+2*w}")
    a("v_mul_f32 v94, v80, v88")
    a("v_mul_f32 v100, v80, v81")
    for w in range(1, 4):
        a(f"v_fmac_f32 v94, v{80+2*w}, v{88+w}")
        a(f"v_fmac_f32 v100, v{80+2*w}, v{81+2*w}")
    a(f"s_add_u32 {sT0}, {sUO}, {FOFF}")
    a(f"s_add_u32 {sT1}, {sUML}, {FOFF}")
    if cfg.fast: a(f"buffer_store_dwordx2 v[94:95], {vC}, {WS}, {sT0} offen")
    a(f"""
    v_cmp_eq_u32 vcc, 0, v103
    s_and_saveexec_b64 {EX}, vcc
    s_cbranch_execz L_s_noml
    buffer_store_dwordx4 v[98:101], v104, {WS}, {sT1} offen
    buffer_store_dwordx4 v[98:101], v104, {WS}, {sUML} offen sc1
    L_s_noml:
    s_mov_b64 exec, {EX}
    buffer_store_dwordx2 v[94:95], {vC}, {WS}, {sUO} offen sc1
    s_mov_b64 exec, {EX}
    """)
    stamp(5)
    a(f"s_lshr_b32 {sH}, {sL3}, 2")
    a(f"s_lshr_b32 {sR}, {sL3}, 2")
    if won < 12:
        wo_setup(sQb, sT3)
        while won < 12: wo_load(won, sQb, sT3); won += 1
    a("s_branch L_stage4")

    a.label("L_roleB")
    a.vm = []; a.lg = []
    a(f"""
    s_sub_u32 {sKB}, {sW}, 128
    s_lshl_b32 {sKB}, {sKB}, 17
    s_lshl_b32 {sT0}, {sWv}, 15
    s_add_u32 {sKB}, {sKB}, {sT0}
    s_mul_i32 {sRot}, {sW}, {20 if cfg.rot else 0}
    s_mul_i32 {sT0}, {sWv}, {12 if cfg.rot else 0}
    s_add_u32 {sRot}, {sRot}, {sT0}
    """)
    if cfg.b_r1:
        c_group(0, 0, 1)
    else:
        for g in range(cfg.b_g1): c_group(g)
    common()
    if cfg.pt == 1: pretouch("B")
    if cfg.cstamps: mute.update(range(5, 13))
    def c_throttled(g):
        d = cfg.b_d0 if g < cfg.b_gr else cfg.b_d
        back = g - d // 4
        if back >= 0: a.try_wait_vm(f"c{back}")
        c_group(g)
    VG = 128
    a(f"s_lshr_b32 {sH}, {sL3}, 2")
    a(f"""
    s_bfe_u32 {sT0}, {sW}, 0x10006
    s_lshl_b32 {sQb}, {sT0}, 16
    s_lshl_b32 {sT0}, {sWv}, 14
    s_add_u32 {sQb}, {sQb}, {sT0}
    s_add_u32 {sQb}, {sQb}, {QA}
    """)
    def gather_first():
        hello_issue()
        for k in range(16):
            a(f"s_add_u32 {sT3}, {sQb}, {k*1024}")
            a.vmem(f"buffer_load_dwordx4 {R(VG+4*k,4)}, {vL16}, {WS}, {sT3} offen{' sc1' if cfg.b_qsc1 else ''}", "qa")
    gi = cfg.b_g1
    if cfg.b_r1:
        c_group(0, 1, 4); gi = 1
        while 4 * gi <= cfg.b_r1:
            c_group(gi); gi += 1
    while gi < 8 and gi - (cfg.b_d0 if gi < cfg.b_gr else cfg.b_d) // 4 < 0:
        c_throttled(gi)
        if gi == cfg.b_qpos: gather_first()
        gi += 1
    S1 = 64; RG = 80; AC = 112; AQ = 120; A2 = 244
    vHx = "v243"; vB0, vB1 = "v206", "v207"
    a(f"""
    v_and_b32 {vA}, 3, {vLane}
    v_lshlrev_b32 {vA}, 2, {vA}
    v_bfe_u32 {vB_}, {vLane}, 2, 2
    v_or_b32 {vA}, {vA}, {vB_}
    v_lshrrev_b32 {vB_}, 5, {vLane}
    v_xor_b32 {vA}, {vA}, {vB_}
    v_lshlrev_b32 {vA}, 4, {vA}
    v_and_b32 {vB_}, 31, {vLane}
    v_lshl_add_u32 {vA}, {vB_}, 10, {vA}
    s_lshl_b32 {sT0}, {sWv}, 15
    v_add_u32 v{AC}, {sT0}, {vA}
    v_add_u32 v{AQ}, {X}, {vA}
    v_lshlrev_b32 {vHx}, 2, {vB_}
    v_add_u32 {vHx}, {X}, {vHx}
    """)
    for u in range(1, 8):
        a(f"v_xor_b32 v{AC+u}, {u << 5}, v{AC}")
        a(f"v_xor_b32 v{AQ+u}, {u << 5}, v{AQ}")
    a(f"""
    v_bfe_u32 v64, {vLane}, 2, 2
    v_lshrrev_b32 v65, 5, {vLane}
    v_bfe_u32 v66, {vLane}, 4, 1
    v_bfe_u32 v67, {vLane}, 1, 1
    v_lshl_add_u32 v66, v66, 1, v67
    v_xor_b32 v66, v66, v65
    v_lshl_add_u32 v66, v64, 2, v66
    v_lshlrev_b32 v66, 4, v66
    v_and_b32 v67, 1, {vLane}
    v_lshl_add_u32 v66, v67, 3, v66
    v_lshl_add_u32 v67, v65, 2, v64
    v_lshl_add_u32 v66, v67, 10, v66
    s_lshl_b32 {sT0}, {sWv}, 8
    v_add_u32 v66, {sT0}, v66
    """)
    for ct in range(4):
        a(f"v_xor_b32 v{A2+2*ct}, {ct << 6}, v66")
        a(f"v_xor_b32 v{A2+2*ct+1}, 32, v{A2+2*ct}")
        a(f"v_add_u32 v{A2+2*ct+1}, 8192, v{A2+2*ct+1}")
    a(f"""
    v_lshrrev_b32 {vA}, 1, {vLane}
    v_lshlrev_b32 {vA}, 4, {vA}
    v_and_b32 {vB_}, 1, {vLane}
    v_lshl_add_u32 {vA}, {vB_}, 3, {vA}
    s_lshl_b32 {sT0}, {sWv}, 1
    s_and_b32 {sT0}, {sT0}, 3
    s_lshl_b32 {sT0}, {sT0}, 4
    s_add_u32 {sT1}, {sT0}, 16
    v_xor_b32 {vB0}, {sT0}, {vA}
    v_xor_b32 {vB1}, {sT1}, {vA}
    s_lshl_b32 {sT0}, {sWv}, 13
    s_add_u32 {sT0}, {sT0}, {X}
    v_add_u32 {vB0}, {sT0}, {vB0}
    v_add_u32 {vB1}, {sT0}, {vB1}
    s_mov_b32 {sSpin}, {cfg.spin}
    s_mov_b32 {sPend}, 0xffff
    """)
    while gi < 8:
        c_throttled(gi)
        if gi == cfg.b_qpos: gather_first()
        gi += 1
    if cfg.b_qpos < cfg.b_g1 or cfg.b_qpos > 7: gather_first()
    stamp(2)
    Ltry = a.newlabel("L_try"); Lok = a.newlabel("L_ok"); Lchk = a.newlabel("L_chk")
    a.try_wait_vm("qa")
    stamp(3)
    hello_finish()
    a(f"s_branch {Lchk}")
    a.label(Ltry)
    for k in range(16):
        sk = a.newlabel("L_sk")
        a(f"s_bitcmp1_b32 {sPend}, {k}")
        a(f"s_cbranch_scc0 {sk}")
        a(f"s_add_u32 {sT3}, {sQb}, {k*1024}")
        a(f"buffer_load_dwordx4 {R(VG+4*k,4)}, {vL16}, {WS}, {sT3} offen sc1")
        a.label(sk)
    a("s_waitcnt vmcnt(0)")
    a.label(Lchk)
    tagcheck([VG + 4*k + j for k in range(16) for j in (1, 3)], Lok)
    for k in range(16):
        sk = a.newlabel("L_sk")
        a(f"""s_mov_b64 {EX}, exec
        v_cmpx_eq_u32 vcc, {vTag}, v{VG+4*k+1}
        v_cmpx_eq_u32 vcc, {vTag}, v{VG+4*k+3}
        s_nop 3
        s_cmp_eq_u64 exec, {EX}
        s_mov_b64 exec, {EX}
        s_cbranch_scc0 {sk}
        s_bitset0_b32 {sPend}, {k}""")
        a.label(sk)
    a(f"s_sub_u32 {sSpin}, {sSpin}, 1")
    a(f"s_cmp_eq_u32 {sSpin}, 0")
    a(f"s_cbranch_scc0 {Ltry}")
    timeout_mark(2)
    a.label(Lok)
    if cfg.stamps: a(f"s_sub_u32 s{66+2*15}, {cfg.spin}, {sSpin}"); a(f"s_mov_b32 s{67+2*15}, 0")
    stamp(4)
    def uv_issue():
        a(f"""
        v_lshlrev_b32 v208, 16, {vKg}
        v_lshl_add_u32 v208, {vI}, 4, v208
        s_and_b32 {sT0}, {sL3}, 3
        s_lshl_b32 {sT0}, {sT0}, 7
        s_lshl_b32 {sT2}, {sWv}, 5
        s_add_u32 {sT0}, {sT0}, {sT2}
        s_lshl_b32 {sT0}, {sT0}, 13
        s_lshl_b32 {sT2}, {sH}, 8
        s_add_u32 {sT0}, {sT0}, {sT2}
        """)
        for tt in range(8):
            a.vmem(f"buffer_load_dwordx4 a[{32+4*tt}:{35+4*tt}], v208, {VV}, {sT0} offen{WNT}", "uv")
            if tt < 7: a(f"s_add_u32 {sT0}, {sT0}, 8192")
    for k in range(16):
        u, half = k >> 1, k & 1
        if half == 0:
            a(f"v_xor_b32 v204, {(u & 3) << 6}, {vB0 if u < 4 else vB1}")
        a(f"v_mov_b32 v{VG+4*k+1}, v{VG+4*k+2}")
        a.lds(f"ds_write_b64 v204, v[{VG+4*k}:{VG+4*k+1}] offset:{u*1024 + half*512}", "qw")
    if "c7" in a.vm: a.wait_vm("c7")
    a.barrier()
    stamp(1)
    if cfg.pt == 2: pretouch("B2")
    D1 = 4
    def g1read(t):
        s = RG + 8 * (t % D1)
        a.lds(f"ds_read_b128 {R(s,4)}, v{AC + (t & 7)} offset:{(t >> 3)*256}", f"g1c{t}")
        a.lds(f"ds_read_b128 {R(s+4,4)}, v{AQ + (t & 7)} offset:{(t >> 3)*256}", f"g1q{t}")
    for t in range(D1): g1read(t)
    if cfg.b_uv == 0: uv_issue()
    wo_setup(sUO, sUML)
    bwo = [0]
    def b_wo(k=1):
        for _ in range(k):
            if bwo[0] < 12:
                wo_load(bwo[0], sUO, sUML); bwo[0] += 1
    if cfg.b_wo == 0: b_wo(12)
    for t in range(32):
        a.wait_lg(f"g1q{t}")
        s = RG + 8 * (t % D1)
        c = "0" if t == 0 else R(S1, 16)
        a(f"v_mfma_f32_32x32x16_bf16 {R(S1,16)}, {R(s,4)}, {R(s+4,4)}, {c}")
        if t + D1 < 32: g1read(t + D1)
    stamp(5)
    vM, vL = "v196", "v197"
    a(f"s_lshl_b32 {sT0}, {sWv}, 7")
    a(f"v_add_u32 v205, {sT0}, {vHx}")
    a(f"v_max3_f32 {vM}, v{S1}, v{S1+1}, v{S1+2}")
    for k in range(3, 15, 2):
        a(f"v_max3_f32 {vM}, {vM}, v{S1+k}, v{S1+k+1}")
    a(f"v_max_f32 {vM}, {vM}, v{S1+15}")
    a(f"v_mov_b32 {vA}, {vM}")
    a(f"v_permlane32_swap_b32 {vM}, {vA}")
    a(f"v_max_f32 {vM}, {vM}, {vA}")
    a.barrier()
    a.lds(f"ds_write_b32 v205, {vM} offset:{MX}", "mxw")
    a.barrier()
    for w in range(4):
        a.lds(f"ds_read_b32 v{80+w}, {vHx} offset:{MX + 128*w}", "mxr")
    a(f"s_lshl_b32 {sT0}, {sWv}, 11")
    a(f"s_add_u32 {sT0}, {sT0}, {X}")
    a(f"v_add_u32 v204, {sT0}, {vL16}")
    a.wait_lg()
    a(f"v_max3_f32 {vM}, v80, v81, v82")
    a(f"v_max_f32 {vM}, {vM}, v83")
    a(f"v_mul_f32 {vM}, {sC1}, {vM}")
    if cfg.b_uv == 1: uv_issue()
    for k in range(16):
        a(f"v_fma_f32 v{S1+k}, v{S1+k}, {sC1}, -{vM}")
    for k in range(16):
        a(f"v_exp_f32 v{S1+k}, v{S1+k}")
        if cfg.b_wo == 1: b_wo(1)
    for k in range(4):
        a(f"v_cvt_pk_bf16_f32 v{80+k}, v{S1+2*k}, v{S1+2*k+1}")
    a.lds(f"ds_write_b128 v204, v[80:83] offset:{PF}", "pfw")
    for k in range(4, 8):
        a(f"v_cvt_pk_bf16_f32 v{80+k}, v{S1+2*k}, v{S1+2*k+1}")
    a.lds(f"ds_write_b128 v204, v[84:87] offset:{PF + 1024}", "pfw")
    a(f"v_add_f32 {vL}, v{S1}, v{S1+1}")
    for k in range(2, 16):
        a(f"v_add_f32 {vL}, {vL}, v{S1+k}")
    a(f"v_mov_b32 {vB_}, {vL}")
    a(f"v_permlane32_swap_b32 {vL}, {vB_}")
    a(f"v_add_f32 {vL}, {vL}, {vB_}")
    a.lds(f"ds_write_b32 v205, {vL} offset:{LS}", "lsw")
    a(f"v_add_u32 v204, {X}, {vL16}")
    a.barrier()
    PFR = 208
    for kt in range(8):
        a.lds(f"ds_read_b128 {R(PFR+4*kt,4)}, v204 offset:{PF + 1024*kt}", "pfr")
    for w in range(4):
        a.lds(f"ds_read_b32 v{80+w}, {vHx} offset:{LS + 128*w}", "lsr")
    a.wait_lg()
    a(f"v_add_f32 v80, v80, v81")
    a(f"v_add_f32 v82, v82, v83")
    a(f"v_add_f32 {vL}, v80, v82")
    a.barrier()
    stamp(12)
    OA = 128; RG2 = 80; D2 = 6
    st2 = [(kt, ct) for kt in range(8) for ct in range(4)]
    def g2read(idx):
        kt, ct = st2[idx]
        if kt == 4 and ct == 0:
            for q in range(8): a(f"v_add_u32 v{A2+q}, 65536, v{A2+q}")
        s = RG2 + 4 * (idx % D2)
        off = (kt & 3) * 16384
        a.lds(f"ds_read_b64_tr_b16 v[{s}:{s+1}], v{A2+2*ct} offset:{off}", f"g2a{idx}")
        a.lds(f"ds_read_b64_tr_b16 v[{s+2}:{s+3}], v{A2+2*ct+1} offset:{off}", f"g2b{idx}")
    for idx in range(D2): g2read(idx)
    for idx, (kt, ct) in enumerate(st2):
        a.wait_lg(f"g2b{idx}")
        s = RG2 + 4 * (idx % D2)
        c = "0" if kt == 0 else R(OA + 16*ct, 16)
        a(f"v_mfma_f32_32x32x16_bf16 {R(OA+16*ct,16)}, {R(s,4)}, {R(PFR+4*kt,4)}, {c}")
        if idx + D2 < len(st2): g2read(idx + D2)
    stamp(6)
    a(f"""
    v_and_b32 {vA}, 31, {vLane}
    v_lshlrev_b32 v204, 10, {vA}
    v_and_b32 {vA}, 7, {vLane}
    v_lshl_add_u32 v204, {vA}, 4, v204
    v_lshrrev_b32 {vA}, 5, {vLane}
    v_lshl_add_u32 v204, {vA}, 3, v204
    s_lshl_b32 {sT0}, {sWv}, 8
    s_add_u32 {sT0}, {sT0}, {X}
    v_add_u32 v204, {sT0}, v204
    """)
    for ct in range(4):
        for g in range(4):
            i0 = OA + 16*ct + 4*g
            t = 80 + 2 * ((ct*4+g) % 8)
            a(f"v_cvt_pk_bf16_f32 v{t}, v{i0}, v{i0+1}")
            a(f"v_cvt_pk_bf16_f32 v{t+1}, v{i0+2}, v{i0+3}")
            ad = f"v{96 + (ct*4+g) % 8}"
            a(f"v_xor_b32 {ad}, {(4*ct+g) << 4}, v204")
            a.lds(f"ds_write_b64 {ad}, v[{t}:{t+1}]", "tbw")
            if (ct*4+g) % 8 == 7 and ct < 3: a.wait_lg()
    a(f"""
    s_lshl_b32 {sT0}, {sWv}, 13
    s_add_u32 {sT0}, {sT0}, {X}
    v_add_u32 v204, {sT0}, {vL16}
    v_lshlrev_b32 v205, 15, {vKg}
    v_lshl_add_u32 v205, {vI}, 4, v205
    s_sub_u32 {sT1}, {sW}, 128
    s_lshl_b32 {sT1}, {sT1}, 8
    s_lshl_b32 {sT0}, {sWv}, 20
    s_add_u32 {sT1}, {sT1}, {sT0}
    s_add_u32 {sT1}, {sT1}, {PB}
    """)
    for u in range(8):
        a(f"v_xor_b32 v{104+u}, {u << 4}, v204")
    a.barrier()
    for u in range(8):
        a.lds(f"ds_read_b128 {R(128+4*u,4)}, v{104+u} offset:{u*1024}", f"tbr{u}")
    for u in range(8):
        a.wait_lg(f"tbr{u}")
        a.vmem(f"buffer_store_dwordx4 {R(128+4*u,4)}, v205, {WS}, {sT1} offen sc1", "pb_st")
        if u < 7: a(f"s_add_u32 {sT1}, {sT1}, 131072")
    stamp(7)
    a(f"""
    v_mov_b32 v80, {vM}
    v_mov_b32 v81, {vTag}
    v_mov_b32 v82, {vL}
    v_mov_b32 v83, {vTag}
    v_lshlrev_b32 {vA}, 11, {vLane}
    s_sub_u32 {sT1}, {sW}, 128
    s_lshl_b32 {sT1}, {sT1}, 4
    s_add_u32 {sT1}, {sT1}, {PBML}
    s_lshl_b32 {sQb}, {sH}, 11
    s_add_u32 {sQb}, {sQb}, {PBML}
    v_lshlrev_b32 v204, 4, {vTau}
    """)
    a(f"s_waitcnt vmcnt(0)")
    a("s_barrier")
    a(f"""
    v_cmp_gt_u32 vcc, 32, {vTau}
    s_and_saveexec_b64 {EX}, vcc
    s_cbranch_execz L_b_noml
    buffer_store_dwordx4 v[80:83], {vA}, {WS}, {sT1} offen sc1
    L_b_noml:
    s_mov_b64 exec, {EX}
    """)
    stamp(8)
    if cfg.b_uv == 2: uv_issue()
    if cfg.b_wo <= 2: b_wo(12)
    a(f"s_cmp_ge_u32 {sWv}, 2")
    a("s_cbranch_scc1 L_b_skipml")
    def ml_issue():
        a.vmem(f"buffer_load_dwordx4 v[80:83], v204, {WS}, {sQb} offen sc1", "pbml")
    a.vm = []
    ml_issue()
    poll(ml_issue, [81, 83], "pbml", 3)
    a("v_mov_b32 v84, v80")
    wave_reduce("v84", "v_max_f32", vA)
    a("v_sub_f32 v80, v80, v84")
    a("v_exp_f32 v80, v80")
    a(f"v_lshlrev_b32 {vC}, 1, {vTau}")
    a("v_mul_f32 v85, v80, v82")
    wave_reduce("v85", "v_add_f32", vA)
    a("v_rcp_f32 v85, v85")
    a(f"v_add_u32 {vC}, {X}, {vC}")
    a("v_mul_f32 v80, v80, v85")
    a("v_cvt_pk_bf16_f32 v80, v80, v80")
    a.lds(f"ds_write_b16 {vC}, v80 offset:{XS2}", "xs2w")
    a.wait_lg()
    a.label("L_b_skipml")
    a.vm = []
    vXa = "v205"
    a(f"""
    s_lshl_b32 {sT0}, {sL3}, 15
    s_lshl_b32 {sT1}, {sWv}, 13
    s_add_u32 {sT0}, {sT0}, {sT1}
    s_add_u32 {sT0}, {sT0}, {PB}
    v_lshlrev_b32 v204, 11, {vKg}
    v_lshl_add_u32 v204, {vI}, 4, v204
    s_lshl_b32 {sT1}, {sWv}, 6
    s_add_u32 {sT1}, {sT1}, {X}
    v_lshlrev_b32 {vXa}, 4, {vKg}
    v_add_u32 {vXa}, {sT1}, {vXa}
    s_add_u32 {sUO}, {sL3}, {(UO + 0x40000)//2048}
    s_lshl_b32 {sUO}, {sUO}, 11
    """)
    a.barrier()
    stamp(9)
    for tt in range(8):
        a.vmem(f"buffer_load_dwordx4 {R(128+4*tt,4)}, v204, {WS}, {sT0} offen offset:{256*tt} sc1", f"pb{tt}")
    if cfg.b_uv == 3: uv_issue()
    if cfg.b_wo == 3:
        wo_setup(sUML, sQb)
        for n in range(12): wo_load(n, sUML, sQb)
    a.lds(f"ds_read_b128 v[88:91], {vXa} offset:{XS2}", "xf")
    a(f"s_lshr_b32 {sT0}, {sWv}, 1")
    a(f"v_cmp_eq_u32 vcc, {sT0}, {vBp}")
    a.wait_lg()
    for r in range(4):
        a(f"v_cndmask_b32 v{88+r}, 0, v{88+r}, vcc")
    gemv8([R(128+4*tt, 4) for tt in range(8)], 88, ACC, [f"pb{tt}" for tt in range(8)])
    red_write(ACC, vRedW, REDA)
    a(f"v_lshlrev_b32 {vC}, 1, {vTau}")
    a(f"v_add_u32 {vC}, {X}, {vC}")
    a(f"v_lshl_add_u32 {vXa}, {vBp}, 8, {vXa}")
    a.barrier()
    red_sum4(80, 84, REDA, 1024)
    a("v_cvt_pk_bf16_f32 v80, v80, v80")
    a.lds(f"ds_write_b16 {vC}, v80 offset:{XS3}", "xs3w")
    a.barrier()
    a.lds(f"ds_read_b128 v[88:91], {vXa} offset:{XS3}", "xf")
    a.wait_lg()
    if cfg.b_uv == 3: a.try_wait_vm("uv")
    gemv8([f"a[{32+4*tt}:{35+4*tt}]" for tt in range(8)], 88, ACC, None)
    red_write(ACC, vRedW, REDB)
    a(f"""
    v_mov_b32 v81, {vTag}
    v_mov_b32 v92, 0
    v_mov_b32 v93, {vTag}
    v_mov_b32 v94, 0x3e800000
    v_mov_b32 v95, {vTag}
    v_lshrrev_b32 {vA}, 7, {vTau}
    v_lshlrev_b32 {vA}, 6, {vA}
    s_lshl_b32 {sT0}, {sH}, 7
    s_and_b32 {sT1}, {sL3}, 3
    s_lshl_b32 {sT1}, {sT1}, 4
    s_add_u32 {sT0}, {sT0}, {sT1}
    s_add_u32 {sT0}, {sT0}, {UML + 0x1000}
    s_add_u32 {sT1}, {sT0}, {FOFF}
    v_and_b32 {vB_}, 127, {vTau}
    v_cmp_eq_u32 vcc, 0, {vB_}
    s_and_saveexec_b64 {EX}, vcc
    s_cbranch_execz L_b_noml2
    buffer_store_dwordx4 v[92:95], {vA}, {WS}, {sT1} offen
    buffer_store_dwordx4 v[92:95], {vA}, {WS}, {sT0} offen sc1
    L_b_noml2:
    s_mov_b64 exec, {EX}
    """)
    a.barrier()
    red_sum4(80, 84, REDB, 1024)
    a(f"s_add_u32 {sT0}, {sUO}, {FOFF}")
    if cfg.fast: a(f"buffer_store_dwordx2 v[80:81], {vTau8}, {WS}, {sT0} offen")
    a(f"buffer_store_dwordx2 v[80:81], {vTau8}, {WS}, {sUO} offen sc1")
    stamp(10)
    a(f"s_add_u32 {sR}, {sH}, 32")

    a.label("L_stage4")
    a.vm = []; a.lg = []; a.smem = cfg.stamps
    a(f"""
    s_and_b32 {sT0}, {sL3}, 3
    s_cmp_eq_u32 {sT0}, 3
    s_cbranch_scc1 L_final
    s_lshl_b32 {sUO}, {sBr}, 18
    s_lshl_b32 {sT0}, {sH}, 13
    s_add_u32 {sUO}, {sUO}, {sT0}
    s_add_u32 {sUO}, {sUO}, {UO}
    s_lshl_b32 {sUML}, {sBr}, 12
    s_lshl_b32 {sT0}, {sH}, 7
    s_add_u32 {sUML}, {sUML}, {sT0}
    s_add_u32 {sUML}, {sUML}, {UML}
    s_add_u32 {sUO}, {sUO}, {sFast}
    s_add_u32 {sUML}, {sUML}, {sFast}
    v_lshrrev_b32 v207, 7, {vTau}
    v_lshlrev_b32 v207, 6, v207
    """)
    def u_issue():
        a(f"s_add_u32 {sT3}, {sUO}, 4096")
        a.vmem(f"buffer_load_dwordx2 v[80:81], {vTau8}, {WS}, {sUO} offen sc1", "u")
        a.vmem(f"buffer_load_dwordx2 v[82:83], {vTau8}, {WS}, {sUO} offen offset:2048 sc1", "u")
        a.vmem(f"buffer_load_dwordx2 v[84:85], {vTau8}, {WS}, {sT3} offen sc1", "u")
        a.vmem(f"buffer_load_dwordx2 v[86:87], {vTau8}, {WS}, {sT3} offen offset:2048 sc1", "u")
        for s in range(4):
            a.vmem(f"buffer_load_dwordx4 v[{88+4*s}:{91+4*s}], v207, {WS}, {sUML} offen offset:{16*s} sc1", "u")
    u_issue()
    a(f"""
    v_lshlrev_b32 v110, 1, {vTau}
    v_add_u32 v110, {X}, v110
    s_lshl_b32 {sT0}, {sWv}, 6
    s_add_u32 {sT0}, {sT0}, {X}
    v_lshlrev_b32 v111, 4, {vKg}
    v_lshl_add_u32 v111, {vBp}, 8, v111
    v_add_u32 v111, {sT0}, v111
    v_lshlrev_b32 v112, 10, {vBp}
    v_lshl_add_u32 v112, {vKg}, 7, v112
    v_and_b32 {vA}, 7, {vLane}
    v_lshl_add_u32 v112, {vA}, 2, v112
    s_lshl_b32 {sT0}, {sWv}, 11
    s_add_u32 {sT0}, {sT0}, {X}
    v_add_u32 v112, {sT0}, v112
    v_lshrrev_b32 v113, 7, {vTau}
    v_and_b32 v114, 127, {vTau}
    v_lshlrev_b32 v115, 10, v113
    v_lshl_add_u32 v115, v114, 3, v115
    v_add_u32 v115, {X}, v115
    v_mul_u32_u24 v116, 4608, v113
    v_lshl_add_u32 v116, v114, 4, v116
    s_lshl_b32 {sT0}, {sBr}, 5
    s_add_u32 {sT0}, {sT0}, {sH}
    s_mul_i32 {sT0}, {sT0}, 9216
    s_and_b32 {sT1}, {sL3}, 3
    s_mul_i32 {sT1}, {sT1}, 1536
    s_add_u32 {sT0}, {sT0}, {sT1}
    s_add_u32 {sQb}, {sT0}, {OP}
    """)
    poll(u_issue, [81, 83, 85, 87] + [88+4*s+j for s in range(4) for j in (1, 3)], "u", 4)
    stamp(13)
    a("v_max3_f32 v104, v88, v92, v96")
    a("v_max_f32 v104, v104, v100")
    for s in range(4): a(f"v_sub_f32 v{88+4*s}, v{88+4*s}, v104")
    for s in range(4): a(f"v_exp_f32 v{88+4*s}, v{88+4*s}")
    a("v_mul_f32 v105, v88, v80")
    a("v_mul_f32 v106, v88, v90")
    for s in range(1, 4):
        a(f"v_fmac_f32 v105, v{88+4*s}, v{80+2*s}")
        a(f"v_fmac_f32 v106, v{88+4*s}, v{90+4*s}")
    a("v_rcp_f32 v106, v106")
    a("v_mul_f32 v105, v105, v106")
    a("v_cvt_pk_bf16_f32 v105, v105, v105")
    a.lds(f"ds_write_b16 v110, v105 offset:{XS}", "xsw")
    a.barrier()
    a.lds(f"ds_read_b128 v[88:91], v111 offset:{XS}", "xf")
    a.wait_lg()
    A0, AA, AB = 68, 92, 96
    build_frag(FR0, "v88", 0)
    for tt in range(8):
        cur = FR0 if tt % 2 == 0 else FR1
        nxt = FR1 if tt % 2 == 0 else FR0
        if tt < 7: build_frag(nxt, f"v{88 + (tt+1)//2}", (tt+1) % 2)
        c = "0" if tt == 0 else R(A0, 4)
        a(f"v_mfma_f32_16x16x32_bf16 {R(A0,4)}, a[{128+4*tt}:{131+4*tt}], {R(cur,4)}, {c}")
        acc = AA if tt % 2 == 0 else AB
        c = "0" if tt < 2 else R(acc, 4)
        a(f"v_mfma_f32_16x16x32_bf16 {R(acc,4)}, a[{160+4*(tt//2)}:{163+4*(tt//2)}], {R(cur,4)}, {c}")
    a(f"v_cmp_gt_u32 vcc, 32, {vLane}")
    red_write(A0, "v112", RED4)
    for r in range(4):
        a(f"v_cndmask_b32 v{AA+r}, v{AB+r}, v{AA+r}, vcc")
    red_write(AA, "v112", RED4 + 512)
    a.barrier()
    for w in range(4):
        a.lds(f"ds_read_b64 v[{80+2*w}:{81+2*w}], v115 offset:{RED4 + 2048*w}", "r4")
        a.lds(f"ds_read_b64 v[{88+2*w}:{89+2*w}], v115 offset:{RED4 + 2048*w + 256}", "r4")
    a(f"v_cmp_le_u32 vcc, 64, v114")
    a(f"v_mov_b32 v101, {vTag}")
    a(f"v_mov_b32 v103, {vTag}")
    a.wait_lg()
    for k in range(2):
        a(f"v_add_f32 v{80+k}, v{80+k}, v{82+k}")
        a(f"v_add_f32 v{84+k}, v{84+k}, v{86+k}")
        a(f"v_add_f32 v{88+k}, v{88+k}, v{90+k}")
        a(f"v_add_f32 v{92+k}, v{92+k}, v{94+k}")
        a(f"v_add_f32 v{80+k}, v{80+k}, v{84+k}")
        a(f"v_add_f32 v{88+k}, v{88+k}, v{92+k}")
        a(f"v_cndmask_b32 v{88+k}, 0, v{88+k}, vcc")
        a(f"v_add_f32 v{100+2*k}, v{80+k}, v{88+k}")
    a(f"""
    v_cmp_gt_u32 vcc, 96, v114
    s_and_saveexec_b64 {EX}, vcc
    buffer_store_dwordx4 v[100:103], v116, {WS}, {sQb} offen sc1
    s_mov_b64 exec, {EX}
    """)
    stamp(11)
    a("s_branch L_done")

    a.label("L_final")
    a.vm = []; a.lg = []
    a(f"""
    s_cmp_ge_u32 {sR}, 36
    s_cbranch_scc1 L_done
    s_cmp_ge_u32 {sR}, 18
    s_cselect_b32 {sT0}, 1, 0
    s_cselect_b32 {sT1}, 18, 0
    s_sub_u32 {sT1}, {sR}, {sT1}
    s_mul_i32 {sT2}, {sT0}, 4608
    s_lshl_b32 {sT3}, {sT1}, 8
    s_add_u32 {sT2}, {sT2}, {sT3}
    s_mul_i32 {sT3}, {sWv}, {16*9216}
    s_add_u32 {sQb}, {sT2}, {sT3}
    s_add_u32 {sQb}, {sQb}, {OP}
    v_mul_u32_u24 v204, 9216, {vKg}
    v_lshl_add_u32 v204, {vI}, 4, v204
    s_mul_i32 {sUO}, {sT0}, 2304
    s_lshl_b32 {sT1}, {sT1}, 6
    s_add_u32 {sUO}, {sUO}, {sT1}
    """)
    def f_issue():
        for n in range(4):
            a(f"s_add_u32 {sT3}, {sQb}, {n*4*9216}")
            a.vmem(f"buffer_load_dwordx4 v[{80+4*n}:{83+4*n}], v204, {WS}, {sT3} offen sc1", "f")
    f_issue()
    a(f"""
    s_lshl_b32 {sT0}, {sWv}, 7
    s_add_u32 {sT0}, {sT0}, {X}
    v_lshlrev_b32 v110, 3, {vI}
    v_add_u32 v110, {sT0}, v110
    v_lshlrev_b32 v111, 8, {vKg}
    v_lshl_add_u32 v111, {vI}, 3, v111
    v_add_u32 v111, {X}, v111
    v_mul_u32_u24 v112, 1152, {vKg}
    v_lshl_add_u32 v112, {vI}, 2, v112
    """)
    poll(f_issue, [80+4*n+j for n in range(4) for j in (1, 3)], "f", 5)
    stamp(13)
    a("v_add_f32 v80, v80, v84")
    a("v_add_f32 v88, v88, v92")
    a("v_add_f32 v82, v82, v86")
    a("v_add_f32 v90, v90, v94")
    a("v_add_f32 v80, v80, v88")
    a("v_add_f32 v81, v82, v90")
    xlane_reduce("v80", "v_add_f32", vA)
    xlane_reduce("v81", "v_add_f32", vB_)
    a(f"""
    v_cmp_gt_u32 vcc, 16, {vLane}
    s_and_saveexec_b64 {EX}, vcc
    """)
    a.lds(f"ds_write_b64 v110, v[80:81] offset:{RF}", "rfw")
    a(f"s_mov_b64 exec, {EX}")
    a.barrier()
    a(f"""
    v_cmp_gt_u32 vcc, 32, {vTau}
    s_and_saveexec_b64 {EX}, vcc
    s_cbranch_execz L_f_skip
    ds_read_b64 v[80:81], v111 offset:{RF}
    ds_read_b64 v[82:83], v111 offset:{RF + 128}
    s_waitcnt lgkmcnt(0)
    v_add_f32 v80, v80, v82
    v_add_f32 v81, v81, v83
    v_cvt_pk_bf16_f32 v80, v80, v81
    buffer_store_dword v80, v112, {OUT}, {sUO} offen
    s_cmp_lg_u32 {sR}, 0
    s_cbranch_scc1 L_f_skip
    v_mov_b32 {vA}, 0
    v_cmp_eq_u32 vcc, 0, {vTau}
    s_and_b64 exec, exec, vcc
    buffer_store_dword {vTag}, {vA}, {WS}, 0 offen sc1
    L_f_skip:
    s_mov_b64 exec, {EX}
    """)
    stamp(11)
    a.label("L_done")
    if cfg.stamps:
        a(f"""
        s_waitcnt lgkmcnt(0)
        s_lshl_b32 {sT0}, {sW}, 2
        s_add_u32 {sT0}, {sT0}, {sWv}
        s_lshl_b32 {sT0}, {sT0}, 7
        s_add_u32 {sT0}, {sT0}, {STAMP}
        v_mov_b32 {vA}, 0
        v_cmp_eq_u32 vcc, 0, {vLane}
        s_and_saveexec_b64 {EX}, vcc
        """)
        for k in range(NST):
            a(f"v_mov_b32 v80, s{66+2*k}")
            a(f"v_mov_b32 v81, s{67+2*k}")
            a(f"buffer_store_dwordx2 v[80:81], {vA}, {WS}, {sT0} offen offset:{8*k}")
            a("s_nop 1")
        if cfg.dbgt:
            a(f"""
            s_memrealtime s[98:99]
            s_mov_b32 s32, s60
            s_mov_b32 s33, s61
            s_mov_b32 s34, 256
            s_mov_b32 s35, 0x20000
            s_waitcnt lgkmcnt(0)
            s_not_b32 {sT0}, s66
            v_mov_b32 v80, {sT0}
            v_mov_b32 v81, s66
            v_mov_b32 v82, s98
            buffer_atomic_umax v80, {vA}, s[32:35], 0 offen sc1
            buffer_atomic_umax v81, {vA}, s[32:35], 0 offen offset:4 sc1
            buffer_atomic_umax v82, {vA}, s[32:35], 0 offen offset:8 sc1
            s_cmp_ge_u32 {sW}, 128
            s_cbranch_scc1 L_dbgB
            """)
            for j, k in enumerate((1, 8, 7, 2, 4, 5)):
                a(f"v_mov_b32 v{84+j}, s{66+2*k}")
                a(f"buffer_atomic_umax v{84+j}, {vA}, s[32:35], 0 offen offset:{12+4*j} sc1")
            a("s_branch L_dbgE")
            a.label("L_dbgB")
            for j, k in enumerate((2, 4, 5, 7, 9, 10, 13)):
                a(f"v_mov_b32 v{84+j}, s{66+2*k}")
                a(f"buffer_atomic_umax v{84+j}, {vA}, s[32:35], 0 offen offset:{36+4*j} sc1")
            a.label("L_dbgE")
            a("s_waitcnt vmcnt(0)")
        else:
            a(f"s_mov_b64 exec, {EX}")
    a.label("L_end")
    a("s_endpgm")
    return a

HEADER = open("cdna_kernels/" + KN + ".s.ref").read().split("; Override launch")[0]
def build(cfg):
    a = gen(cfg)
    body = a.text()
    name = KN + "_kernel"
    s = HEADER
    s += "; Override launch geometry by editing the next line.\n"
    s += "; @launch grid=(256,1,1) block=(256,1,1) lds=163840\n"
    s += '.amdgcn_target "amdgcn-amd-amdhsa--gfx950"\n.text\n'
    s += f".globl {name}\n.p2align 8\n.type {name},@function\n{name}:\n"
    s += body
    s += f"""
.section .rodata,"a"
.p2align 6
.amdhsa_kernel {name}
  .amdhsa_next_free_vgpr 512
  .amdhsa_next_free_sgpr 102
  .amdhsa_accum_offset 256
  .amdhsa_group_segment_fixed_size 0
  .amdhsa_kernarg_size 112
  .amdhsa_user_sgpr_count 2
  .amdhsa_user_sgpr_kernarg_segment_ptr 1
  .amdhsa_system_sgpr_workgroup_id_x 1
.end_amdhsa_kernel
"""
    return s

if __name__ == "__main__":
    ap = argparse.ArgumentParser()
    ap.add_argument("-o", default="cdna_kernels/" + KN + ".s")
    ap.add_argument("--set", nargs="*", default=[])
    args = ap.parse_args()
    cfg = Cfg()
    for kv in args.set:
        k, v = kv.split("=")
        assert hasattr(cfg, k), k
        setattr(cfg, k, type(getattr(cfg, k))(int(v)))
    open(args.o, "w").write(build(cfg))
```

```python
import sys, argparse, struct
from asmcore import Asm
KN = "concat_heads__sliding_block_cached__compressed_kv_cla__decode"

QP   = 0x1000
QA   = 0x90000
UO   = 0xC0000
UML  = 0x140000
PBML = 0x150000
HELLO = 0x178000
FOFF = 0x1000000
QAF  = 0x170000
OP   = 0x180000
PB   = 0x400000
STAMP = 0x8000000
X = 131072
RED1, QB, RED2, MLS = 0, 4096, 8192, 12288
XS, RED4, RF = 16384, 20480, 28672
XS2, REDA, XS3, REDB = 0, 4096, 8192, 12288
MX, LS, PF = 0, 512, 1024
C1 = (128 ** -0.5) * 1.4426950408889634
def f2u(x): return struct.unpack("<I", struct.pack("<f", x))[0]

class Cfg:
    nt = True
    wnt = True
    stamps = False
    rot = True
    spin = 200000
    s_xord = 2
    b_r1 = 2
    s_r1 = 0
    s_uk0 = 0
    s_k0 = 4
    s_d0 = 16
    s_k1 = 2
    s_dk = 16
    s_dwo = 0
    s_dv = 0
    s_wo = 16
    s_nv1 = 16
    s_nv2 = 16
    s_nv3 = 0
    b_g1 = 1
    b_d = 16
    b_qpos = 9
    b_qsc1 = False
    b_uv = 0
    b_won1 = 8
    b_won2 = 4
    b_try = 1
    b_won6 = 12
    b_won3 = 0
    b_wo = 2
    fast = True
    b_d0 = 4
    b_gr = 0
    pt = 0
    p2f = 1
    pend = 0
    gate = 0
    g2swap = 1
    fstamps = False
    cstamps = False
    dbgt = False

def gen(cfg):
    a = Asm()
    NT = " nt" if cfg.nt else ""
    WNT = " nt" if cfg.wnt else ""
    sN, sPend, sW, sWv = "s0", "s1", "s2", "s3"
    WS, XR, W1, KV, VV, WO, OUT = "s[4:7]", "s[8:11]", "s[12:15]", "s[16:19]", "s[20:23]", "s[24:27]", "s[28:31]"
    EX = "s[32:33]"
    sT0, sT1, sT2, sT3 = "s42", "s43", "s44", "s45"
    sTag, sKB, sSpin, sH, sQb, sUO, sUML, sR, sBr, sW1, sX1, sRot, sC1 = [f"s{k}" for k in range(46, 59)]
    sCB = "s99"; sEp = "s64"; sL1 = "s59"; sLA = "s62"; sL3 = "s63"; sFast = "s65"
    NST = 16
    mute = set()
    def stamp(k, force=False):
        if k in mute and not force: return
        if cfg.stamps:
            a(f"s_memrealtime s[{66+2*k}:{67+2*k}]"); a.smem = True
    vTau, vLane, vI, vKg = "v0", "v1", "v2", "v3"
    SEL = [[f"v{4+hs*4+r}" for r in range(4)] for hs in range(2)]
    vTag, vBp, vRedW, vTau4, vTau8 = "v12", "v13", "v14", "v15", "v16"
    vA, vB_, vC = "v17", "v18", "v19"
    vXo, vWo, vL16 = "v20", "v21", "v31"
    VX = 22
    VW = 32
    ACC = 68; FR0 = 72; FR1 = 76
    VQ = 86; VQF = 96

    def R(base, n, k="v"): return f"{k}[{base}:{base+n-1}]"
    def build_frag(dst, src, hs):
        for r in range(4):
            a(f"v_perm_b32 v{dst+r}, {src}, {src}, {SEL[hs][r]}")
    def red_write(acc, vaddr, off):
        for r in range(4):
            a.lds(f"ds_write_b32 {vaddr}, v{acc+r} offset:{off + r*32}", "redw")
    def red_sum4(dst, tmp, off, stride):
        for w in range(4):
            a.lds(f"ds_read_b32 v{tmp+w}, {vTau4} offset:{off + w*stride}", "redr")
        a.wait_lg()
        a(f"v_add_f32 v{tmp}, v{tmp}, v{tmp+1}")
        a(f"v_add_f32 v{tmp+2}, v{tmp+2}, v{tmp+3}")
        a(f"v_add_f32 v{dst}, v{tmp}, v{tmp+2}")
    def tagcheck(tagregs, Lok):
        a(f"s_mov_b64 {EX}, exec")
        for t in tagregs:
            a(f"v_cmpx_eq_u32 vcc, {vTag}, v{t}")
        a("s_nop 3")
        a(f"s_cmp_eq_u64 exec, {EX}")
        a(f"s_mov_b64 exec, {EX}")
        a(f"s_cbranch_scc1 {Lok}")
    def timeout_mark(dbgcode):
        a(f"""s_mov_b32 s32, s60
        s_mov_b32 s33, s61
        s_mov_b32 s34, 256
        s_mov_b32 s35, 0x20000
        v_mov_b32 {vA}, {4*dbgcode}
        v_mov_b32 {vB_}, 1
        buffer_store_dword {vB_}, {vA}, s[32:35], 0 offen
        s_waitcnt vmcnt(0)""")
    def poll(issue, tagregs, waitname, dbgcode, fix=None):
        Lchk = a.newlabel("L_chk"); Lok = a.newlabel("L_ok"); Lto = a.newlabel("L_to")
        a.try_wait_vm(waitname)
        if fix and fix[0]: fix[0]()
        saved_vm = list(a.vm)
        a(f"s_mov_b32 {sSpin}, {cfg.spin}")
        a.label(Lchk)
        tagcheck(tagregs, Lok)
        a(f"s_sub_u32 {sSpin}, {sSpin}, 1")
        a(f"s_cmp_eq_u32 {sSpin}, 0")
        a(f"s_cbranch_scc1 {Lto}")
        a.vm = []
        if fix: fix[1]()
        issue()
        a("s_waitcnt vmcnt(0)")
        if fix and len(fix) > 2: fix[2]()
        a(f"s_branch {Lchk}")
        a.label(Lto)
        timeout_mark(dbgcode)
        a.label(Lok)
        a.vm = saved_vm
    def poll_groups(groups, waitname, dbgcode):
        Lchk = a.newlabel("L_chk"); Lok = a.newlabel("L_ok"); Lto = a.newlabel("L_to")
        a.try_wait_vm(waitname)
        saved_vm = list(a.vm)
        a(f"s_mov_b32 {sSpin}, {cfg.spin}")
        a(f"s_mov_b32 {sPend}, {(1 << len(groups)) - 1}")
        a.label(Lchk)
        tagcheck([t for _, tags in groups for t in tags], Lok)
        for g, (_, tags) in enumerate(groups):
            sk = a.newlabel("L_sk")
            a(f"s_mov_b64 {EX}, exec")
            for t in tags: a(f"v_cmpx_eq_u32 vcc, {vTag}, v{t}")
            a(f"""s_nop 3
            s_cmp_eq_u64 exec, {EX}
            s_mov_b64 exec, {EX}
            s_cbranch_scc0 {sk}
            s_bitset0_b32 {sPend}, {g}""")
            a.label(sk)
        a(f"s_sub_u32 {sSpin}, {sSpin}, 1")
        a(f"s_cmp_eq_u32 {sSpin}, 0")
        a(f"s_cbranch_scc1 {Lto}")
        a.vm = []
        for g, (issue, _) in enumerate(groups):
            sk = a.newlabel("L_sk")
            a(f"s_bitcmp1_b32 {sPend}, {g}")
            a(f"s_cbranch_scc0 {sk}")
            issue()
            a.label(sk)
        a("s_waitcnt vmcnt(0)")
        a(f"s_branch {Lchk}")
        a.label(Lto)
        timeout_mark(dbgcode)
        a.label(Lok)
        a.vm = saved_vm
    def poll2(issue, nload, setA, setB, tagoffs, dbgcode, pace, consume):
        LA = a.newlabel("L_pa"); LokA = a.newlabel("L_oka"); LokB = a.newlabel("L_okb"); Lto = a.newlabel("L_to"); Ldone = a.newlabel("L_pd")
        a(f"s_mov_b32 {sSpin}, {cfg.spin}")
        a.vm = []
        pace()
        issue(setA)
        a(f"s_waitcnt vmcnt({nload})")
        issue(setB)
        a.label(LA)
        a(f"s_waitcnt vmcnt({nload})")
        tagcheck([setA + t for t in tagoffs], LokA)
        issue(setA)
        a(f"s_waitcnt vmcnt({nload})")
        tagcheck([setB + t for t in tagoffs], LokB)
        issue(setB)
        a(f"s_sub_u32 {sSpin}, {sSpin}, 1")
        a(f"s_cmp_eq_u32 {sSpin}, 0")
        a(f"s_cbranch_scc0 {LA}")
        a("s_waitcnt vmcnt(0)")
        timeout_mark(dbgcode)
        a.label(LokA)
        consume(setA)
        a(f"s_branch {Ldone}")
        a.label(LokB)
        consume(setB)
        a.label(Ldone)
        a.vm = []
    def xlane_reduce(v, op, tmp):
        a(f"v_mov_b32 {tmp}, {v}")
        a(f"v_permlane16_swap_b32 {v}, {tmp}")
        a(f"{op} {v}, {v}, {tmp}")
        a(f"v_mov_b32 {tmp}, {v}")
        a(f"v_permlane32_swap_b32 {v}, {tmp}")
        a(f"{op} {v}, {v}, {tmp}")
    def wave_reduce(v, op, tmp):
        for d in ("quad_perm:[1,0,3,2]", "quad_perm:[2,3,0,1]", "row_half_mirror", "row_mirror"):
            a(f"{op}_dpp {v}, {v}, {v} {d} row_mask:0xf bank_mask:0xf")
        xlane_reduce(v, op, tmp)
    def x_loads():
        for tt in range(9):
            a.vmem(f"buffer_load_ushort v{VX+tt}, {vXo}, {XR}, {sX1} offen offset:{2*tt}", "x")
    def w1_loads(t0=0, t1=9):
        for tt in range(t0, t1):
            a(f"s_add_u32 {sT2}, {sW1}, {tt*8192}")
            a.vmem(f"buffer_load_dwordx4 {R(VW+4*tt,4)}, {vWo}, {W1}, {sT2} offen{WNT}", f"w1_{tt}")
    def hello_issue():
        a(f"s_and_b32 {sT2}, {sW}, 7")
        a(f"s_lshl_b32 {sT2}, {sT2}, 7")
        a(f"s_lshr_b32 {sT3}, {sW}, 7")
        a(f"s_lshl_b32 {sT3}, {sT3}, 6")
        a(f"s_add_u32 {sT2}, {sT2}, {sT3}")
        a(f"s_add_u32 {sT2}, {sT2}, {HELLO}")
        a(f"v_lshlrev_b32 v82, 2, {vI}")
        a.vmem(f"buffer_load_dword v83, v82, {WS}, {sT2} offen sc1", "hello")
    def hello_finish():
        a.try_wait_vm("hello")
        a(f"v_cmp_ne_u32 vcc, {vTag}, v83")
        a(f"s_mov_b32 {sFast}, {FOFF if cfg.fast else 0}")
        a("s_nop 0")
        a(f"s_cmp_eq_u64 vcc, 0")
        a(f"s_cselect_b32 {sFast}, {sFast}, 0")
    def p1a_compute(qoff, role, hello, between=None):
        a.try_wait_vm("x")
        if cfg.fstamps and hello: stamp(3)
        build_frag(FR0, f"v{VX}", 0)
        for tt in range(9):
            cur = FR0 if tt % 2 == 0 else FR1
            nxt = FR1 if tt % 2 == 0 else FR0
            if tt < 8: build_frag(nxt, f"v{VX+tt+1}", 0)
            a.try_wait_vm(f"w1_{tt}")
            if cfg.fstamps and hello and tt == 0: stamp(12)
            c = "0" if tt == 0 else R(ACC, 4)
            a(f"v_mfma_f32_16x16x32_bf16 {R(ACC,4)}, {R(VW+4*tt,4)}, {R(cur,4)}, {c}")
            if between: between(tt)
        if cfg.fstamps and hello: stamp(4)
        red_write(ACC, vRedW, RED1)
        a(f"v_mov_b32 v81, {vTag}")
        a(f"s_lshl_b32 {sT0}, {role}, 11")
        a(f"s_add_u32 {sT0}, {sT0}, {QP + qoff}")
        a(f"s_add_u32 {sT1}, {sT0}, {FOFF}")
        if hello: hello_issue()
        a.barrier()
        red_sum4(80, 72, RED1, 1024)
        if cfg.fast: a.vmem(f"buffer_store_dwordx2 v[80:81], {vTau8}, {WS}, {sT1} offen", "qp_st")
        a.vmem(f"buffer_store_dwordx2 v[80:81], {vTau8}, {WS}, {sT0} offen sc1", "qp_st")
    def q_issue():
        a(f"s_add_u32 {sT3}, {sQb}, 4096")
        a.vmem(f"buffer_load_dwordx2 v[{VQ}:{VQ+1}], v85, {WS}, {sQb} offen sc1", "q")
        a.vmem(f"buffer_load_dwordx2 v[{VQ+2}:{VQ+3}], v85, {WS}, {sQb} offen offset:2048 sc1", "q")
        a.vmem(f"buffer_load_dwordx2 v[{VQ+4}:{VQ+5}], v85, {WS}, {sT3} offen sc1", "q")
        a.vmem(f"buffer_load_dwordx2 v[{VQ+6}:{VQ+7}], v85, {WS}, {sT3} offen offset:2048 sc1", "q")
    QTAGS = [VQ+1, VQ+3, VQ+5, VQ+7]
    def q_finish():
        a(f"v_add_f32 v{VQ}, v{VQ}, v{VQ+2}")
        a(f"v_add_f32 v{VQ+4}, v{VQ+4}, v{VQ+6}")
        a(f"v_lshlrev_b32 {vA}, 1, {vTau}")
        a(f"v_add_f32 v{VQ}, v{VQ}, v{VQ+4}")
        a(f"v_add_u32 {vA}, {X}, {vA}")
        a(f"v_cvt_pk_bf16_f32 v{VQ}, v{VQ}, v{VQ}")
        a.lds(f"ds_write_b16 {vA}, v{VQ} offset:{QB}", "qb")
        a(f"v_lshlrev_b32 {vA}, 8, {vBp}")
        a(f"v_lshl_add_u32 {vA}, {vKg}, 4, {vA}")
        a(f"v_add_u32 {vA}, {X}, {vA}")
        a.barrier()
        for t in range(4):
            a.lds(f"ds_read_b128 {R(VQF+4*t,4)}, {vA} offset:{QB + 64*t}", "qf")
    def wo_setup(sA, sB):
        a(f"""
        v_mul_u32_u24 v240, 9216, {vKg}
        v_lshl_add_u32 v241, {vI}, 4, v240
        v_lshrrev_b32 {vA}, 3, {vI}
        v_mul_u32_u24 {vA}, 1152, {vA}
        v_and_b32 {vB_}, 7, {vI}
        v_lshl_add_u32 {vA}, {vB_}, 4, {vA}
        v_add_u32 v242, v240, {vA}
        v_add_u32 v242, 256, v242
        s_and_b32 {sB}, {sL3}, 3
        s_lshr_b32 {sA}, {sL3}, 2
        s_lshl_b32 {sA}, {sA}, 2
        s_add_u32 {sA}, {sA}, {sWv}
        s_mul_i32 {sA}, {sA}, {32*1152}
        s_mul_i32 {sB}, {sB}, 384
        s_add_u32 {sA}, {sA}, {sB}
        s_add_u32 {sB}, {sA}, 4608
        """)
    def wo_load(n, sA, sB):
        if n < 8:
            a.vmem(f"buffer_load_dwordx4 a[{128+4*n}:{131+4*n}], v241, {WO}, {sA if n < 4 else sB} offen offset:{(n % 4)*1152}{WNT}", "wo")
        else:
            u = n - 8
            a.vmem(f"buffer_load_dwordx4 a[{160+4*u}:{163+4*u}], v242, {WO}, {sA if u < 2 else sB} offen offset:{(u % 2)*2304}{WNT}", "wo")
    def gemv8(src_regs, xf, acc, waitnames):
        build_frag(FR0, f"v{xf}", 0)
        for tt in range(8):
            cur = FR0 if tt % 2 == 0 else FR1
            nxt = FR1 if tt % 2 == 0 else FR0
            if tt < 7: build_frag(nxt, f"v{xf + (tt+1)//2}", (tt+1) % 2)
            if waitnames: a.try_wait_vm(waitnames[tt])
            c = "0" if tt == 0 else R(acc, 4)
            a(f"v_mfma_f32_16x16x32_bf16 {R(acc,4)}, {src_regs[tt]}, {R(cur,4)}, {c}")

    a(f"""
    s_cmp_ge_u32 s2, 256
    s_cbranch_scc1 L_end
    s_load_dwordx16 s[36:51], s[0:1], 0
    s_load_dwordx8 s[52:59], s[0:1], 64
    s_load_dwordx4 s[60:63], s[0:1], 96
    """)
    if cfg.stamps:
        for k in range(NST): a(f"s_mov_b64 s[{66+2*k}:{67+2*k}], 0")
    stamp(0)
    a(f"""
    v_and_b32 {vLane}, 63, {vTau}
    v_lshrrev_b32 {vA}, 6, {vTau}
    v_and_b32 {vI}, 15, {vTau}
    v_bfe_u32 {vKg}, {vTau}, 4, 2
    v_readfirstlane_b32 {sWv}, {vA}
    v_bfe_u32 {vBp}, {vTau}, 3, 1
    v_mul_u32_u24 {vXo}, 1152, {vBp}
    v_mul_u32_u24 {vA}, 18, {vKg}
    v_add_u32 {vXo}, {vXo}, {vA}
    v_mul_u32_u24 {vWo}, 73728, {vKg}
    v_lshlrev_b32 {vA}, 4, {vI}
    v_add_u32 {vWo}, {vWo}, {vA}
    v_lshlrev_b32 {vL16}, 4, {vLane}
    s_waitcnt lgkmcnt(0)
    s_load_dword {sEp}, s[62:63], 0
    FSTAMP_A
    s_cmp_ge_u32 {sW}, 128
    s_mov_b32 s100, s42
    s_mov_b32 s101, s43
    s_mov_b32 s4, s62
    s_mov_b32 s5, s63
    s_mov_b32 s6, 0x10000000
    s_mov_b32 s7, 0x20000
    s_mov_b32 s8, s46
    s_mov_b32 s9, s47
    s_mov_b32 s10, 2304
    s_mov_b32 s11, 0x20000
    s_mov_b32 s12, s50
    s_mov_b32 s13, s51
    s_mov_b32 s14, 4718592
    s_mov_b32 s15, 0x20000
    s_cselect_b32 s16, s48, s38
    s_cselect_b32 s17, s49, s39
    s_mov_b32 s18, 67108864
    s_cselect_b32 s18, 16777216, s18
    s_mov_b32 s19, 0x20000
    s_cselect_b32 s20, s54, s52
    s_cselect_b32 s21, s55, s53
    s_mov_b32 s22, 4194304
    s_mov_b32 s23, 0x20000
    s_cselect_b32 s24, s56, s44
    s_cselect_b32 s25, s57, s45
    s_mov_b32 s26, 4718592
    s_mov_b32 s27, 0x20000
    s_mov_b32 s28, s58
    s_mov_b32 s29, s59
    s_mov_b32 s30, 4608
    s_mov_b32 s31, 0x20000
    ; x = w&7, q = (w>>3)&3, e = (w>>5)&1, f = (w>>6)&1
    s_and_b32 {sT0}, {sW}, 7
    s_bfe_u32 {sT1}, {sW}, 0x20003
    s_bfe_u32 {sT2}, {sW}, 0x20005
    s_lshl_b32 {sT2}, {sT2}, 3
    s_add_u32 {sT2}, {sT2}, {sT0}          ; hX = x + 8*((w>>5)&3)
    s_lshl_b32 {sT2}, {sT2}, 2
    s_add_u32 {sT2}, {sT2}, {sT1}
    s_bfe_u32 {sT3}, {sW}, 0x10006
    s_lshl_b32 {sT3}, {sT3}, 3
    s_add_u32 {sT3}, {sT3}, {sT0}          ; hkv = x + 8f
    s_bfe_u32 {sT0}, {sW}, 0x10005         ; e
    s_lshl_b32 {sLA}, {sT0}, 6
    s_lshl_b32 {sL3}, {sT3}, 2
    s_add_u32 {sLA}, {sLA}, {sL3}
    s_add_u32 {sLA}, {sLA}, {sT1}
    s_lshl_b32 {sT3}, {sT3}, 1
    s_add_u32 {sT3}, {sT3}, {sT0}          ; 2hkv + e
    s_lshl_b32 {sT3}, {sT3}, 2
    s_add_u32 {sT3}, {sT3}, {sT1}
    s_cmp_ge_u32 {sW}, 128
    s_mov_b32 {sL1}, {sT2}
    s_cselect_b32 {sL3}, {sT2}, {sT3}
    s_and_b32 {sT0}, {sL3}, 3
    s_cmp_eq_u32 {sT0}, 3
    s_cselect_b32 s26, 0, s26
    s_lshr_b32 {sH}, {sL1}, 2
    s_lshr_b32 {sBr}, {sW}, 7
    s_mov_b32 {sFast}, 0
    s_and_b32 {sT0}, {sL1}, 3
    s_mul_i32 {sT0}, {sT0}, 144
    s_mul_i32 {sT1}, {sWv}, 36
    s_add_u32 {sT0}, {sT0}, {sT1}
    s_lshl_b32 {sX1}, {sT0}, 1
    s_lshl_b32 {sW1}, {sT0}, 13
    s_lshl_b32 {sT1}, {sH}, 8
    s_add_u32 {sW1}, {sW1}, {sT1}
    """)
    if cfg.fstamps:
        i_ = [i for i, it in enumerate(a.items) if it == ("i", "FSTAMP_A")][0]
        a.items[i_] = ("i", f"s_memrealtime s[{66+2*9}:{67+2*9}]")
    else:
        a.items = [it for it in a.items if it != ("i", "FSTAMP_A")]
    a.smem = True
    def c_group(g, q0=0, q1=4):
        if q0 == 0: a(f"""
        s_add_u32 {sT1}, {sRot}, {4*g}
        s_and_b32 {sT1}, {sT1}, 31
        s_lshl_b32 {sT1}, {sT1}, 10
        s_add_u32 {sCB}, {sKB}, {sT1}
        s_lshl_b32 {sT2}, {sWv}, 15
        s_add_u32 m0, {sT2}, {g*4096}
        """)
        for q in range(4):
            f = (q << 2) | (g & 3)
            if q0 == 0: a(f"v_xor_b32 v{202+q}, {f << 4}, {vL16}")
        for q in range(q0, q1):
            row = 4 * g + q
            if 0 < row <= cfg.b_r1: a.wait_vm(f"c{g}" if q else f"c{g-1}")
            a.vmem(f"buffer_load_dwordx4 v{202+q}, {KV}, {sCB} offen offset:{q*1024}{NT} lds", f"c{g}")
        if cfg.cstamps and q1 == 4: stamp(5 + g, True)
    a(f"""
    v_xor_b32 {vA}, {vI}, {vKg}
    v_lshlrev_b32 {vA}, 4, {vA}
    v_lshl_add_u32 v206, {vKg}, 13, {vA}
    v_xor_b32 v207, 64, v206
    v_xor_b32 v208, 128, v206
    v_xor_b32 v209, 192, v206
    """)
    a(f"s_cmp_ge_u32 {sW}, 128")
    a("s_cbranch_scc1 L_roleB")
    if cfg.s_xord == 0:
        x_loads(); w1_loads()
    elif cfg.s_xord == 1:
        w1_loads(); x_loads()
    else:
        w1_loads(0, 1); x_loads(); w1_loads(1, 9)
    a(f"""
    s_and_b32 {sUO}, {sL1}, 3
    s_lshl_b32 {sUO}, {sUO}, 7
    s_lshl_b32 {sT1}, {sWv}, 5
    s_add_u32 {sUO}, {sUO}, {sT1}
    s_lshl_b32 {sUO}, {sUO}, 13
    s_lshl_b32 {sT1}, {sH}, 8
    s_add_u32 {sUO}, {sUO}, {sT1}
    s_lshl_b32 {sUML}, {sWv}, 15
    """)
    ukn = [0]
    def uk_load():
        n = ukn[0]
        if n >= 8: return
        ukn[0] += 1
        a(f"s_add_u32 m0, {sUML}, {6*4096 + n*1024}")
        a(f"s_add_u32 {sT2}, {sUO}, {n*4*8192}")
        a.vmem(f"buffer_load_dwordx4 v{206 + n % 4}, {VV}, {sT2} offen{WNT} lds", "uk")
    if cfg.s_uk0:
        a("s_barrier")
        for _ in range(cfg.s_uk0): uk_load()
    def common():
        Lnh = a.newlabel("L_nohello")
        a.smem = True
        a(f"""
        v_and_b32 {vA}, 1, {vLane}
        v_cmp_eq_u32 vcc, 1, {vA}
        v_mov_b32 {vB_}, 0x0c0c0100
        v_mov_b32 {vC}, 0x01000c0c
        v_cndmask_b32 v68, {vB_}, {vC}, vcc
        v_mov_b32 {vB_}, 0x0c0c0302
        v_mov_b32 {vC}, 0x03020c0c
        v_cndmask_b32 v69, {vB_}, {vC}, vcc
        v_bfe_u32 {vA}, {vLane}, 1, 2
        v_mov_b32 {vB_}, 0x0c0c0c0c
        """)
        for r in range(4):
            a(f"v_cmp_eq_u32 vcc, {r}, {vA}")
            a(f"v_cndmask_b32 {SEL[0][r]}, {vB_}, v68, vcc")
            a(f"v_cndmask_b32 {SEL[1][r]}, {vB_}, v69, vcc")
        a(f"""
        v_lshlrev_b32 {vTau4}, 2, {vTau}
        v_add_u32 {vTau4}, {X}, {vTau4}
        v_lshlrev_b32 {vTau8}, 3, {vTau}
        v_lshlrev_b32 {vRedW}, 9, {vBp}
        v_lshl_add_u32 {vRedW}, {vKg}, 7, {vRedW}
        v_and_b32 {vA}, 7, {vLane}
        v_lshl_add_u32 {vRedW}, {vA}, 2, {vRedW}
        s_lshl_b32 {sT0}, {sWv}, 10
        s_add_u32 {sT0}, {sT0}, {X}
        v_add_u32 {vRedW}, {sT0}, {vRedW}
        v_lshlrev_b32 v85, 3, {vLane}
        s_mov_b32 {sC1}, {f2u(C1):#x}
        """)
        a.wait_lg()
        if cfg.fstamps: stamp(10)
        a(f"s_mul_i32 {sTag}, {sEp}, 0x9E3779B1")
        a(f"s_add_u32 {sTag}, {sTag}, 0x7F4A7C15")
        a(f"v_mov_b32 {vTag}, {sTag}")
        a(f"""
        s_and_b32 {sT0}, {sW}, 7
        s_lshl_b32 {sT0}, {sT0}, 7
        s_lshr_b32 {sT1}, {sW}, 3
        s_lshl_b32 {sT1}, {sT1}, 2
        s_add_u32 {sT0}, {sT0}, {sT1}
        s_add_u32 {sT0}, {sT0}, {HELLO}
        v_mov_b32 {vA}, 0
        v_cmp_eq_u32 vcc, 0, {vTau}
        s_and_saveexec_b64 {EX}, vcc
        s_cbranch_execz {Lnh}
        buffer_store_dword {vTag}, {vA}, {WS}, {sT0} offen
        {Lnh}:
        s_mov_b64 exec, {EX}
        """)
    common()
    def pretouch(role):
        if not (cfg.pt and cfg.fast): return
        if role == "B2":
            n0 = len(a.items); pretouch("B")
            import re as _re
            for i in range(n0, len(a.items)):
                k, t = a.items[i]
                if k == "i":
                    t = _re.sub(r"v\[244:247\]", "v[236:239]", t); t = _re.sub(r"v\[244:245\]", "v[236:237]", t)
                    t = _re.sub(r"v24(\d)", lambda m: f"v{232 + int(m.group(1))}", t)
                    a.items[i] = (k, t)
            return
        Lsk = a.newlabel("L_ptskip")
        a(f"""
        v_not_b32 v245, {vTag}
        v_mov_b32 v244, 0
        v_mov_b32 v246, 0
        v_mov_b32 v247, v245
        v_lshrrev_b32 v240, 7, {vTau}
        v_and_b32 v241, 127, {vTau}
        """)
        if role == "S":
            a(f"""
            v_lshlrev_b32 v242, 13, v240
            v_lshl_add_u32 v242, v241, 3, v242
            v_lshlrev_b32 v243, 7, v240
            s_lshl_b32 {sT0}, {sL1}, 11
            s_add_u32 {sT0}, {sT0}, {QP + 128*2048 + FOFF}
            s_lshl_b32 {sT1}, {sL3}, 11
            s_add_u32 {sT1}, {sT1}, {QP + FOFF}
            """)
            if cfg.pt == 1:
                a.vmem(f"buffer_store_dwordx2 v[244:245], {vTau8}, {WS}, {sT0} offen", "pt")
                a.vmem(f"buffer_store_dwordx2 v[244:245], {vTau8}, {WS}, {sT1} offen", "pt")
            a(f"""
            s_bfe_u32 {sT0}, {sLA}, 0x40002
            s_lshl_b32 {sT1}, {sT0}, 14
            s_and_b32 {sT2}, {sLA}, 3
            s_lshl_b32 {sT3}, {sT2}, 11
            s_add_u32 {sT1}, {sT1}, {sT3}
            s_lshr_b32 {sT3}, {sLA}, 6
            s_lshl_b32 {sT3}, {sT3}, 10
            s_add_u32 {sT1}, {sT1}, {sT3}
            s_add_u32 {sT1}, {sT1}, {UO + FOFF}
            """)
            a.vmem(f"buffer_store_dwordx2 v[244:245], v242, {WS}, {sT1} offen", "pt")
            a(f"""
            s_lshl_b32 {sT1}, {sT0}, 8
            s_lshr_b32 {sT3}, {sLA}, 6
            s_lshl_b32 {sT3}, {sT3}, 6
            s_add_u32 {sT1}, {sT1}, {sT3}
            s_lshl_b32 {sT2}, {sT2}, 4
            s_add_u32 {sT1}, {sT1}, {sT2}
            s_add_u32 {sT1}, {sT1}, {UML + FOFF}
            """)
        else:
            a(f"""
            v_lshlrev_b32 v243, 6, v240
            s_add_u32 {sT0}, {sL3}, {(UO + 0x40000)//2048}
            s_lshl_b32 {sT0}, {sT0}, 11
            s_add_u32 {sT0}, {sT0}, {FOFF}
            """)
            a.vmem(f"buffer_store_dwordx2 v[244:245], {vTau8}, {WS}, {sT0} offen", "pt")
            a(f"""
            s_lshr_b32 {sT0}, {sL3}, 2
            s_lshl_b32 {sT0}, {sT0}, 7
            s_and_b32 {sT1}, {sL3}, 3
            s_lshl_b32 {sT1}, {sT1}, 4
            s_add_u32 {sT0}, {sT0}, {sT1}
            s_add_u32 {sT1}, {sT0}, {UML + 0x1000 + FOFF}
            """)
        a(f"""
        v_cmp_eq_u32 vcc, 0, v241
        s_and_saveexec_b64 {EX}, vcc
        s_cbranch_execz {Lsk}
        buffer_store_dwordx4 v[244:247], v243, {WS}, {sT1} offen
        {Lsk}:
        s_mov_b64 exec, {EX}
        """)
    if cfg.pt == 1: pretouch("S")
    VKO = 200; VVO = 204
    a(f"""
    s_lshr_b32 {sT0}, {sLA}, 2
    s_lshl_b32 {sKB}, {sT0}, 21
    s_and_b32 {sT0}, {sLA}, 3
    s_lshl_b32 {sT0}, {sT0}, 17
    s_add_u32 {sKB}, {sKB}, {sT0}
    s_add_u32 {sKB}, {sKB}, {6144*256}
    s_lshl_b32 {sT0}, {sWv}, 15
    s_add_u32 {sKB}, {sKB}, {sT0}
    v_xor_b32 {vA}, {vI}, {vKg}
    v_lshlrev_b32 {vA}, 4, {vA}
    v_lshl_add_u32 v{VKO}, {vKg}, 8, {vA}
    v_xor_b32 v{VKO+1}, 64, v{VKO}
    v_xor_b32 v{VKO+2}, 128, v{VKO}
    v_xor_b32 v{VKO+3}, 192, v{VKO}
    v_lshlrev_b32 {vA}, 4, {vI}
    v_lshl_add_u32 v{VVO}, {vKg}, 10, {vA}
    s_mul_i32 {sRot}, {sW}, {5 if cfg.rot else 0}
    s_mul_i32 {sT0}, {sWv}, {3 if cfg.rot else 0}
    s_add_u32 {sRot}, {sRot}, {sT0}
    s_add_u32 {sT0}, {sH}, 32
    s_lshl_b32 {sN}, {sT0}, 13
    s_lshl_b32 {sT0}, {sWv}, 9
    s_add_u32 {sN}, {sN}, {sT0}
    s_add_u32 {sN}, {sN}, {QP}
    s_add_u32 {sQb}, {sN}, {FOFF if cfg.fast else 0}
    """)
    def k_tile(n):
        a(f"""
        s_add_u32 {sT0}, {sRot}, {n}
        s_and_b32 {sT0}, {sT0}, 7
        s_lshl_b32 {sT0}, {sT0}, 12
        s_add_u32 {sT1}, {sKB}, {sT0}
        s_lshl_b32 {sT0}, {sWv}, 15
        s_add_u32 m0, {sT0}, {n << 12}
        """)
        for q in range(4):
            row = 4 * n + q
            if 0 < row <= cfg.s_r1: a.wait_vm(f"k{n}" if q else f"k{n-1}")
            a.vmem(f"buffer_load_dwordx4 v{VKO+q}, {KV}, {sT1} offen offset:{q*1024}{NT} lds", f"k{n}")
    def throttle(depth):
        keep = max(depth - 4, 0)
        if len(a.vm) > keep:
            a(f"s_waitcnt vmcnt({keep})"); a.vm = a.vm[len(a.vm) - keep:] if keep else []
    VKA = 112
    for t in range(4):
        a(f"v_add_u32 {vA}, {4*t}, {vKg}")
        a(f"v_xor_b32 {vA}, {vA}, {vI}")
        a(f"v_lshlrev_b32 {vA}, 4, {vA}")
        a(f"v_lshl_add_u32 v{VKA+t}, {vI}, 8, {vA}")
    a(f"s_lshl_b32 {sT0}, {sWv}, 15")
    for t in range(4):
        a(f"v_add_u32 v{VKA+t}, {sT0}, v{VKA+t}")
    p1a_compute(128 * 2048, sL1, True, between=lambda tt: uk_load())
    while ukn[0] < 8: uk_load()
    stamp(1)
    q_issue()
    def refix():
        a(f"s_add_u32 {sQb}, {sN}, {sFast}")
        hello_issue()
    poll(q_issue, QTAGS, "q", 1, fix=(hello_finish, refix, hello_finish))
    stamp(8)
    if cfg.stamps: a(f"s_mov_b32 s{66+2*14}, {sFast}"); a(f"s_mov_b32 s{67+2*14}, 0")
    if cfg.stamps: a(f"s_sub_u32 s{66+2*15}, {cfg.spin}, {sSpin}"); a(f"s_mov_b32 s{67+2*15}, 0")
    a.vm = []
    for T2 in range(2):
        for t in range(4):
            a.lds(f"ds_read_b128 {R(116 + 4*(T2*4+t), 4)}, v{VKA+t} offset:{(6+T2)*4096}", "ukr")
    q_finish()
    DA = 68
    a(f"""
    v_lshlrev_b32 {vA}, 16, {vBp}
    v_lshl_add_u32 {vA}, {vKg}, 4, {vA}
    s_lshl_b32 {sT0}, {sH}, 11
    s_and_b32 {sT1}, {sL1}, 3
    s_lshl_b32 {sT1}, {sT1}, 9
    s_add_u32 {sT0}, {sT0}, {sT1}
    s_lshl_b32 {sT1}, {sWv}, 7
    s_add_u32 {sT0}, {sT0}, {sT1}
    s_add_u32 {sT0}, {sT0}, {QA}
    v_mov_b32 v81, {vTag}
    v_mov_b32 v83, {vTag}
    v_mov_b32 v89, {vTag}
    v_mov_b32 v91, {vTag}
    v_and_b32 {vB_}, 7, {vLane}
    v_cmp_eq_u32 vcc, 0, {vB_}
    """)
    a.wait_lg()
    for t in range(4):
        for T2 in range(2):
            n = T2 * 4 + t
            c = "0" if t == 0 else R(DA + 4*T2, 4)
            a(f"v_mfma_f32_16x16x32_bf16 {R(DA+4*T2,4)}, {R(116+4*n,4)}, {R(VQF+4*t,4)}, {c}")
    a(f"""
    v_cvt_pk_bf16_f32 v80, v{DA}, v{DA+1}
    v_cvt_pk_bf16_f32 v82, v{DA+2}, v{DA+3}
    v_cvt_pk_bf16_f32 v88, v{DA+4}, v{DA+5}
    v_cvt_pk_bf16_f32 v90, v{DA+6}, v{DA+7}
    s_and_saveexec_b64 {EX}, vcc
    buffer_store_dwordx4 v[80:83], {vA}, {WS}, {sT0} offen sc1
    buffer_store_dwordx4 v[88:91], {vA}, {WS}, {sT0} offen offset:64 sc1
    s_mov_b64 exec, {EX}
    s_mov_b32 s20, s40
    s_mov_b32 s21, s41
    s_mov_b32 s22, 67108864
    """)
    stamp(6)
    if cfg.pt == 2: pretouch("S")
    a(f"""
    s_mov_b32 s8, s36
    s_mov_b32 s9, s37
    s_mov_b32 s12, s100
    s_mov_b32 s13, s101
    s_and_b32 {sT0}, {sL3}, 3
    s_mul_i32 {sT0}, {sT0}, 144
    s_mul_i32 {sT1}, {sWv}, 36
    s_add_u32 {sT0}, {sT0}, {sT1}
    s_lshl_b32 {sX1}, {sT0}, 1
    s_lshl_b32 {sW1}, {sT0}, 13
    s_lshr_b32 {sT1}, {sL3}, 2
    s_lshl_b32 {sT1}, {sT1}, 8
    s_add_u32 {sW1}, {sW1}, {sT1}
    """)
    hello_issue()
    won = 0
    def wo_early():
        nonlocal won
        wo_setup(sUO, sUML)
        while won < 12:
            if cfg.s_dwo and won and won % cfg.s_dwo == 0: a.wait_vm("wo")
            wo_load(won, sUO, sUML); won += 1
    if cfg.s_wo == -1: wo_early()
    kn = 0
    for _ in range(cfg.s_k0):
        throttle(cfg.s_d0); k_tile(kn); kn += 1
    x_loads(); w1_loads()
    for _ in range(cfg.s_k1):
        k_tile(kn); kn += 1
    hello_finish()
    p1a_compute(0, sL3, False)
    stamp(9)
    if cfg.s_wo == -2: wo_early()
    while kn < 8:
        throttle(cfg.s_dk); k_tile(kn); kn += 1
    if cfg.s_wo == -3: wo_early()
    stamp(7)
    a(f"""
    s_bfe_u32 {sT0}, {sLA}, 0x40002
    s_lshl_b32 {sT0}, {sT0}, 1
    s_lshr_b32 {sT1}, {sWv}, 1
    s_add_u32 {sT0}, {sT0}, {sT1}
    s_lshl_b32 {sQb}, {sT0}, 13
    s_lshr_b32 {sT0}, {sLA}, 6
    s_lshl_b32 {sT0}, {sT0}, 10
    s_add_u32 {sQb}, {sQb}, {sT0}
    s_and_b32 {sT0}, {sWv}, 1
    s_lshl_b32 {sT0}, {sT0}, 9
    s_add_u32 {sQb}, {sQb}, {sT0}
    s_add_u32 {sN}, {sQb}, {QP}
    s_add_u32 {sQb}, {sN}, {sFast}
    """)
    q_issue()
    vnext = [0]
    def v_load(n):
        T, r = n // 4, n % 4
        if cfg.s_dv and len(a.vm) >= cfg.s_dv:
            keep = cfg.s_dv - 1
            a(f"s_waitcnt vmcnt({keep})"); a.vm = a.vm[len(a.vm) - keep:]
        if r == 0 or vnext[1] != T:
            a(f"s_add_u32 {sUO}, {sRot}, {T}")
            a(f"s_and_b32 {sUO}, {sUO}, 7")
            a(f"s_lshl_b32 {sUO}, {sUO}, 12")
            a(f"s_add_u32 {sUO}, {sKB}, {sUO}")
            vnext[1] = T
        a.vmem(f"buffer_load_dwordx4 a[{4*n}:{4*n+3}], v{VVO}, {VV}, {sUO} offen offset:{r*256}{NT}", f"v{n}")
    vnext.append(-1)
    def v_more(k):
        for _ in range(k):
            if vnext[0] < 32:
                v_load(vnext[0]); vnext[0] += 1
    v_more(cfg.s_nv1)
    RING = 116; NR = 8; SC = 148; PK = 180
    poll(q_issue, QTAGS, "q", 0)
    q_finish()
    stamp(2)
    steps = [(T, t) for T in range(8) for t in range(4)]
    def kread(idx):
        T, t = steps[idx]
        a.lds(f"ds_read_b128 {R(RING + 4*(idx % NR), 4)}, v{VKA+t} offset:{T*4096}", f"kr{idx}")
    for idx in range(NR): kread(idx)
    for idx, (T, t) in enumerate(steps):
        a.wait_lg(f"kr{idx}")
        c = "0" if t == 0 else R(SC+4*T, 4)
        a(f"v_mfma_f32_16x16x32_bf16 {R(SC+4*T,4)}, {R(RING + 4*(idx % NR),4)}, {R(VQF+4*t,4)}, {c}")
        if idx + NR < len(steps): kread(idx + NR)
        if cfg.s_nv2 and idx % (32 // cfg.s_nv2) == 0: v_more(1)
    vM, vL = "v196", "v197"
    a(f"v_max3_f32 {vM}, v{SC}, v{SC+1}, v{SC+2}")
    for k in range(3, 31, 2):
        a(f"v_max3_f32 {vM}, {vM}, v{SC+k}, v{SC+k+1}")
    a(f"v_max_f32 {vM}, {vM}, v{SC+31}")
    xlane_reduce(vM, "v_max_f32", vA)
    a(f"v_mul_f32 {vM}, {sC1}, {vM}")
    for k in range(32):
        a(f"v_fma_f32 v{SC+k}, v{SC+k}, {sC1}, -{vM}")
    for k in range(32):
        a(f"v_exp_f32 v{SC+k}, v{SC+k}")
        if cfg.s_nv3 and k % (32 // cfg.s_nv3) == 0: v_more(1)
    a(f"v_add_f32 {vL}, v{SC}, v{SC+1}")
    for k in range(2, 32):
        a(f"v_add_f32 {vL}, {vL}, v{SC+k}")
    for k in range(16):
        a(f"v_cvt_pk_bf16_f32 v{PK+k}, v{SC+2*k}, v{SC+2*k+1}")
    xlane_reduce(vL, "v_add_f32", vA)
    v_more(32)
    if not cfg.fstamps: stamp(3)
    OACC = 68
    if won < 12: wo_setup(sQb, sUML)
    build_frag(FR0, f"v{PK}", 0)
    for n in range(32):
        cur = FR0 if n % 2 == 0 else FR1
        nxt = FR1 if n % 2 == 0 else FR0
        if n < 31: build_frag(nxt, f"v{PK + (n+1)//2}", (n+1) % 2)
        a.try_wait_vm(f"v{n}")
        c = "0" if n == 0 else R(OACC, 4)
        a(f"v_mfma_f32_16x16x32_bf16 {R(OACC,4)}, a[{4*n}:{4*n+3}], {R(cur,4)}, {c}")
        if 0 <= cfg.s_wo <= n and won < 12:
            wo_load(won, sQb, sUML); won += 1
    if cfg.s_wo < 99:
        while won < 12: wo_load(won, sQb, sUML); won += 1
    if not cfg.fstamps: stamp(4)
    a(f"""
    v_lshlrev_b32 {vA}, 3, {vBp}
    s_lshl_b32 {sT0}, {sWv}, 4
    s_add_u32 {sT0}, {sT0}, {X + MLS}
    v_add_u32 {vA}, {sT0}, {vA}
    v_and_b32 {vB_}, 0x37, {vLane}
    v_cmp_eq_u32 vcc, 0, {vB_}
    s_and_saveexec_b64 {EX}, vcc
    """)
    a.lds(f"ds_write_b64 {vA}, v[196:197]", "mlw")
    a(f"s_mov_b64 exec, {EX}")
    red_write(OACC, vRedW, RED2)
    a(f"""
    v_lshrrev_b32 v102, 7, {vTau}
    v_and_b32 v103, 127, {vTau}
    v_lshlrev_b32 {vC}, 13, v102
    v_lshl_add_u32 {vC}, v103, 3, {vC}
    v_lshlrev_b32 v104, 7, v102
    v_lshlrev_b32 {vA}, 3, v102
    v_add_u32 {vA}, {X + MLS}, {vA}
    s_bfe_u32 {sT0}, {sLA}, 0x40002
    s_lshl_b32 {sT1}, {sT0}, 14
    s_and_b32 {sT2}, {sLA}, 3
    s_lshl_b32 {sT3}, {sT2}, 11
    s_add_u32 {sT1}, {sT1}, {sT3}
    s_lshr_b32 {sT3}, {sLA}, 6
    s_lshl_b32 {sT3}, {sT3}, 10
    s_add_u32 {sT1}, {sT1}, {sT3}
    s_add_u32 {sUO}, {sT1}, {UO}
    s_lshl_b32 {sT1}, {sT0}, 8
    s_lshr_b32 {sT3}, {sLA}, 6
    s_lshl_b32 {sT3}, {sT3}, 6
    s_add_u32 {sT1}, {sT1}, {sT3}
    s_lshl_b32 {sT2}, {sT2}, 4
    s_add_u32 {sT1}, {sT1}, {sT2}
    s_add_u32 {sUML}, {sT1}, {UML}
    v_mov_b32 v95, {vTag}
    v_mov_b32 v99, {vTag}
    v_mov_b32 v101, {vTag}
    """)
    a.barrier()
    for w in range(4):
        a.lds(f"ds_read_b64 v[{80+2*w}:{81+2*w}], {vA} offset:{16*w}", "mlr")
    for w in range(4):
        a.lds(f"ds_read_b32 v{88+w}, {vTau4} offset:{RED2 + w*1024}", "redr")
    a.wait_lg()
    a("v_max3_f32 v98, v80, v82, v84")
    a("v_max_f32 v98, v98, v86")
    for w in range(4):
        a(f"v_sub_f32 v{80+2*w}, v{80+2*w}, v98")
    for w in range(4):
        a(f"v_exp_f32 v{80+2*w}, v{80+2*w}")
    a("v_mul_f32 v94, v80, v88")
    a("v_mul_f32 v100, v80, v81")
    for w in range(1, 4):
        a(f"v_fmac_f32 v94, v{80+2*w}, v{88+w}")
        a(f"v_fmac_f32 v100, v{80+2*w}, v{81+2*w}")
    a(f"s_add_u32 {sT0}, {sUO}, {FOFF}")
    a(f"s_add_u32 {sT1}, {sUML}, {FOFF}")
    if cfg.fast: a(f"buffer_store_dwordx2 v[94:95], {vC}, {WS}, {sT0} offen")
    a(f"""
    v_cmp_eq_u32 vcc, 0, v103
    s_and_saveexec_b64 {EX}, vcc
    s_cbranch_execz L_s_noml
    buffer_store_dwordx4 v[98:101], v104, {WS}, {sT1} offen
    buffer_store_dwordx4 v[98:101], v104, {WS}, {sUML} offen sc1
    L_s_noml:
    s_mov_b64 exec, {EX}
    buffer_store_dwordx2 v[94:95], {vC}, {WS}, {sUO} offen sc1
    s_mov_b64 exec, {EX}
    """)
    stamp(5)
    a(f"s_lshr_b32 {sH}, {sL3}, 2")
    a(f"s_lshr_b32 {sR}, {sL3}, 2")
    if won < 12:
        wo_setup(sQb, sT3)
        while won < 12: wo_load(won, sQb, sT3); won += 1
    a("s_branch L_stage4")

    a.label("L_roleB")
    a.vm = []; a.lg = []
    a(f"""
    s_sub_u32 {sKB}, {sW}, 128
    s_lshl_b32 {sKB}, {sKB}, 17
    s_lshl_b32 {sT0}, {sWv}, 15
    s_add_u32 {sKB}, {sKB}, {sT0}
    s_mul_i32 {sRot}, {sW}, {20 if cfg.rot else 0}
    s_mul_i32 {sT0}, {sWv}, {12 if cfg.rot else 0}
    s_add_u32 {sRot}, {sRot}, {sT0}
    """)
    if cfg.b_r1:
        c_group(0, 0, 1)
    else:
        for g in range(cfg.b_g1): c_group(g)
    common()
    if cfg.pt == 1: pretouch("B")
    if cfg.cstamps: mute.update(range(5, 13))
    def c_throttled(g):
        d = cfg.b_d0 if g < cfg.b_gr else cfg.b_d
        back = g - d // 4
        if back >= 0: a.try_wait_vm(f"c{back}")
        c_group(g)
    VG = 128
    a(f"s_lshr_b32 {sH}, {sL3}, 2")
    a(f"""
    s_bfe_u32 {sT0}, {sW}, 0x10006
    s_lshl_b32 {sQb}, {sT0}, 16
    s_lshl_b32 {sT0}, {sWv}, 14
    s_add_u32 {sQb}, {sQb}, {sT0}
    s_add_u32 {sQb}, {sQb}, {QA}
    """)
    def gather_first():
        hello_issue()
        for k in range(16):
            a(f"s_add_u32 {sT3}, {sQb}, {k*1024}")
            a.vmem(f"buffer_load_dwordx4 {R(VG+4*k,4)}, {vL16}, {WS}, {sT3} offen{' sc1' if cfg.b_qsc1 else ''}", "qa")
    gi = cfg.b_g1
    if cfg.b_r1:
        c_group(0, 1, 4); gi = 1
        while 4 * gi <= cfg.b_r1:
            c_group(gi); gi += 1
    while gi < 8 and gi - (cfg.b_d0 if gi < cfg.b_gr else cfg.b_d) // 4 < 0:
        c_throttled(gi)
        if gi == cfg.b_qpos: gather_first()
        gi += 1
    S1 = 64; RG = 80; AC = 112; AQ = 120; A2 = 244
    vHx = "v243"; vB0, vB1 = "v206", "v207"
    a(f"""
    v_and_b32 {vA}, 3, {vLane}
    v_lshlrev_b32 {vA}, 2, {vA}
    v_bfe_u32 {vB_}, {vLane}, 2, 2
    v_or_b32 {vA}, {vA}, {vB_}
    v_lshrrev_b32 {vB_}, 5, {vLane}
    v_xor_b32 {vA}, {vA}, {vB_}
    v_lshlrev_b32 {vA}, 4, {vA}
    v_and_b32 {vB_}, 31, {vLane}
    v_lshl_add_u32 {vA}, {vB_}, 10, {vA}
    s_lshl_b32 {sT0}, {sWv}, 15
    v_add_u32 v{AC}, {sT0}, {vA}
    v_add_u32 v{AQ}, {X}, {vA}
    v_lshlrev_b32 {vHx}, 2, {vB_}
    v_add_u32 {vHx}, {X}, {vHx}
    """)
    for u in range(1, 8):
        a(f"v_xor_b32 v{AC+u}, {u << 5}, v{AC}")
        a(f"v_xor_b32 v{AQ+u}, {u << 5}, v{AQ}")
    a(f"""
    v_bfe_u32 v64, {vLane}, 2, 2
    v_lshrrev_b32 v65, 5, {vLane}
    v_bfe_u32 v66, {vLane}, 4, 1
    v_bfe_u32 v67, {vLane}, 1, 1
    v_lshl_add_u32 v66, v66, 1, v67
    v_xor_b32 v66, v66, v65
    v_lshl_add_u32 v66, v64, 2, v66
    v_lshlrev_b32 v66, 4, v66
    v_and_b32 v67, 1, {vLane}
    v_lshl_add_u32 v66, v67, 3, v66
    v_lshl_add_u32 v67, v65, 2, v64
    v_lshl_add_u32 v66, v67, 10, v66
    s_lshl_b32 {sT0}, {sWv}, 8
    v_add_u32 v66, {sT0}, v66
    """)
    for ct in range(4):
        a(f"v_xor_b32 v{A2+2*ct}, {ct << 6}, v66")
        a(f"v_xor_b32 v{A2+2*ct+1}, 32, v{A2+2*ct}")
        a(f"v_add_u32 v{A2+2*ct+1}, 8192, v{A2+2*ct+1}")
    a(f"""
    v_lshrrev_b32 {vA}, 1, {vLane}
    v_lshlrev_b32 {vA}, 4, {vA}
    v_and_b32 {vB_}, 1, {vLane}
    v_lshl_add_u32 {vA}, {vB_}, 3, {vA}
    s_lshl_b32 {sT0}, {sWv}, 1
    s_and_b32 {sT0}, {sT0}, 3
    s_lshl_b32 {sT0}, {sT0}, 4
    s_add_u32 {sT1}, {sT0}, 16
    v_xor_b32 {vB0}, {sT0}, {vA}
    v_xor_b32 {vB1}, {sT1}, {vA}
    s_lshl_b32 {sT0}, {sWv}, 13
    s_add_u32 {sT0}, {sT0}, {X}
    v_add_u32 {vB0}, {sT0}, {vB0}
    v_add_u32 {vB1}, {sT0}, {vB1}
    s_mov_b32 {sSpin}, {cfg.spin}
    s_mov_b32 {sPend}, 0xffff
    """)
    while gi < 8:
        c_throttled(gi)
        if gi == cfg.b_qpos: gather_first()
        gi += 1
    if cfg.b_qpos < cfg.b_g1 or cfg.b_qpos > 7: gather_first()
    stamp(2)
    Ltry = a.newlabel("L_try"); Lok = a.newlabel("L_ok"); Lchk = a.newlabel("L_chk")
    a.try_wait_vm("qa")
    stamp(3)
    hello_finish()
    a(f"s_branch {Lchk}")
    a.label(Ltry)
    for k in range(16):
        sk = a.newlabel("L_sk")
        a(f"s_bitcmp1_b32 {sPend}, {k}")
        a(f"s_cbranch_scc0 {sk}")
        a(f"s_add_u32 {sT3}, {sQb}, {k*1024}")
        a(f"buffer_load_dwordx4 {R(VG+4*k,4)}, {vL16}, {WS}, {sT3} offen sc1")
        a.label(sk)
    a("s_waitcnt vmcnt(0)")
    a.label(Lchk)
    tagcheck([VG + 4*k + j for k in range(16) for j in (1, 3)], Lok)
    for k in range(16):
        sk = a.newlabel("L_sk")
        a(f"""s_mov_b64 {EX}, exec
        v_cmpx_eq_u32 vcc, {vTag}, v{VG+4*k+1}
        v_cmpx_eq_u32 vcc, {vTag}, v{VG+4*k+3}
        s_nop 3
        s_cmp_eq_u64 exec, {EX}
        s_mov_b64 exec, {EX}
        s_cbranch_scc0 {sk}
        s_bitset0_b32 {sPend}, {k}""")
        a.label(sk)
    a(f"s_sub_u32 {sSpin}, {sSpin}, 1")
    a(f"s_cmp_eq_u32 {sSpin}, 0")
    a(f"s_cbranch_scc0 {Ltry}")
    timeout_mark(2)
    a.label(Lok)
    if cfg.stamps: a(f"s_sub_u32 s{66+2*15}, {cfg.spin}, {sSpin}"); a(f"s_mov_b32 s{67+2*15}, 0")
    stamp(4)
    def uv_issue():
        a(f"""
        v_lshlrev_b32 v208, 16, {vKg}
        v_lshl_add_u32 v208, {vI}, 4, v208
        s_and_b32 {sT0}, {sL3}, 3
        s_lshl_b32 {sT0}, {sT0}, 7
        s_lshl_b32 {sT2}, {sWv}, 5
        s_add_u32 {sT0}, {sT0}, {sT2}
        s_lshl_b32 {sT0}, {sT0}, 13
        s_lshl_b32 {sT2}, {sH}, 8
        s_add_u32 {sT0}, {sT0}, {sT2}
        """)
        for tt in range(8):
            a.vmem(f"buffer_load_dwordx4 a[{32+4*tt}:{35+4*tt}], v208, {VV}, {sT0} offen{WNT}", "uv")
            if tt < 7: a(f"s_add_u32 {sT0}, {sT0}, 8192")
    bwo = [0]
    def b_wo(k=1):
        for _ in range(k):
            if bwo[0] < 12:
                wo_load(bwo[0], sUO, sUML); bwo[0] += 1
    early = []
    if cfg.b_uv == -1:
        a(f"""
        v_lshlrev_b32 v208, 16, {vKg}
        v_lshl_add_u32 v208, {vI}, 4, v208
        s_and_b32 {sQb}, {sL3}, 3
        s_lshl_b32 {sQb}, {sQb}, 7
        s_lshl_b32 {sT2}, {sWv}, 5
        s_add_u32 {sQb}, {sQb}, {sT2}
        s_lshl_b32 {sQb}, {sQb}, 13
        s_lshl_b32 {sT2}, {sH}, 8
        s_add_u32 {sQb}, {sQb}, {sT2}
        """)
        def uv_one(tt):
            def f():
                a(f"s_add_u32 {sT0}, {sQb}, {tt*8192}")
                a.vmem(f"buffer_load_dwordx4 a[{32+4*tt}:{35+4*tt}], v208, {VV}, {sT0} offen{WNT}", "uv")
            return f
        early += [uv_one(tt) for tt in range(8)]
    wo_setup(sUO, sUML)
    if cfg.b_wo == -1: early += [b_wo] * cfg.b_won1
    for k in range(16):
        u, half = k >> 1, k & 1
        if half == 0:
            a(f"v_xor_b32 v204, {(u & 3) << 6}, {vB0 if u < 4 else vB1}")
        a(f"v_mov_b32 v{VG+4*k+1}, v{VG+4*k+2}")
        a.lds(f"ds_write_b64 v204, v[{VG+4*k}:{VG+4*k+1}] offset:{u*1024 + half*512}", "qw")
        if early: early.pop(0)()
    while early: early.pop(0)()
    if "c7" in a.vm: a.wait_vm("c7")
    a.barrier()
    stamp(1)
    if cfg.pt == 2: pretouch("B2")
    D1 = 4
    def g1read(t):
        s = RG + 8 * (t % D1)
        a.lds(f"ds_read_b128 {R(s,4)}, v{AC + (t & 7)} offset:{(t >> 3)*256}", f"g1c{t}")
        a.lds(f"ds_read_b128 {R(s+4,4)}, v{AQ + (t & 7)} offset:{(t >> 3)*256}", f"g1q{t}")
    for t in range(D1): g1read(t)
    if cfg.b_uv == 0: uv_issue()
    if cfg.b_wo == 0: b_wo(12)
    g1n = cfg.b_won2 if cfg.b_wo == -1 else 0
    for t in range(32):
        if g1n and t >= 32 - 2 * cfg.b_won2 and t % 2 == 0: b_wo(1)
        a.wait_lg(f"g1q{t}")
        s = RG + 8 * (t % D1)
        c = "0" if t == 0 else R(S1, 16)
        a(f"v_mfma_f32_32x32x16_bf16 {R(S1,16)}, {R(s,4)}, {R(s+4,4)}, {c}")
        if t + D1 < 32: g1read(t + D1)
    stamp(5)
    vM, vL = "v196", "v197"
    a(f"s_lshl_b32 {sT0}, {sWv}, 7")
    a(f"v_add_u32 v205, {sT0}, {vHx}")
    a(f"v_max3_f32 {vM}, v{S1}, v{S1+1}, v{S1+2}")
    for k in range(3, 15, 2):
        a(f"v_max3_f32 {vM}, {vM}, v{S1+k}, v{S1+k+1}")
    a(f"v_max_f32 {vM}, {vM}, v{S1+15}")
    a(f"v_mov_b32 {vA}, {vM}")
    a(f"v_permlane32_swap_b32 {vM}, {vA}")
    a(f"v_max_f32 {vM}, {vM}, {vA}")
    a.barrier()
    a.lds(f"ds_write_b32 v205, {vM} offset:{MX}", "mxw")
    a.barrier()
    for w in range(4):
        a.lds(f"ds_read_b32 v{80+w}, {vHx} offset:{MX + 128*w}", "mxr")
    a(f"s_lshl_b32 {sT0}, {sWv}, 11")
    a(f"s_add_u32 {sT0}, {sT0}, {X}")
    a(f"v_add_u32 v204, {sT0}, {vL16}")
    a.wait_lg()
    a(f"v_max3_f32 {vM}, v80, v81, v82")
    a(f"v_max_f32 {vM}, {vM}, v83")
    a(f"v_mul_f32 {vM}, {sC1}, {vM}")
    if cfg.b_uv == 1: uv_issue()
    for k in range(16):
        a(f"v_fma_f32 v{S1+k}, v{S1+k}, {sC1}, -{vM}")
    for k in range(16):
        a(f"v_exp_f32 v{S1+k}, v{S1+k}")
        if cfg.b_wo in (1, -1) or (cfg.b_wo == 2 and bwo[0] < cfg.b_won3): b_wo(1)
    for k in range(4):
        a(f"v_cvt_pk_bf16_f32 v{80+k}, v{S1+2*k}, v{S1+2*k+1}")
    a.lds(f"ds_write_b128 v204, v[80:83] offset:{PF}", "pfw")
    for k in range(4, 8):
        a(f"v_cvt_pk_bf16_f32 v{80+k}, v{S1+2*k}, v{S1+2*k+1}")
    a.lds(f"ds_write_b128 v204, v[84:87] offset:{PF + 1024}", "pfw")
    a(f"v_add_f32 {vL}, v{S1}, v{S1+1}")
    for k in range(2, 16):
        a(f"v_add_f32 {vL}, {vL}, v{S1+k}")
    a(f"v_mov_b32 {vB_}, {vL}")
    a(f"v_permlane32_swap_b32 {vL}, {vB_}")
    a(f"v_add_f32 {vL}, {vL}, {vB_}")
    a.lds(f"ds_write_b32 v205, {vL} offset:{LS}", "lsw")
    a(f"v_add_u32 v204, {X}, {vL16}")
    a.barrier()
    PFR = 208
    for kt in range(8):
        a.lds(f"ds_read_b128 {R(PFR+4*kt,4)}, v204 offset:{PF + 1024*kt}", "pfr")
    for w in range(4):
        a.lds(f"ds_read_b32 v{80+w}, {vHx} offset:{LS + 128*w}", "lsr")
    a.wait_lg()
    a(f"v_add_f32 v80, v80, v81")
    a(f"v_add_f32 v82, v82, v83")
    a(f"v_add_f32 {vL}, v80, v82")
    if not cfg.g2swap: a.barrier()
    stamp(12)
    OA = 128; RG2 = 80; D2 = 6
    st2 = [(kt, ct) for kt in range(8) for ct in range(4)]
    def g2read(idx):
        kt, ct = st2[idx]
        if kt == 4 and ct == 0:
            for q in range(8): a(f"v_add_u32 v{A2+q}, 65536, v{A2+q}")
        s = RG2 + 4 * (idx % D2)
        off = (kt & 3) * 16384
        a.lds(f"ds_read_b64_tr_b16 v[{s}:{s+1}], v{A2+2*ct} offset:{off}", f"g2a{idx}")
        a.lds(f"ds_read_b64_tr_b16 v[{s+2}:{s+3}], v{A2+2*ct+1} offset:{off}", f"g2b{idx}")
    for idx in range(D2): g2read(idx)
    for idx, (kt, ct) in enumerate(st2):
        a.wait_lg(f"g2b{idx}")
        s = RG2 + 4 * (idx % D2)
        c = "0" if kt == 0 else R(OA + 16*ct, 16)
        if cfg.g2swap:
            a(f"v_mfma_f32_32x32x16_bf16 {R(OA+16*ct,16)}, {R(PFR+4*kt,4)}, {R(s,4)}, {c}")
        else:
            a(f"v_mfma_f32_32x32x16_bf16 {R(OA+16*ct,16)}, {R(s,4)}, {R(PFR+4*kt,4)}, {c}")
        if idx + D2 < len(st2): g2read(idx + D2)
        if cfg.g2swap and idx == 8:
            a(f"""
            v_lshrrev_b32 {vA}, 5, {vLane}
            v_lshlrev_b32 v205, 19, {vA}
            v_and_b32 {vA}, 31, {vLane}
            v_lshl_add_u32 v205, {vA}, 3, v205
            s_sub_u32 {sT1}, {sW}, 128
            s_lshl_b32 {sT1}, {sT1}, 8
            s_lshl_b32 {sT0}, {sWv}, 15
            s_add_u32 {sT1}, {sT1}, {sT0}
            s_add_u32 {sT1}, {sT1}, {PB}
            """)
    stamp(6)
    if cfg.g2swap:
        for i in range(16):
            t = 80 + 2 * (i % 8)
            a(f"v_cvt_pk_bf16_f32 v{t}, v{OA+i}, v{OA+16+i}")
            a(f"v_cvt_pk_bf16_f32 v{t+1}, v{OA+32+i}, v{OA+48+i}")
            a(f"s_add_u32 {sT0}, {sT1}, {(8*(i//4) + (i%4))*131072}")
            a.vmem(f"buffer_store_dwordx2 v[{t}:{t+1}], v205, {WS}, {sT0} offen sc1", "pb_st")
    G2OLD_BEGIN = len(a.items)
    a(f"""
    v_and_b32 {vA}, 31, {vLane}
    v_lshlrev_b32 v204, 10, {vA}
    v_and_b32 {vA}, 7, {vLane}
    v_lshl_add_u32 v204, {vA}, 4, v204
    v_lshrrev_b32 {vA}, 5, {vLane}
    v_lshl_add_u32 v204, {vA}, 3, v204
    s_lshl_b32 {sT0}, {sWv}, 8
    s_add_u32 {sT0}, {sT0}, {X}
    v_add_u32 v204, {sT0}, v204
    """)
    for ct in range(4):
        for g in range(4):
            i0 = OA + 16*ct + 4*g
            t = 80 + 2 * ((ct*4+g) % 8)
            a(f"v_cvt_pk_bf16_f32 v{t}, v{i0}, v{i0+1}")
            a(f"v_cvt_pk_bf16_f32 v{t+1}, v{i0+2}, v{i0+3}")
            ad = f"v{96 + (ct*4+g) % 8}"
            a(f"v_xor_b32 {ad}, {(4*ct+g) << 4}, v204")
            a.lds(f"ds_write_b64 {ad}, v[{t}:{t+1}]", "tbw")
            if (ct*4+g) % 8 == 7 and ct < 3: a.wait_lg()
    a(f"""
    s_lshl_b32 {sT0}, {sWv}, 13
    s_add_u32 {sT0}, {sT0}, {X}
    v_add_u32 v204, {sT0}, {vL16}
    v_lshlrev_b32 v205, 15, {vKg}
    v_lshl_add_u32 v205, {vI}, 4, v205
    s_sub_u32 {sT1}, {sW}, 128
    s_lshl_b32 {sT1}, {sT1}, 8
    s_lshl_b32 {sT0}, {sWv}, 20
    s_add_u32 {sT1}, {sT1}, {sT0}
    s_add_u32 {sT1}, {sT1}, {PB}
    """)
    for u in range(8):
        a(f"v_xor_b32 v{104+u}, {u << 4}, v204")
    a.barrier()
    for u in range(8):
        a.lds(f"ds_read_b128 {R(128+4*u,4)}, v{104+u} offset:{u*1024}", f"tbr{u}")
    for u in range(8):
        a.wait_lg(f"tbr{u}")
        a.vmem(f"buffer_store_dwordx4 {R(128+4*u,4)}, v205, {WS}, {sT1} offen sc1", "pb_st")
        if u < 7: a(f"s_add_u32 {sT1}, {sT1}, 131072")
    if cfg.g2swap:
        del a.items[G2OLD_BEGIN:]; a.lg = []; a.vm = a.vm[:len(a.vm) - 8]
    stamp(7)
    a(f"""
    v_mov_b32 v80, {vM}
    v_mov_b32 v81, {vTag}
    v_mov_b32 v82, {vL}
    v_mov_b32 v83, {vTag}
    v_lshlrev_b32 {vA}, 11, {vLane}
    s_sub_u32 {sT1}, {sW}, 128
    s_lshl_b32 {sT1}, {sT1}, 4
    s_add_u32 {sT1}, {sT1}, {PBML}
    s_lshl_b32 {sQb}, {sH}, 11
    s_add_u32 {sQb}, {sQb}, {PBML}
    v_lshlrev_b32 v204, 4, {vTau}
    """)
    if cfg.b_wo == 6:
        b_wo(cfg.b_won6)
        a.wait_vm("pb_st")
    else:
        a(f"s_waitcnt vmcnt(0)")
    a("s_barrier")
    a(f"""
    v_cmp_gt_u32 vcc, 32, {vTau}
    s_and_saveexec_b64 {EX}, vcc
    s_cbranch_execz L_b_noml
    buffer_store_dwordx4 v[80:83], {vA}, {WS}, {sT1} offen sc1
    L_b_noml:
    s_mov_b64 exec, {EX}
    """)
    stamp(8)
    if cfg.b_uv == 2: uv_issue()
    if cfg.b_wo <= 2 or cfg.b_wo == 6: b_wo(12)
    def ml_issue():
        a.vmem(f"buffer_load_dwordx4 v[80:83], v204, {WS}, {sQb} offen sc1", "pbml")
    if cfg.b_wo == 5:
        Lml = a.newlabel("L_mlok")
        a(f"v_and_b32 v204, 127, {vTau}")
        a(f"v_lshlrev_b32 v204, 4, v204")
        a(f"s_mov_b32 {sPend}, 0")
        for _ in range(cfg.b_try):
            a.vm = []
            ml_issue()
            a("s_waitcnt vmcnt(0)")
            tagcheck([81, 83], Lml)
        a(f"s_mov_b32 {sPend}, 1")
        a.vm = []
        b_wo(12)
        ml_issue()
        poll(ml_issue, [81, 83], "pbml", 3)
        a.label(Lml)
        a(f"s_cmp_ge_u32 {sWv}, 2")
        a("s_cbranch_scc1 L_b_skipml")
    else:
        a(f"s_cmp_ge_u32 {sWv}, 2")
        a("s_cbranch_scc1 L_b_skipml")
        a.vm = []
        ml_issue()
        poll(ml_issue, [81, 83], "pbml", 3)
    a("v_mov_b32 v84, v80")
    wave_reduce("v84", "v_max_f32", vA)
    a("v_sub_f32 v80, v80, v84")
    a("v_exp_f32 v80, v80")
    a(f"v_lshlrev_b32 {vC}, 1, {vTau}")
    a("v_mul_f32 v85, v80, v82")
    wave_reduce("v85", "v_add_f32", vA)
    a("v_rcp_f32 v85, v85")
    a(f"v_add_u32 {vC}, {X}, {vC}")
    a("v_mul_f32 v80, v80, v85")
    a("v_cvt_pk_bf16_f32 v80, v80, v80")
    a.lds(f"ds_write_b16 {vC}, v80 offset:{XS2}", "xs2w")
    a.wait_lg()
    a.label("L_b_skipml")
    a.vm = []
    vXa = "v205"
    a(f"""
    s_lshl_b32 {sT0}, {sL3}, 15
    s_lshl_b32 {sT1}, {sWv}, 13
    s_add_u32 {sT0}, {sT0}, {sT1}
    s_add_u32 {sT0}, {sT0}, {PB}
    v_lshlrev_b32 v204, 11, {vKg}
    v_lshl_add_u32 v204, {vI}, 4, v204
    s_lshl_b32 {sT1}, {sWv}, 6
    s_add_u32 {sT1}, {sT1}, {X}
    v_lshlrev_b32 {vXa}, 4, {vKg}
    v_add_u32 {vXa}, {sT1}, {vXa}
    s_add_u32 {sUO}, {sL3}, {(UO + 0x40000)//2048}
    s_lshl_b32 {sUO}, {sUO}, 11
    """)
    a.barrier()
    stamp(9)
    for tt in range(8):
        a.vmem(f"buffer_load_dwordx4 {R(128+4*tt,4)}, v204, {WS}, {sT0} offen offset:{256*tt} sc1", f"pb{tt}")
    if cfg.b_uv == 3: uv_issue()
    def combine(with_wo):
        if with_wo:
            wo_setup(sUML, sQb)
            for n in range(12): wo_load(n, sUML, sQb)
        a.lds(f"ds_read_b128 v[88:91], {vXa} offset:{XS2}", "xf")
        a(f"s_lshr_b32 {sT0}, {sWv}, 1")
        a(f"v_cmp_eq_u32 vcc, {sT0}, {vBp}")
        a.wait_lg()
        for r in range(4):
            a(f"v_cndmask_b32 v{88+r}, 0, v{88+r}, vcc")
        gemv8([R(128+4*tt, 4) for tt in range(8)], 88, ACC, [f"pb{tt}" for tt in range(8)])
    if cfg.b_wo == 5:
        La = a.newlabel("L_cmbA"); Lj = a.newlabel("L_cmbJ")
        vm0 = list(a.vm); lg0 = list(a.lg)
        a(f"s_cmp_eq_u32 {sPend}, 1")
        a(f"s_cbranch_scc1 {La}")
        combine(True)
        a(f"s_branch {Lj}")
        a.label(La)
        a.vm = list(vm0); a.lg = list(lg0)
        combine(False)
        a.label(Lj)
        a.vm = []
    else:
        combine(cfg.b_wo == 3)
    red_write(ACC, vRedW, REDA)
    if cfg.g2swap:
        a(f"""
        v_and_b32 {vC}, 3, {vTau}
        v_lshlrev_b32 {vC}, 6, {vC}
        v_bfe_u32 {vA}, {vTau}, 2, 5
        v_lshl_add_u32 {vC}, {vA}, 1, {vC}
        v_lshrrev_b32 {vA}, 7, {vTau}
        v_lshl_add_u32 {vC}, {vA}, 8, {vC}
        """)
    else:
        a(f"v_lshlrev_b32 {vC}, 1, {vTau}")
    a(f"v_add_u32 {vC}, {X}, {vC}")
    a(f"v_lshl_add_u32 {vXa}, {vBp}, 8, {vXa}")
    a.barrier()
    red_sum4(80, 84, REDA, 1024)
    a("v_cvt_pk_bf16_f32 v80, v80, v80")
    a.lds(f"ds_write_b16 {vC}, v80 offset:{XS3}", "xs3w")
    a.barrier()
    a.lds(f"ds_read_b128 v[88:91], {vXa} offset:{XS3}", "xf")
    a.wait_lg()
    if cfg.b_uv == 3: a.try_wait_vm("uv")
    gemv8([f"a[{32+4*tt}:{35+4*tt}]" for tt in range(8)], 88, ACC, None)
    red_write(ACC, vRedW, REDB)
    a(f"""
    v_mov_b32 v81, {vTag}
    v_mov_b32 v92, 0
    v_mov_b32 v93, {vTag}
    v_mov_b32 v94, 0x3e800000
    v_mov_b32 v95, {vTag}
    v_lshrrev_b32 {vA}, 7, {vTau}
    v_lshlrev_b32 {vA}, 6, {vA}
    s_lshl_b32 {sT0}, {sH}, 7
    s_and_b32 {sT1}, {sL3}, 3
    s_lshl_b32 {sT1}, {sT1}, 4
    s_add_u32 {sT0}, {sT0}, {sT1}
    s_add_u32 {sT0}, {sT0}, {UML + 0x1000}
    s_add_u32 {sT1}, {sT0}, {FOFF}
    v_and_b32 {vB_}, 127, {vTau}
    v_cmp_eq_u32 vcc, 0, {vB_}
    s_and_saveexec_b64 {EX}, vcc
    s_cbranch_execz L_b_noml2
    buffer_store_dwordx4 v[92:95], {vA}, {WS}, {sT1} offen
    buffer_store_dwordx4 v[92:95], {vA}, {WS}, {sT0} offen sc1
    L_b_noml2:
    s_mov_b64 exec, {EX}
    """)
    a.barrier()
    red_sum4(80, 84, REDB, 1024)
    a(f"s_add_u32 {sT0}, {sUO}, {FOFF}")
    if cfg.fast: a(f"buffer_store_dwordx2 v[80:81], {vTau8}, {WS}, {sT0} offen")
    a(f"buffer_store_dwordx2 v[80:81], {vTau8}, {WS}, {sUO} offen sc1")
    stamp(10)
    a(f"s_add_u32 {sR}, {sH}, 32")

    a.label("L_stage4")
    a.vm = []; a.lg = []; a.smem = cfg.stamps
    a(f"""
    s_lshl_b32 {sUO}, {sBr}, 18
    s_lshl_b32 {sT0}, {sH}, 13
    s_add_u32 {sUO}, {sUO}, {sT0}
    s_add_u32 {sUO}, {sUO}, {UO}
    s_lshl_b32 {sUML}, {sBr}, 12
    s_lshl_b32 {sT0}, {sH}, 7
    s_add_u32 {sUML}, {sUML}, {sT0}
    s_add_u32 {sUML}, {sUML}, {UML}
    s_add_u32 {sUO}, {sUO}, {sFast}
    s_add_u32 {sUML}, {sUML}, {sFast}
    v_lshrrev_b32 v207, 7, {vTau}
    v_lshlrev_b32 v207, 6, v207
    s_and_b32 {sT0}, {sL3}, 3
    s_cmp_eq_u32 {sT0}, 3
    s_cbranch_scc1 L_final
    """)
    def u_one(s):
        def f():
            if s >= 2: a(f"s_add_u32 {sT3}, {sUO}, 4096")
            a.vmem(f"buffer_load_dwordx2 v[{80+2*s}:{81+2*s}], {vTau8}, {WS}, {sUO if s < 2 else sT3} offen offset:{2048*(s & 1)} sc1", "u")
            a.vmem(f"buffer_load_dwordx4 v[{88+4*s}:{91+4*s}], v207, {WS}, {sUML} offen offset:{16*s} sc1", "u")
        return f
    def u_issue():
        a(f"s_add_u32 {sT3}, {sUO}, 4096")
        a.vmem(f"buffer_load_dwordx2 v[80:81], {vTau8}, {WS}, {sUO} offen sc1", "u")
        a.vmem(f"buffer_load_dwordx2 v[82:83], {vTau8}, {WS}, {sUO} offen offset:2048 sc1", "u")
        a.vmem(f"buffer_load_dwordx2 v[84:85], {vTau8}, {WS}, {sT3} offen sc1", "u")
        a.vmem(f"buffer_load_dwordx2 v[86:87], {vTau8}, {WS}, {sT3} offen offset:2048 sc1", "u")
        for s in range(4):
            a.vmem(f"buffer_load_dwordx4 v[{88+4*s}:{91+4*s}], v207, {WS}, {sUML} offen offset:{16*s} sc1", "u")
    u_issue()
    a(f"""
    v_lshlrev_b32 v110, 1, {vTau}
    v_add_u32 v110, {X}, v110
    s_lshl_b32 {sT0}, {sWv}, 6
    s_add_u32 {sT0}, {sT0}, {X}
    v_lshlrev_b32 v111, 4, {vKg}
    v_lshl_add_u32 v111, {vBp}, 8, v111
    v_add_u32 v111, {sT0}, v111
    v_lshlrev_b32 v112, 10, {vBp}
    v_lshl_add_u32 v112, {vKg}, 7, v112
    v_and_b32 {vA}, 7, {vLane}
    v_lshl_add_u32 v112, {vA}, 2, v112
    s_lshl_b32 {sT0}, {sWv}, 11
    s_add_u32 {sT0}, {sT0}, {X}
    v_add_u32 v112, {sT0}, v112
    v_lshrrev_b32 v113, 7, {vTau}
    v_and_b32 v114, 127, {vTau}
    v_lshlrev_b32 v115, 10, v113
    v_lshl_add_u32 v115, v114, 3, v115
    v_add_u32 v115, {X}, v115
    v_mul_u32_u24 v116, 4608, v113
    v_lshl_add_u32 v116, v114, 4, v116
    s_lshl_b32 {sT0}, {sBr}, 5
    s_add_u32 {sT0}, {sT0}, {sH}
    s_mul_i32 {sT0}, {sT0}, 9216
    s_and_b32 {sT1}, {sL3}, 3
    s_mul_i32 {sT1}, {sT1}, 1536
    s_add_u32 {sT0}, {sT0}, {sT1}
    s_add_u32 {sQb}, {sT0}, {OP}
    """)
    if cfg.pend:
        poll_groups([(u_one(s), [81+2*s, 89+4*s, 91+4*s]) for s in range(4)], "u", 4)
    else:
        poll(u_issue, [81, 83, 85, 87] + [88+4*s+j for s in range(4) for j in (1, 3)], "u", 4)
    stamp(13)
    a("v_max3_f32 v104, v88, v92, v96")
    a("v_max_f32 v104, v104, v100")
    for s in range(4): a(f"v_sub_f32 v{88+4*s}, v{88+4*s}, v104")
    for s in range(4): a(f"v_exp_f32 v{88+4*s}, v{88+4*s}")
    a("v_mul_f32 v105, v88, v80")
    a("v_mul_f32 v106, v88, v90")
    for s in range(1, 4):
        a(f"v_fmac_f32 v105, v{88+4*s}, v{80+2*s}")
        a(f"v_fmac_f32 v106, v{88+4*s}, v{90+4*s}")
    a("v_rcp_f32 v106, v106")
    a("v_mul_f32 v105, v105, v106")
    a("v_cvt_pk_bf16_f32 v105, v105, v105")
    a.lds(f"ds_write_b16 v110, v105 offset:{XS}", "xsw")
    a.barrier()
    a.lds(f"ds_read_b128 v[88:91], v111 offset:{XS}", "xf")
    a.wait_lg()
    A0, AA, AB = 68, 92, 96
    build_frag(FR0, "v88", 0)
    for tt in range(8):
        cur = FR0 if tt % 2 == 0 else FR1
        nxt = FR1 if tt % 2 == 0 else FR0
        if tt < 7: build_frag(nxt, f"v{88 + (tt+1)//2}", (tt+1) % 2)
        c = "0" if tt == 0 else R(A0, 4)
        a(f"v_mfma_f32_16x16x32_bf16 {R(A0,4)}, a[{128+4*tt}:{131+4*tt}], {R(cur,4)}, {c}")
        acc = AA if tt % 2 == 0 else AB
        c = "0" if tt < 2 else R(acc, 4)
        a(f"v_mfma_f32_16x16x32_bf16 {R(acc,4)}, a[{160+4*(tt//2)}:{163+4*(tt//2)}], {R(cur,4)}, {c}")
    a(f"v_cmp_gt_u32 vcc, 32, {vLane}")
    red_write(A0, "v112", RED4)
    for r in range(4):
        a(f"v_cndmask_b32 v{AA+r}, v{AB+r}, v{AA+r}, vcc")
    red_write(AA, "v112", RED4 + 512)
    a.barrier()
    for w in range(4):
        a.lds(f"ds_read_b64 v[{80+2*w}:{81+2*w}], v115 offset:{RED4 + 2048*w}", "r4")
        a.lds(f"ds_read_b64 v[{88+2*w}:{89+2*w}], v115 offset:{RED4 + 2048*w + 256}", "r4")
    a(f"v_cmp_le_u32 vcc, 64, v114")
    a(f"v_mov_b32 v101, {vTag}")
    a(f"v_mov_b32 v103, {vTag}")
    a.wait_lg()
    for k in range(2):
        a(f"v_add_f32 v{80+k}, v{80+k}, v{82+k}")
        a(f"v_add_f32 v{84+k}, v{84+k}, v{86+k}")
        a(f"v_add_f32 v{88+k}, v{88+k}, v{90+k}")
        a(f"v_add_f32 v{92+k}, v{92+k}, v{94+k}")
        a(f"v_add_f32 v{80+k}, v{80+k}, v{84+k}")
        a(f"v_add_f32 v{88+k}, v{88+k}, v{92+k}")
        a(f"v_cndmask_b32 v{88+k}, 0, v{88+k}, vcc")
        a(f"v_add_f32 v{100+2*k}, v{80+k}, v{88+k}")
    a(f"""
    v_cmp_gt_u32 vcc, 96, v114
    s_and_saveexec_b64 {EX}, vcc
    buffer_store_dwordx4 v[100:103], v116, {WS}, {sQb} offen sc1
    s_mov_b64 exec, {EX}
    """)
    stamp(11)
    a("s_branch L_done")

    a.label("L_final")
    a.vm = []; a.lg = []
    a(f"""
    s_cmp_ge_u32 {sR}, 36
    s_cbranch_scc1 L_done
    s_cmp_ge_u32 {sR}, 18
    s_cselect_b32 {sT0}, 1, 0
    s_cselect_b32 {sT1}, 18, 0
    s_sub_u32 {sT1}, {sR}, {sT1}
    s_mul_i32 {sT2}, {sT0}, 4608
    s_lshl_b32 {sT3}, {sT1}, 8
    s_add_u32 {sT2}, {sT2}, {sT3}
    s_mul_i32 {sT3}, {sWv}, {16*9216}
    s_add_u32 {sQb}, {sT2}, {sT3}
    s_add_u32 {sQb}, {sQb}, {OP}
    v_mul_u32_u24 v204, 9216, {vKg}
    v_lshl_add_u32 v204, {vI}, 4, v204
    s_mul_i32 {sUO}, {sT0}, 2304
    s_lshl_b32 {sT1}, {sT1}, 6
    s_add_u32 {sUO}, {sUO}, {sT1}
    """)
    def f_one(n):
        def f():
            a(f"s_add_u32 {sT3}, {sQb}, {n*4*9216}")
            a.vmem(f"buffer_load_dwordx4 v[{80+4*n}:{83+4*n}], v204, {WS}, {sT3} offen sc1", "f")
        return f
    def f_issue():
        for n in range(4): f_one(n)()
    if cfg.gate:
        def gate_issue():
            for s_ in range(4):
                a.vmem(f"buffer_load_dwordx4 v[{88+4*s_}:{91+4*s_}], v207, {WS}, {sUML} offen offset:{16*s_} sc1", "g")
        gate_issue()
        poll(gate_issue, [88+4*s_+j for s_ in range(4) for j in (1, 3)], "g", 7)
    if not cfg.p2f: f_issue()
    a(f"""
    s_lshl_b32 {sT0}, {sWv}, 7
    s_add_u32 {sT0}, {sT0}, {X}
    v_lshlrev_b32 v110, 3, {vI}
    v_add_u32 v110, {sT0}, v110
    v_lshlrev_b32 v111, 8, {vKg}
    v_lshl_add_u32 v111, {vI}, 3, v111
    v_add_u32 v111, {X}, v111
    v_mul_u32_u24 v112, 1152, {vKg}
    v_lshl_add_u32 v112, {vI}, 2, v112
    """)
    def f_consume(b):
        a(f"v_add_f32 v{b}, v{b}, v{b+4}")
        a(f"v_add_f32 v{b+8}, v{b+8}, v{b+12}")
        a(f"v_add_f32 v{b+2}, v{b+2}, v{b+6}")
        a(f"v_add_f32 v{b+10}, v{b+10}, v{b+14}")
        a(f"v_add_f32 v80, v{b}, v{b+8}")
        a(f"v_add_f32 v81, v{b+2}, v{b+10}")
    if cfg.p2f:
        def f_issue2(b):
            for n in range(4):
                a(f"s_add_u32 {sT3}, {sQb}, {n*4*9216}")
                a(f"buffer_load_dwordx4 v[{b+4*n}:{b+3+4*n}], v204, {WS}, {sT3} offen sc1")
        def f_pace():
            a(f"v_mov_b32 v120, 0")
            a(f"buffer_load_dword v121, v120, {WS}, 0 offen sc1" if cfg.p2f == 2 else f"buffer_load_dword v121, v120, {WS}, 0 offen")
        poll2(f_issue2, 4, 128, 144, [4*n+j for n in range(4) for j in (1, 3)], 5, f_pace, f_consume)
        stamp(13)
    else:
        if cfg.pend:
            poll_groups([(f_one(n), [81+4*n, 83+4*n]) for n in range(4)], "f", 5)
        else:
            poll(f_issue, [80+4*n+j for n in range(4) for j in (1, 3)], "f", 5)
        stamp(13)
        f_consume(80)
    xlane_reduce("v80", "v_add_f32", vA)
    xlane_reduce("v81", "v_add_f32", vB_)
    a(f"""
    v_cmp_gt_u32 vcc, 16, {vLane}
    s_and_saveexec_b64 {EX}, vcc
    """)
    a.lds(f"ds_write_b64 v110, v[80:81] offset:{RF}", "rfw")
    a(f"s_mov_b64 exec, {EX}")
    a.barrier()
    a(f"""
    v_cmp_gt_u32 vcc, 32, {vTau}
    s_and_saveexec_b64 {EX}, vcc
    s_cbranch_execz L_f_skip
    ds_read_b64 v[80:81], v111 offset:{RF}
    ds_read_b64 v[82:83], v111 offset:{RF + 128}
    s_waitcnt lgkmcnt(0)
    v_add_f32 v80, v80, v82
    v_add_f32 v81, v81, v83
    v_cvt_pk_bf16_f32 v80, v80, v81
    buffer_store_dword v80, v112, {OUT}, {sUO} offen
    s_cmp_lg_u32 {sR}, 0
    s_cbranch_scc1 L_f_skip
    v_mov_b32 {vA}, 0
    v_cmp_eq_u32 vcc, 0, {vTau}
    s_and_b64 exec, exec, vcc
    buffer_store_dword {vTag}, {vA}, {WS}, 0 offen sc1
    L_f_skip:
    s_mov_b64 exec, {EX}
    """)
    stamp(11)
    a.label("L_done")
    if cfg.stamps:
        a(f"""
        s_waitcnt lgkmcnt(0)
        s_lshl_b32 {sT0}, {sW}, 2
        s_add_u32 {sT0}, {sT0}, {sWv}
        s_lshl_b32 {sT0}, {sT0}, 7
        s_add_u32 {sT0}, {sT0}, {STAMP}
        v_mov_b32 {vA}, 0
        v_cmp_eq_u32 vcc, 0, {vLane}
        s_and_saveexec_b64 {EX}, vcc
        """)
        for k in range(NST):
            a(f"v_mov_b32 v80, s{66+2*k}")
            a(f"v_mov_b32 v81, s{67+2*k}")
            a(f"buffer_store_dwordx2 v[80:81], {vA}, {WS}, {sT0} offen offset:{8*k}")
            a("s_nop 1")
        if cfg.dbgt:
            a(f"""
            s_memrealtime s[98:99]
            s_mov_b32 s32, s60
            s_mov_b32 s33, s61
            s_mov_b32 s34, 256
            s_mov_b32 s35, 0x20000
            s_waitcnt lgkmcnt(0)
            s_not_b32 {sT0}, s66
            v_mov_b32 v80, {sT0}
            v_mov_b32 v81, s66
            v_mov_b32 v82, s98
            buffer_atomic_umax v80, {vA}, s[32:35], 0 offen sc1
            buffer_atomic_umax v81, {vA}, s[32:35], 0 offen offset:4 sc1
            buffer_atomic_umax v82, {vA}, s[32:35], 0 offen offset:8 sc1
            s_cmp_ge_u32 {sW}, 128
            s_cbranch_scc1 L_dbgB
            """)
            for j, k in enumerate((1, 8, 7, 2, 4, 5)):
                a(f"v_mov_b32 v{84+j}, s{66+2*k}")
                a(f"buffer_atomic_umax v{84+j}, {vA}, s[32:35], 0 offen offset:{12+4*j} sc1")
            a("s_branch L_dbgE")
            a.label("L_dbgB")
            for j, k in enumerate((2, 4, 5, 7, 9, 10, 13)):
                a(f"v_mov_b32 v{84+j}, s{66+2*k}")
                a(f"buffer_atomic_umax v{84+j}, {vA}, s[32:35], 0 offen offset:{36+4*j} sc1")
            a.label("L_dbgE")
            a("s_waitcnt vmcnt(0)")
        else:
            a(f"s_mov_b64 exec, {EX}")
    a.label("L_end")
    a("s_endpgm")
    return a

HEADER = open("cdna_kernels/" + KN + ".s.ref").read().split("; Override launch")[0]
def build(cfg):
    a = gen(cfg)
    body = a.text()
    name = KN + "_kernel"
    s = HEADER
    s += "; Override launch geometry by editing the next line.\n"
    s += "; @launch grid=(256,1,1) block=(256,1,1) lds=163840\n"
    s += '.amdgcn_target "amdgcn-amd-amdhsa--gfx950"\n.text\n'
    s += f".globl {name}\n.p2align 8\n.type {name},@function\n{name}:\n"
    s += body
    s += f"""
.section .rodata,"a"
.p2align 6
.amdhsa_kernel {name}
  .amdhsa_next_free_vgpr 512
  .amdhsa_next_free_sgpr 102
  .amdhsa_accum_offset 256
  .amdhsa_group_segment_fixed_size 0
  .amdhsa_kernarg_size 112
  .amdhsa_user_sgpr_count 2
  .amdhsa_user_sgpr_kernarg_segment_ptr 1
  .amdhsa_system_sgpr_workgroup_id_x 1
.end_amdhsa_kernel
"""
    return s

if __name__ == "__main__":
    ap = argparse.ArgumentParser()
    ap.add_argument("-o", default="cdna_kernels/" + KN + ".s")
    ap.add_argument("--set", nargs="*", default=[])
    args = ap.parse_args()
    cfg = Cfg()
    for kv in args.set:
        k, v = kv.split("=")
        assert hasattr(cfg, k), k
        setattr(cfg, k, type(getattr(cfg, k))(int(v)))
    open(args.o, "w").write(build(cfg))
```

```python
import sys, argparse, struct
from asmcore import Asm
KN = "concat_heads__sliding_block_cached__compressed_kv_cla__decode"

QP   = 0x1000
QA   = 0x90000
UO   = 0xC0000
UML  = 0x140000
PBML = 0x150000
HELLO = 0x178000
FOFF = 0x1000000
QAF  = 0x170000
OP   = 0x180000
PB   = 0x400000
STAMP = 0x8000000
X = 131072
RED1, QB, RED2, MLS = 0, 4096, 8192, 12288
XS, RED4, RF = 16384, 20480, 28672
XS2, REDA, XS3, REDB = 0, 4096, 8192, 12288
MX, LS, PF = 0, 512, 1024
C1 = (128 ** -0.5) * 1.4426950408889634
def f2u(x): return struct.unpack("<I", struct.pack("<f", x))[0]

class Cfg:
    nt = True
    wnt = True
    stamps = False
    rot = True
    spin = 200000
    s_xord = 2
    b_r1 = 2
    s_r1 = 0
    s_uk0 = 0
    s_k0 = 4
    s_d0 = 16
    s_k1 = 2
    s_dk = 16
    s_dwo = 0
    s_dv = 0
    s_wo = 16
    s_nv1 = 16
    s_nv2 = 16
    s_nv3 = 0
    b_g1 = 1
    b_d = 16
    b_qw = -1
    b_qpos = 9
    b_qsc1 = False
    b_uv = 0
    b_won1 = 8
    b_won2 = 4
    b_try = 1
    b_won6 = 12
    b_won3 = 0
    b_wo = 2
    fast = True
    b_d0 = 4
    b_gr = 0
    pt = 0
    p2u = 0
    p2f = 1
    pend = 0
    gate = 0
    g2swap = 1
    qdma = 0
    s_qf = 3
    fstamps = False
    cstamps = False
    dbgt = False

def gen(cfg):
    a = Asm()
    NT = " nt" if cfg.nt else ""
    WNT = " nt" if cfg.wnt else ""
    sN, sPend, sW, sWv = "s0", "s1", "s2", "s3"
    WS, XR, W1, KV, VV, WO, OUT = "s[4:7]", "s[8:11]", "s[12:15]", "s[16:19]", "s[20:23]", "s[24:27]", "s[28:31]"
    EX = "s[32:33]"
    sT0, sT1, sT2, sT3 = "s42", "s43", "s44", "s45"
    sTag, sKB, sSpin, sH, sQb, sUO, sUML, sR, sBr, sW1, sX1, sRot, sC1 = [f"s{k}" for k in range(46, 59)]
    sCB = "s99"; sEp = "s64"; sL1 = "s59"; sLA = "s62"; sL3 = "s63"; sFast = "s65"
    NST = 16
    mute = set()
    def stamp(k, force=False):
        if k in mute and not force: return
        if cfg.stamps:
            a(f"s_memrealtime s[{66+2*k}:{67+2*k}]"); a.smem = True
    vTau, vLane, vI, vKg = "v0", "v1", "v2", "v3"
    SEL = [[f"v{4+hs*4+r}" for r in range(4)] for hs in range(2)]
    vTag, vBp, vRedW, vTau4, vTau8 = "v12", "v13", "v14", "v15", "v16"
    vA, vB_, vC = "v17", "v18", "v19"
    vXo, vWo, vL16 = "v20", "v21", "v31"
    VX = 22
    VW = 32
    ACC = 68; FR0 = 72; FR1 = 76
    VQ = 86; VQF = 96

    def R(base, n, k="v"): return f"{k}[{base}:{base+n-1}]"
    def build_frag(dst, src, hs):
        for r in range(4):
            a(f"v_perm_b32 v{dst+r}, {src}, {src}, {SEL[hs][r]}")
    def red_write(acc, vaddr, off):
        for r in range(4):
            a.lds(f"ds_write_b32 {vaddr}, v{acc+r} offset:{off + r*32}", "redw")
    def red_sum4(dst, tmp, off, stride):
        for w in range(4):
            a.lds(f"ds_read_b32 v{tmp+w}, {vTau4} offset:{off + w*stride}", "redr")
        a.wait_lg()
        a(f"v_add_f32 v{tmp}, v{tmp}, v{tmp+1}")
        a(f"v_add_f32 v{tmp+2}, v{tmp+2}, v{tmp+3}")
        a(f"v_add_f32 v{dst}, v{tmp}, v{tmp+2}")
    def tagcheck(tagregs, Lok):
        a(f"s_mov_b64 {EX}, exec")
        for t in tagregs:
            a(f"v_cmpx_eq_u32 vcc, {vTag}, v{t}")
        a("s_nop 3")
        a(f"s_cmp_eq_u64 exec, {EX}")
        a(f"s_mov_b64 exec, {EX}")
        a(f"s_cbranch_scc1 {Lok}")
    def timeout_mark(dbgcode):
        a(f"""s_mov_b32 s32, s60
        s_mov_b32 s33, s61
        s_mov_b32 s34, 256
        s_mov_b32 s35, 0x20000
        v_mov_b32 {vA}, {4*dbgcode}
        v_mov_b32 {vB_}, 1
        buffer_store_dword {vB_}, {vA}, s[32:35], 0 offen
        s_waitcnt vmcnt(0)""")
    def poll(issue, tagregs, waitname, dbgcode, fix=None):
        Lchk = a.newlabel("L_chk"); Lok = a.newlabel("L_ok"); Lto = a.newlabel("L_to")
        a.try_wait_vm(waitname)
        if fix and fix[0]: fix[0]()
        saved_vm = list(a.vm)
        a(f"s_mov_b32 {sSpin}, {cfg.spin}")
        a.label(Lchk)
        tagcheck(tagregs, Lok)
        a(f"s_sub_u32 {sSpin}, {sSpin}, 1")
        a(f"s_cmp_eq_u32 {sSpin}, 0")
        a(f"s_cbranch_scc1 {Lto}")
        a.vm = []
        if fix: fix[1]()
        issue()
        a("s_waitcnt vmcnt(0)")
        if fix and len(fix) > 2: fix[2]()
        a(f"s_branch {Lchk}")
        a.label(Lto)
        timeout_mark(dbgcode)
        a.label(Lok)
        a.vm = saved_vm
    def poll_groups(groups, waitname, dbgcode):
        Lchk = a.newlabel("L_chk"); Lok = a.newlabel("L_ok"); Lto = a.newlabel("L_to")
        a.try_wait_vm(waitname)
        saved_vm = list(a.vm)
        a(f"s_mov_b32 {sSpin}, {cfg.spin}")
        a(f"s_mov_b32 {sPend}, {(1 << len(groups)) - 1}")
        a.label(Lchk)
        tagcheck([t for _, tags in groups for t in tags], Lok)
        for g, (_, tags) in enumerate(groups):
            sk = a.newlabel("L_sk")
            a(f"s_mov_b64 {EX}, exec")
            for t in tags: a(f"v_cmpx_eq_u32 vcc, {vTag}, v{t}")
            a(f"""s_nop 3
            s_cmp_eq_u64 exec, {EX}
            s_mov_b64 exec, {EX}
            s_cbranch_scc0 {sk}
            s_bitset0_b32 {sPend}, {g}""")
            a.label(sk)
        a(f"s_sub_u32 {sSpin}, {sSpin}, 1")
        a(f"s_cmp_eq_u32 {sSpin}, 0")
        a(f"s_cbranch_scc1 {Lto}")
        a.vm = []
        for g, (issue, _) in enumerate(groups):
            sk = a.newlabel("L_sk")
            a(f"s_bitcmp1_b32 {sPend}, {g}")
            a(f"s_cbranch_scc0 {sk}")
            issue()
            a.label(sk)
        a("s_waitcnt vmcnt(0)")
        a(f"s_branch {Lchk}")
        a.label(Lto)
        timeout_mark(dbgcode)
        a.label(Lok)
        a.vm = saved_vm
    def poll2(issue, nload, setA, setB, tagoffs, dbgcode, pace, consume):
        LA = a.newlabel("L_pa"); LokA = a.newlabel("L_oka"); LokB = a.newlabel("L_okb"); Lto = a.newlabel("L_to"); Ldone = a.newlabel("L_pd")
        a(f"s_mov_b32 {sSpin}, {cfg.spin}")
        a.vm = []
        pace()
        issue(setA)
        a(f"s_waitcnt vmcnt({nload})")
        issue(setB)
        a.label(LA)
        a(f"s_waitcnt vmcnt({nload})")
        tagcheck([setA + t for t in tagoffs], LokA)
        issue(setA)
        a(f"s_waitcnt vmcnt({nload})")
        tagcheck([setB + t for t in tagoffs], LokB)
        issue(setB)
        a(f"s_sub_u32 {sSpin}, {sSpin}, 1")
        a(f"s_cmp_eq_u32 {sSpin}, 0")
        a(f"s_cbranch_scc0 {LA}")
        a("s_waitcnt vmcnt(0)")
        timeout_mark(dbgcode)
        a.label(LokA)
        consume(setA)
        a(f"s_branch {Ldone}")
        a.label(LokB)
        consume(setB)
        a.label(Ldone)
        a.vm = []
    def xlane_reduce(v, op, tmp):
        a(f"v_mov_b32 {tmp}, {v}")
        a(f"v_permlane16_swap_b32 {v}, {tmp}")
        a(f"{op} {v}, {v}, {tmp}")
        a(f"v_mov_b32 {tmp}, {v}")
        a(f"v_permlane32_swap_b32 {v}, {tmp}")
        a(f"{op} {v}, {v}, {tmp}")
    def wave_reduce(v, op, tmp):
        for d in ("quad_perm:[1,0,3,2]", "quad_perm:[2,3,0,1]", "row_half_mirror", "row_mirror"):
            a(f"{op}_dpp {v}, {v}, {v} {d} row_mask:0xf bank_mask:0xf")
        xlane_reduce(v, op, tmp)
    def x_loads():
        for tt in range(9):
            a.vmem(f"buffer_load_ushort v{VX+tt}, {vXo}, {XR}, {sX1} offen offset:{2*tt}", "x")
    def w1_loads(t0=0, t1=9):
        for tt in range(t0, t1):
            a(f"s_add_u32 {sT2}, {sW1}, {tt*8192}")
            a.vmem(f"buffer_load_dwordx4 {R(VW+4*tt,4)}, {vWo}, {W1}, {sT2} offen{WNT}", f"w1_{tt}")
    def hello_issue():
        a(f"s_and_b32 {sT2}, {sW}, 7")
        a(f"s_lshl_b32 {sT2}, {sT2}, 7")
        a(f"s_lshr_b32 {sT3}, {sW}, 7")
        a(f"s_lshl_b32 {sT3}, {sT3}, 6")
        a(f"s_add_u32 {sT2}, {sT2}, {sT3}")
        a(f"s_add_u32 {sT2}, {sT2}, {HELLO}")
        a(f"v_lshlrev_b32 v82, 2, {vI}")
        a.vmem(f"buffer_load_dword v83, v82, {WS}, {sT2} offen sc1", "hello")
    def hello_finish():
        a.try_wait_vm("hello")
        a(f"v_cmp_ne_u32 vcc, {vTag}, v83")
        a(f"s_mov_b32 {sFast}, {FOFF if cfg.fast else 0}")
        a("s_nop 0")
        a(f"s_cmp_eq_u64 vcc, 0")
        a(f"s_cselect_b32 {sFast}, {sFast}, 0")
    def p1a_compute(qoff, role, hello, between=None):
        a.try_wait_vm("x")
        if cfg.fstamps and hello: stamp(3)
        build_frag(FR0, f"v{VX}", 0)
        for tt in range(9):
            cur = FR0 if tt % 2 == 0 else FR1
            nxt = FR1 if tt % 2 == 0 else FR0
            if tt < 8: build_frag(nxt, f"v{VX+tt+1}", 0)
            a.try_wait_vm(f"w1_{tt}")
            if cfg.fstamps and hello and tt == 0: stamp(12)
            c = "0" if tt == 0 else R(ACC, 4)
            a(f"v_mfma_f32_16x16x32_bf16 {R(ACC,4)}, {R(VW+4*tt,4)}, {R(cur,4)}, {c}")
            if between: between(tt)
        if cfg.fstamps and hello: stamp(4)
        red_write(ACC, vRedW, RED1)
        a(f"v_mov_b32 v81, {vTag}")
        a(f"s_lshl_b32 {sT0}, {role}, 11")
        a(f"s_add_u32 {sT0}, {sT0}, {QP + qoff}")
        a(f"s_add_u32 {sT1}, {sT0}, {FOFF}")
        if hello: hello_issue()
        a.barrier()
        red_sum4(80, 72, RED1, 1024)
        if cfg.fast: a.vmem(f"buffer_store_dwordx2 v[80:81], {vTau8}, {WS}, {sT1} offen", "qp_st")
        a.vmem(f"buffer_store_dwordx2 v[80:81], {vTau8}, {WS}, {sT0} offen sc1", "qp_st")
    def q_issue():
        a(f"s_add_u32 {sT3}, {sQb}, 4096")
        a.vmem(f"buffer_load_dwordx2 v[{VQ}:{VQ+1}], v85, {WS}, {sQb} offen sc1", "q")
        a.vmem(f"buffer_load_dwordx2 v[{VQ+2}:{VQ+3}], v85, {WS}, {sQb} offen offset:2048 sc1", "q")
        a.vmem(f"buffer_load_dwordx2 v[{VQ+4}:{VQ+5}], v85, {WS}, {sT3} offen sc1", "q")
        a.vmem(f"buffer_load_dwordx2 v[{VQ+6}:{VQ+7}], v85, {WS}, {sT3} offen offset:2048 sc1", "q")
    QTAGS = [VQ+1, VQ+3, VQ+5, VQ+7]
    def q_finish():
        a(f"v_add_f32 v{VQ}, v{VQ}, v{VQ+2}")
        a(f"v_add_f32 v{VQ+4}, v{VQ+4}, v{VQ+6}")
        a(f"v_lshlrev_b32 {vA}, 1, {vTau}")
        a(f"v_add_f32 v{VQ}, v{VQ}, v{VQ+4}")
        a(f"v_add_u32 {vA}, {X}, {vA}")
        a(f"v_cvt_pk_bf16_f32 v{VQ}, v{VQ}, v{VQ}")
        a.lds(f"ds_write_b16 {vA}, v{VQ} offset:{QB}", "qb")
        a(f"v_lshlrev_b32 {vA}, 8, {vBp}")
        a(f"v_lshl_add_u32 {vA}, {vKg}, 4, {vA}")
        a(f"v_add_u32 {vA}, {X}, {vA}")
        a.barrier()
        for t in range(4):
            a.lds(f"ds_read_b128 {R(VQF+4*t,4)}, {vA} offset:{QB + 64*t}", "qf")
    def wo_setup(sA, sB):
        a(f"""
        v_mul_u32_u24 v240, 9216, {vKg}
        v_lshl_add_u32 v241, {vI}, 4, v240
        v_lshrrev_b32 {vA}, 3, {vI}
        v_mul_u32_u24 {vA}, 1152, {vA}
        v_and_b32 {vB_}, 7, {vI}
        v_lshl_add_u32 {vA}, {vB_}, 4, {vA}
        v_add_u32 v242, v240, {vA}
        v_add_u32 v242, 256, v242
        s_and_b32 {sB}, {sL3}, 3
        s_lshr_b32 {sA}, {sL3}, 2
        s_lshl_b32 {sA}, {sA}, 2
        s_add_u32 {sA}, {sA}, {sWv}
        s_mul_i32 {sA}, {sA}, {32*1152}
        s_mul_i32 {sB}, {sB}, 384
        s_add_u32 {sA}, {sA}, {sB}
        s_add_u32 {sB}, {sA}, 4608
        """)
    def wo_load(n, sA, sB):
        if n < 8:
            a.vmem(f"buffer_load_dwordx4 a[{128+4*n}:{131+4*n}], v241, {WO}, {sA if n < 4 else sB} offen offset:{(n % 4)*1152}{WNT}", "wo")
        else:
            u = n - 8
            a.vmem(f"buffer_load_dwordx4 a[{160+4*u}:{163+4*u}], v242, {WO}, {sA if u < 2 else sB} offen offset:{(u % 2)*2304}{WNT}", "wo")
    def gemv8(src_regs, xf, acc, waitnames):
        build_frag(FR0, f"v{xf}", 0)
        for tt in range(8):
            cur = FR0 if tt % 2 == 0 else FR1
            nxt = FR1 if tt % 2 == 0 else FR0
            if tt < 7: build_frag(nxt, f"v{xf + (tt+1)//2}", (tt+1) % 2)
            if waitnames: a.try_wait_vm(waitnames[tt])
            c = "0" if tt == 0 else R(acc, 4)
            a(f"v_mfma_f32_16x16x32_bf16 {R(acc,4)}, {src_regs[tt]}, {R(cur,4)}, {c}")

    a(f"""
    s_cmp_ge_u32 s2, 256
    s_cbranch_scc1 L_end
    s_load_dwordx16 s[36:51], s[0:1], 0
    s_load_dwordx8 s[52:59], s[0:1], 64
    s_load_dwordx4 s[60:63], s[0:1], 96
    """)
    if cfg.stamps:
        for k in range(NST): a(f"s_mov_b64 s[{66+2*k}:{67+2*k}], 0")
    stamp(0)
    a(f"""
    v_and_b32 {vLane}, 63, {vTau}
    v_lshrrev_b32 {vA}, 6, {vTau}
    v_and_b32 {vI}, 15, {vTau}
    v_bfe_u32 {vKg}, {vTau}, 4, 2
    v_readfirstlane_b32 {sWv}, {vA}
    v_bfe_u32 {vBp}, {vTau}, 3, 1
    v_mul_u32_u24 {vXo}, 1152, {vBp}
    v_mul_u32_u24 {vA}, 18, {vKg}
    v_add_u32 {vXo}, {vXo}, {vA}
    v_mul_u32_u24 {vWo}, 73728, {vKg}
    v_lshlrev_b32 {vA}, 4, {vI}
    v_add_u32 {vWo}, {vWo}, {vA}
    v_lshlrev_b32 {vL16}, 4, {vLane}
    s_waitcnt lgkmcnt(0)
    s_load_dword {sEp}, s[62:63], 0
    FSTAMP_A
    s_cmp_ge_u32 {sW}, 128
    s_mov_b32 s100, s42
    s_mov_b32 s101, s43
    s_mov_b32 s4, s62
    s_mov_b32 s5, s63
    s_mov_b32 s6, 0x10000000
    s_mov_b32 s7, 0x20000
    s_mov_b32 s8, s46
    s_mov_b32 s9, s47
    s_mov_b32 s10, 2304
    s_mov_b32 s11, 0x20000
    s_mov_b32 s12, s50
    s_mov_b32 s13, s51
    s_mov_b32 s14, 4718592
    s_mov_b32 s15, 0x20000
    s_cselect_b32 s16, s48, s38
    s_cselect_b32 s17, s49, s39
    s_mov_b32 s18, 67108864
    s_cselect_b32 s18, 16777216, s18
    s_mov_b32 s19, 0x20000
    s_cselect_b32 s20, s54, s52
    s_cselect_b32 s21, s55, s53
    s_mov_b32 s22, 4194304
    s_mov_b32 s23, 0x20000
    s_cselect_b32 s24, s56, s44
    s_cselect_b32 s25, s57, s45
    s_mov_b32 s26, 4718592
    s_mov_b32 s27, 0x20000
    s_mov_b32 s28, s58
    s_mov_b32 s29, s59
    s_mov_b32 s30, 4608
    s_mov_b32 s31, 0x20000
    ; x = w&7, q = (w>>3)&3, e = (w>>5)&1, f = (w>>6)&1
    s_and_b32 {sT0}, {sW}, 7
    s_bfe_u32 {sT1}, {sW}, 0x20003
    s_bfe_u32 {sT2}, {sW}, 0x20005
    s_lshl_b32 {sT2}, {sT2}, 3
    s_add_u32 {sT2}, {sT2}, {sT0}          ; hX = x + 8*((w>>5)&3)
    s_lshl_b32 {sT2}, {sT2}, 2
    s_add_u32 {sT2}, {sT2}, {sT1}
    s_bfe_u32 {sT3}, {sW}, 0x10006
    s_lshl_b32 {sT3}, {sT3}, 3
    s_add_u32 {sT3}, {sT3}, {sT0}          ; hkv = x + 8f
    s_bfe_u32 {sT0}, {sW}, 0x10005         ; e
    s_lshl_b32 {sLA}, {sT0}, 6
    s_lshl_b32 {sL3}, {sT3}, 2
    s_add_u32 {sLA}, {sLA}, {sL3}
    s_add_u32 {sLA}, {sLA}, {sT1}
    s_lshl_b32 {sT3}, {sT3}, 1
    s_add_u32 {sT3}, {sT3}, {sT0}          ; 2hkv + e
    s_lshl_b32 {sT3}, {sT3}, 2
    s_add_u32 {sT3}, {sT3}, {sT1}
    s_cmp_ge_u32 {sW}, 128
    s_mov_b32 {sL1}, {sT2}
    s_cselect_b32 {sL3}, {sT2}, {sT3}
    s_and_b32 {sT0}, {sL3}, 3
    s_cmp_eq_u32 {sT0}, 3
    s_cselect_b32 s26, 0, s26
    s_lshr_b32 {sH}, {sL1}, 2
    s_lshr_b32 {sBr}, {sW}, 7
    s_mov_b32 {sFast}, 0
    s_and_b32 {sT0}, {sL1}, 3
    s_mul_i32 {sT0}, {sT0}, 144
    s_mul_i32 {sT1}, {sWv}, 36
    s_add_u32 {sT0}, {sT0}, {sT1}
    s_lshl_b32 {sX1}, {sT0}, 1
    s_lshl_b32 {sW1}, {sT0}, 13
    s_lshl_b32 {sT1}, {sH}, 8
    s_add_u32 {sW1}, {sW1}, {sT1}
    """)
    if cfg.fstamps:
        i_ = [i for i, it in enumerate(a.items) if it == ("i", "FSTAMP_A")][0]
        a.items[i_] = ("i", f"s_memrealtime s[{66+2*9}:{67+2*9}]")
    else:
        a.items = [it for it in a.items if it != ("i", "FSTAMP_A")]
    a.smem = True
    def c_group(g, q0=0, q1=4):
        if q0 == 0: a(f"""
        s_add_u32 {sT1}, {sRot}, {4*g}
        s_and_b32 {sT1}, {sT1}, 31
        s_lshl_b32 {sT1}, {sT1}, 10
        s_add_u32 {sCB}, {sKB}, {sT1}
        s_lshl_b32 {sT2}, {sWv}, 15
        s_add_u32 m0, {sT2}, {g*4096}
        """)
        for q in range(4):
            f = (q << 2) | (g & 3)
            if q0 == 0: a(f"v_xor_b32 v{202+q}, {f << 4}, {vL16}")
        for q in range(q0, q1):
            row = 4 * g + q
            if 0 < row <= cfg.b_r1: a.wait_vm(f"c{g}" if q else f"c{g-1}")
            a.vmem(f"buffer_load_dwordx4 v{202+q}, {KV}, {sCB} offen offset:{q*1024}{NT} lds", f"c{g}")
        if cfg.cstamps and q1 == 4: stamp(5 + g, True)
    a(f"""
    v_xor_b32 {vA}, {vI}, {vKg}
    v_lshlrev_b32 {vA}, 4, {vA}
    v_lshl_add_u32 v206, {vKg}, 13, {vA}
    v_xor_b32 v207, 64, v206
    v_xor_b32 v208, 128, v206
    v_xor_b32 v209, 192, v206
    """)
    a(f"s_cmp_ge_u32 {sW}, 128")
    a("s_cbranch_scc1 L_roleB")
    if cfg.s_xord == 0:
        x_loads(); w1_loads()
    elif cfg.s_xord == 1:
        w1_loads(); x_loads()
    else:
        w1_loads(0, 1); x_loads(); w1_loads(1, 9)
    a(f"""
    s_and_b32 {sUO}, {sL1}, 3
    s_lshl_b32 {sUO}, {sUO}, 7
    s_lshl_b32 {sT1}, {sWv}, 5
    s_add_u32 {sUO}, {sUO}, {sT1}
    s_lshl_b32 {sUO}, {sUO}, 13
    s_lshl_b32 {sT1}, {sH}, 8
    s_add_u32 {sUO}, {sUO}, {sT1}
    s_lshl_b32 {sUML}, {sWv}, 15
    """)
    ukn = [0]
    def uk_load():
        n = ukn[0]
        if n >= 8: return
        ukn[0] += 1
        a(f"s_add_u32 m0, {sUML}, {6*4096 + n*1024}")
        a(f"s_add_u32 {sT2}, {sUO}, {n*4*8192}")
        a.vmem(f"buffer_load_dwordx4 v{206 + n % 4}, {VV}, {sT2} offen{WNT} lds", "uk")
    if cfg.s_uk0:
        a("s_barrier")
        for _ in range(cfg.s_uk0): uk_load()
    def common():
        Lnh = a.newlabel("L_nohello")
        a.smem = True
        a(f"""
        v_and_b32 {vA}, 1, {vLane}
        v_cmp_eq_u32 vcc, 1, {vA}
        v_mov_b32 {vB_}, 0x0c0c0100
        v_mov_b32 {vC}, 0x01000c0c
        v_cndmask_b32 v68, {vB_}, {vC}, vcc
        v_mov_b32 {vB_}, 0x0c0c0302
        v_mov_b32 {vC}, 0x03020c0c
        v_cndmask_b32 v69, {vB_}, {vC}, vcc
        v_bfe_u32 {vA}, {vLane}, 1, 2
        v_mov_b32 {vB_}, 0x0c0c0c0c
        """)
        for r in range(4):
            a(f"v_cmp_eq_u32 vcc, {r}, {vA}")
            a(f"v_cndmask_b32 {SEL[0][r]}, {vB_}, v68, vcc")
            a(f"v_cndmask_b32 {SEL[1][r]}, {vB_}, v69, vcc")
        a(f"""
        v_lshlrev_b32 {vTau4}, 2, {vTau}
        v_add_u32 {vTau4}, {X}, {vTau4}
        v_lshlrev_b32 {vTau8}, 3, {vTau}
        v_lshlrev_b32 {vRedW}, 9, {vBp}
        v_lshl_add_u32 {vRedW}, {vKg}, 7, {vRedW}
        v_and_b32 {vA}, 7, {vLane}
        v_lshl_add_u32 {vRedW}, {vA}, 2, {vRedW}
        s_lshl_b32 {sT0}, {sWv}, 10
        s_add_u32 {sT0}, {sT0}, {X}
        v_add_u32 {vRedW}, {sT0}, {vRedW}
        v_lshlrev_b32 v85, 3, {vLane}
        s_mov_b32 {sC1}, {f2u(C1):#x}
        """)
        a.wait_lg()
        if cfg.fstamps: stamp(10)
        a(f"s_mul_i32 {sTag}, {sEp}, 0x9E3779B1")
        a(f"s_add_u32 {sTag}, {sTag}, 0x7F4A7C15")
        a(f"v_mov_b32 {vTag}, {sTag}")
        a(f"""
        s_and_b32 {sT0}, {sW}, 7
        s_lshl_b32 {sT0}, {sT0}, 7
        s_lshr_b32 {sT1}, {sW}, 3
        s_lshl_b32 {sT1}, {sT1}, 2
        s_add_u32 {sT0}, {sT0}, {sT1}
        s_add_u32 {sT0}, {sT0}, {HELLO}
        v_mov_b32 {vA}, 0
        v_cmp_eq_u32 vcc, 0, {vTau}
        s_and_saveexec_b64 {EX}, vcc
        s_cbranch_execz {Lnh}
        buffer_store_dword {vTag}, {vA}, {WS}, {sT0} offen
        {Lnh}:
        s_mov_b64 exec, {EX}
        """)
    common()
    def pretouch(role):
        if not (cfg.pt and cfg.fast): return
        if role == "B2":
            n0 = len(a.items); pretouch("B")
            import re as _re
            for i in range(n0, len(a.items)):
                k, t = a.items[i]
                if k == "i":
                    t = _re.sub(r"v\[244:247\]", "v[236:239]", t); t = _re.sub(r"v\[244:245\]", "v[236:237]", t)
                    t = _re.sub(r"v24(\d)", lambda m: f"v{232 + int(m.group(1))}", t)
                    a.items[i] = (k, t)
            return
        Lsk = a.newlabel("L_ptskip")
        a(f"""
        v_not_b32 v245, {vTag}
        v_mov_b32 v244, 0
        v_mov_b32 v246, 0
        v_mov_b32 v247, v245
        v_lshrrev_b32 v240, 7, {vTau}
        v_and_b32 v241, 127, {vTau}
        """)
        if role == "S":
            a(f"""
            v_lshlrev_b32 v242, 13, v240
            v_lshl_add_u32 v242, v241, 3, v242
            v_lshlrev_b32 v243, 7, v240
            s_lshl_b32 {sT0}, {sL1}, 11
            s_add_u32 {sT0}, {sT0}, {QP + 128*2048 + FOFF}
            s_lshl_b32 {sT1}, {sL3}, 11
            s_add_u32 {sT1}, {sT1}, {QP + FOFF}
            """)
            if cfg.pt == 1:
                a.vmem(f"buffer_store_dwordx2 v[244:245], {vTau8}, {WS}, {sT0} offen", "pt")
                a.vmem(f"buffer_store_dwordx2 v[244:245], {vTau8}, {WS}, {sT1} offen", "pt")
            a(f"""
            s_bfe_u32 {sT0}, {sLA}, 0x40002
            s_lshl_b32 {sT1}, {sT0}, 14
            s_and_b32 {sT2}, {sLA}, 3
            s_lshl_b32 {sT3}, {sT2}, 11
            s_add_u32 {sT1}, {sT1}, {sT3}
            s_lshr_b32 {sT3}, {sLA}, 6
            s_lshl_b32 {sT3}, {sT3}, 10
            s_add_u32 {sT1}, {sT1}, {sT3}
            s_add_u32 {sT1}, {sT1}, {UO + FOFF}
            """)
            a.vmem(f"buffer_store_dwordx2 v[244:245], v242, {WS}, {sT1} offen", "pt")
            a(f"""
            s_lshl_b32 {sT1}, {sT0}, 8
            s_lshr_b32 {sT3}, {sLA}, 6
            s_lshl_b32 {sT3}, {sT3}, 6
            s_add_u32 {sT1}, {sT1}, {sT3}
            s_lshl_b32 {sT2}, {sT2}, 4
            s_add_u32 {sT1}, {sT1}, {sT2}
            s_add_u32 {sT1}, {sT1}, {UML + FOFF}
            """)
        else:
            a(f"""
            v_lshlrev_b32 v243, 6, v240
            s_add_u32 {sT0}, {sL3}, {(UO + 0x40000)//2048}
            s_lshl_b32 {sT0}, {sT0}, 11
            s_add_u32 {sT0}, {sT0}, {FOFF}
            """)
            a.vmem(f"buffer_store_dwordx2 v[244:245], {vTau8}, {WS}, {sT0} offen", "pt")
            a(f"""
            s_lshr_b32 {sT0}, {sL3}, 2
            s_lshl_b32 {sT0}, {sT0}, 7
            s_and_b32 {sT1}, {sL3}, 3
            s_lshl_b32 {sT1}, {sT1}, 4
            s_add_u32 {sT0}, {sT0}, {sT1}
            s_add_u32 {sT1}, {sT0}, {UML + 0x1000 + FOFF}
            """)
        a(f"""
        v_cmp_eq_u32 vcc, 0, v241
        s_and_saveexec_b64 {EX}, vcc
        s_cbranch_execz {Lsk}
        buffer_store_dwordx4 v[244:247], v243, {WS}, {sT1} offen
        {Lsk}:
        s_mov_b64 exec, {EX}
        """)
    if cfg.pt == 1: pretouch("S")
    VKO = 200; VVO = 204
    a(f"""
    s_lshr_b32 {sT0}, {sLA}, 2
    s_lshl_b32 {sKB}, {sT0}, 21
    s_and_b32 {sT0}, {sLA}, 3
    s_lshl_b32 {sT0}, {sT0}, 17
    s_add_u32 {sKB}, {sKB}, {sT0}
    s_add_u32 {sKB}, {sKB}, {6144*256}
    s_lshl_b32 {sT0}, {sWv}, 15
    s_add_u32 {sKB}, {sKB}, {sT0}
    v_xor_b32 {vA}, {vI}, {vKg}
    v_lshlrev_b32 {vA}, 4, {vA}
    v_lshl_add_u32 v{VKO}, {vKg}, 8, {vA}
    v_xor_b32 v{VKO+1}, 64, v{VKO}
    v_xor_b32 v{VKO+2}, 128, v{VKO}
    v_xor_b32 v{VKO+3}, 192, v{VKO}
    v_lshlrev_b32 {vA}, 4, {vI}
    v_lshl_add_u32 v{VVO}, {vKg}, 10, {vA}
    s_mul_i32 {sRot}, {sW}, {5 if cfg.rot else 0}
    s_mul_i32 {sT0}, {sWv}, {3 if cfg.rot else 0}
    s_add_u32 {sRot}, {sRot}, {sT0}
    s_add_u32 {sT0}, {sH}, 32
    s_lshl_b32 {sN}, {sT0}, 13
    s_lshl_b32 {sT0}, {sWv}, 9
    s_add_u32 {sN}, {sN}, {sT0}
    s_add_u32 {sN}, {sN}, {QP}
    s_add_u32 {sQb}, {sN}, {FOFF if cfg.fast else 0}
    """)
    def k_tile(n):
        a(f"""
        s_add_u32 {sT0}, {sRot}, {n}
        s_and_b32 {sT0}, {sT0}, 7
        s_lshl_b32 {sT0}, {sT0}, 12
        s_add_u32 {sT1}, {sKB}, {sT0}
        s_lshl_b32 {sT0}, {sWv}, 15
        s_add_u32 m0, {sT0}, {n << 12}
        """)
        for q in range(4):
            row = 4 * n + q
            if 0 < row <= cfg.s_r1: a.wait_vm(f"k{n}" if q else f"k{n-1}")
            a.vmem(f"buffer_load_dwordx4 v{VKO+q}, {KV}, {sT1} offen offset:{q*1024}{NT} lds", f"k{n}")
    def throttle(depth):
        keep = max(depth - 4, 0)
        if len(a.vm) > keep:
            a(f"s_waitcnt vmcnt({keep})"); a.vm = a.vm[len(a.vm) - keep:] if keep else []
    VKA = 112
    for t in range(4):
        a(f"v_add_u32 {vA}, {4*t}, {vKg}")
        a(f"v_xor_b32 {vA}, {vA}, {vI}")
        a(f"v_lshlrev_b32 {vA}, 4, {vA}")
        a(f"v_lshl_add_u32 v{VKA+t}, {vI}, 8, {vA}")
    a(f"s_lshl_b32 {sT0}, {sWv}, 15")
    for t in range(4):
        a(f"v_add_u32 v{VKA+t}, {sT0}, v{VKA+t}")
    p1a_compute(128 * 2048, sL1, True, between=lambda tt: uk_load())
    while ukn[0] < 8: uk_load()
    stamp(1)
    q_issue()
    def refix():
        a(f"s_add_u32 {sQb}, {sN}, {sFast}")
        hello_issue()
    poll(q_issue, QTAGS, "q", 1, fix=(hello_finish, refix, hello_finish))
    stamp(8)
    if cfg.stamps: a(f"s_mov_b32 s{66+2*14}, {sFast}"); a(f"s_mov_b32 s{67+2*14}, 0")
    if cfg.stamps: a(f"s_sub_u32 s{66+2*15}, {cfg.spin}, {sSpin}"); a(f"s_mov_b32 s{67+2*15}, 0")
    a.vm = []
    for T2 in range(2):
        for t in range(4):
            a.lds(f"ds_read_b128 {R(116 + 4*(T2*4+t), 4)}, v{VKA+t} offset:{(6+T2)*4096}", "ukr")
    q_finish()
    DA = 68
    qs = 1 if cfg.qdma else 0
    a(f"""
    v_lshlrev_b32 {vA}, {16-qs}, {vBp}
    v_lshl_add_u32 {vA}, {vKg}, {4-qs}, {vA}
    s_lshl_b32 {sT0}, {sH}, {11-qs}
    s_and_b32 {sT1}, {sL1}, 3
    s_lshl_b32 {sT1}, {sT1}, {9-qs}
    s_add_u32 {sT0}, {sT0}, {sT1}
    s_lshl_b32 {sT1}, {sWv}, {7-qs}
    s_add_u32 {sT0}, {sT0}, {sT1}
    s_add_u32 {sT0}, {sT0}, {QA}
    v_mov_b32 v81, {vTag}
    v_mov_b32 v83, {vTag}
    v_mov_b32 v89, {vTag}
    v_mov_b32 v91, {vTag}
    v_and_b32 {vB_}, 7, {vLane}
    v_cmp_eq_u32 vcc, 0, {vB_}
    """)
    a.wait_lg()
    for t in range(4):
        for T2 in range(2):
            n = T2 * 4 + t
            c = "0" if t == 0 else R(DA + 4*T2, 4)
            a(f"v_mfma_f32_16x16x32_bf16 {R(DA+4*T2,4)}, {R(116+4*n,4)}, {R(VQF+4*t,4)}, {c}")
    if cfg.qdma:
        a(f"""
        v_cvt_pk_bf16_f32 v88, v{DA}, v{DA+1}
        v_cvt_pk_bf16_f32 v89, v{DA+2}, v{DA+3}
        v_cvt_pk_bf16_f32 v90, v{DA+4}, v{DA+5}
        v_cvt_pk_bf16_f32 v91, v{DA+6}, v{DA+7}
        s_and_saveexec_b64 {EX}, vcc
        """)
        a.vmem(f"buffer_store_dwordx2 v[88:89], {vA}, {WS}, {sT0} offen sc1", "qa_st")
        a.vmem(f"buffer_store_dwordx2 v[90:91], {vA}, {WS}, {sT0} offen offset:32 sc1", "qa_st")
        a(f"s_mov_b64 exec, {EX}")
    else:
        a(f"""
        v_cvt_pk_bf16_f32 v80, v{DA}, v{DA+1}
        v_cvt_pk_bf16_f32 v82, v{DA+2}, v{DA+3}
        v_cvt_pk_bf16_f32 v88, v{DA+4}, v{DA+5}
        v_cvt_pk_bf16_f32 v90, v{DA+6}, v{DA+7}
        s_and_saveexec_b64 {EX}, vcc
        buffer_store_dwordx4 v[80:83], {vA}, {WS}, {sT0} offen sc1
        buffer_store_dwordx4 v[88:91], {vA}, {WS}, {sT0} offen offset:64 sc1
        s_mov_b64 exec, {EX}
        """)
    def qa_flag():
        a.try_wait_vm("qa_st")
        Lq = a.newlabel("L_noqaf")
        a(f"""
        s_barrier
        s_lshl_b32 {sT0}, {sL1}, 6
        s_add_u32 {sT0}, {sT0}, {QAF}
        v_mov_b32 {vA}, 0
        v_cmp_eq_u32 vcc, 0, {vTau}
        s_and_saveexec_b64 {EX}, vcc
        s_cbranch_execz {Lq}
        buffer_store_dword {vTag}, {vA}, {WS}, {sT0} offen sc1
        {Lq}:
        s_mov_b64 exec, {EX}
        """)
        stamp(10)
    a(f"""
    s_mov_b32 s20, s40
    s_mov_b32 s21, s41
    s_mov_b32 s22, 67108864
    """)
    stamp(6)
    if cfg.pt == 2: pretouch("S")
    a(f"""
    s_mov_b32 s8, s36
    s_mov_b32 s9, s37
    s_mov_b32 s12, s100
    s_mov_b32 s13, s101
    s_and_b32 {sT0}, {sL3}, 3
    s_mul_i32 {sT0}, {sT0}, 144
    s_mul_i32 {sT1}, {sWv}, 36
    s_add_u32 {sT0}, {sT0}, {sT1}
    s_lshl_b32 {sX1}, {sT0}, 1
    s_lshl_b32 {sW1}, {sT0}, 13
    s_lshr_b32 {sT1}, {sL3}, 2
    s_lshl_b32 {sT1}, {sT1}, 8
    s_add_u32 {sW1}, {sW1}, {sT1}
    """)
    hello_issue()
    won = 0
    def wo_early():
        nonlocal won
        wo_setup(sUO, sUML)
        while won < 12:
            if cfg.s_dwo and won and won % cfg.s_dwo == 0: a.wait_vm("wo")
            wo_load(won, sUO, sUML); won += 1
    if cfg.s_wo == -1: wo_early()
    kn = 0
    qf_done = not cfg.qdma
    for _ in range(cfg.s_k0):
        throttle(cfg.s_d0); k_tile(kn); kn += 1
        if not qf_done and kn >= cfg.s_qf: qa_flag(); qf_done = True
    if not qf_done and cfg.s_k0 == 0:
        x_loads(); w1_loads(); qa_flag(); qf_done = True
    else:
        if not qf_done: qa_flag(); qf_done = True
        x_loads(); w1_loads()
    for _ in range(cfg.s_k1):
        k_tile(kn); kn += 1
    hello_finish()
    p1a_compute(0, sL3, False)
    stamp(9)
    if cfg.s_wo == -2: wo_early()
    while kn < 8:
        throttle(cfg.s_dk); k_tile(kn); kn += 1
    if cfg.s_wo == -3: wo_early()
    stamp(7)
    a(f"""
    s_bfe_u32 {sT0}, {sLA}, 0x40002
    s_lshl_b32 {sT0}, {sT0}, 1
    s_lshr_b32 {sT1}, {sWv}, 1
    s_add_u32 {sT0}, {sT0}, {sT1}
    s_lshl_b32 {sQb}, {sT0}, 13
    s_lshr_b32 {sT0}, {sLA}, 6
    s_lshl_b32 {sT0}, {sT0}, 10
    s_add_u32 {sQb}, {sQb}, {sT0}
    s_and_b32 {sT0}, {sWv}, 1
    s_lshl_b32 {sT0}, {sT0}, 9
    s_add_u32 {sQb}, {sQb}, {sT0}
    s_add_u32 {sN}, {sQb}, {QP}
    s_add_u32 {sQb}, {sN}, {sFast}
    """)
    q_issue()
    vnext = [0]
    def v_load(n):
        T, r = n // 4, n % 4
        if cfg.s_dv and len(a.vm) >= cfg.s_dv:
            keep = cfg.s_dv - 1
            a(f"s_waitcnt vmcnt({keep})"); a.vm = a.vm[len(a.vm) - keep:]
        if r == 0 or vnext[1] != T:
            a(f"s_add_u32 {sUO}, {sRot}, {T}")
            a(f"s_and_b32 {sUO}, {sUO}, 7")
            a(f"s_lshl_b32 {sUO}, {sUO}, 12")
            a(f"s_add_u32 {sUO}, {sKB}, {sUO}")
            vnext[1] = T
        a.vmem(f"buffer_load_dwordx4 a[{4*n}:{4*n+3}], v{VVO}, {VV}, {sUO} offen offset:{r*256}{NT}", f"v{n}")
    vnext.append(-1)
    def v_more(k):
        for _ in range(k):
            if vnext[0] < 32:
                v_load(vnext[0]); vnext[0] += 1
    v_more(cfg.s_nv1)
    RING = 116; NR = 8; SC = 148; PK = 180
    poll(q_issue, QTAGS, "q", 0)
    q_finish()
    stamp(2)
    steps = [(T, t) for T in range(8) for t in range(4)]
    def kread(idx):
        T, t = steps[idx]
        a.lds(f"ds_read_b128 {R(RING + 4*(idx % NR), 4)}, v{VKA+t} offset:{T*4096}", f"kr{idx}")
    for idx in range(NR): kread(idx)
    for idx, (T, t) in enumerate(steps):
        a.wait_lg(f"kr{idx}")
        c = "0" if t == 0 else R(SC+4*T, 4)
        a(f"v_mfma_f32_16x16x32_bf16 {R(SC+4*T,4)}, {R(RING + 4*(idx % NR),4)}, {R(VQF+4*t,4)}, {c}")
        if idx + NR < len(steps): kread(idx + NR)
        if cfg.s_nv2 and idx % (32 // cfg.s_nv2) == 0: v_more(1)
    vM, vL = "v196", "v197"
    a(f"v_max3_f32 {vM}, v{SC}, v{SC+1}, v{SC+2}")
    for k in range(3, 31, 2):
        a(f"v_max3_f32 {vM}, {vM}, v{SC+k}, v{SC+k+1}")
    a(f"v_max_f32 {vM}, {vM}, v{SC+31}")
    xlane_reduce(vM, "v_max_f32", vA)
    a(f"v_mul_f32 {vM}, {sC1}, {vM}")
    for k in range(32):
        a(f"v_fma_f32 v{SC+k}, v{SC+k}, {sC1}, -{vM}")
    for k in range(32):
        a(f"v_exp_f32 v{SC+k}, v{SC+k}")
        if cfg.s_nv3 and k % (32 // cfg.s_nv3) == 0: v_more(1)
    a(f"v_add_f32 {vL}, v{SC}, v{SC+1}")
    for k in range(2, 32):
        a(f"v_add_f32 {vL}, {vL}, v{SC+k}")
    for k in range(16):
        a(f"v_cvt_pk_bf16_f32 v{PK+k}, v{SC+2*k}, v{SC+2*k+1}")
    xlane_reduce(vL, "v_add_f32", vA)
    v_more(32)
    if not cfg.fstamps: stamp(3)
    OACC = 68
    if won < 12: wo_setup(sQb, sUML)
    build_frag(FR0, f"v{PK}", 0)
    for n in range(32):
        cur = FR0 if n % 2 == 0 else FR1
        nxt = FR1 if n % 2 == 0 else FR0
        if n < 31: build_frag(nxt, f"v{PK + (n+1)//2}", (n+1) % 2)
        a.try_wait_vm(f"v{n}")
        c = "0" if n == 0 else R(OACC, 4)
        a(f"v_mfma_f32_16x16x32_bf16 {R(OACC,4)}, a[{4*n}:{4*n+3}], {R(cur,4)}, {c}")
        if 0 <= cfg.s_wo <= n and won < 12:
            wo_load(won, sQb, sUML); won += 1
    if cfg.s_wo < 99:
        while won < 12: wo_load(won, sQb, sUML); won += 1
    if not cfg.fstamps: stamp(4)
    a(f"""
    v_lshlrev_b32 {vA}, 3, {vBp}
    s_lshl_b32 {sT0}, {sWv}, 4
    s_add_u32 {sT0}, {sT0}, {X + MLS}
    v_add_u32 {vA}, {sT0}, {vA}
    v_and_b32 {vB_}, 0x37, {vLane}
    v_cmp_eq_u32 vcc, 0, {vB_}
    s_and_saveexec_b64 {EX}, vcc
    """)
    a.lds(f"ds_write_b64 {vA}, v[196:197]", "mlw")
    a(f"s_mov_b64 exec, {EX}")
    red_write(OACC, vRedW, RED2)
    a(f"""
    v_lshrrev_b32 v102, 7, {vTau}
    v_and_b32 v103, 127, {vTau}
    v_lshlrev_b32 {vC}, 13, v102
    v_lshl_add_u32 {vC}, v103, 3, {vC}
    v_lshlrev_b32 v104, 7, v102
    v_lshlrev_b32 {vA}, 3, v102
    v_add_u32 {vA}, {X + MLS}, {vA}
    s_bfe_u32 {sT0}, {sLA}, 0x40002
    s_lshl_b32 {sT1}, {sT0}, 14
    s_and_b32 {sT2}, {sLA}, 3
    s_lshl_b32 {sT3}, {sT2}, 11
    s_add_u32 {sT1}, {sT1}, {sT3}
    s_lshr_b32 {sT3}, {sLA}, 6
    s_lshl_b32 {sT3}, {sT3}, 10
    s_add_u32 {sT1}, {sT1}, {sT3}
    s_add_u32 {sUO}, {sT1}, {UO}
    s_lshl_b32 {sT1}, {sT0}, 8
    s_lshr_b32 {sT3}, {sLA}, 6
    s_lshl_b32 {sT3}, {sT3}, 6
    s_add_u32 {sT1}, {sT1}, {sT3}
    s_lshl_b32 {sT2}, {sT2}, 4
    s_add_u32 {sT1}, {sT1}, {sT2}
    s_add_u32 {sUML}, {sT1}, {UML}
    v_mov_b32 v95, {vTag}
    v_mov_b32 v99, {vTag}
    v_mov_b32 v101, {vTag}
    """)
    a.barrier()
    for w in range(4):
        a.lds(f"ds_read_b64 v[{80+2*w}:{81+2*w}], {vA} offset:{16*w}", "mlr")
    for w in range(4):
        a.lds(f"ds_read_b32 v{88+w}, {vTau4} offset:{RED2 + w*1024}", "redr")
    a.wait_lg()
    a("v_max3_f32 v98, v80, v82, v84")
    a("v_max_f32 v98, v98, v86")
    for w in range(4):
        a(f"v_sub_f32 v{80+2*w}, v{80+2*w}, v98")
    for w in range(4):
        a(f"v_exp_f32 v{80+2*w}, v{80+2*w}")
    a("v_mul_f32 v94, v80, v88")
    a("v_mul_f32 v100, v80, v81")
    for w in range(1, 4):
        a(f"v_fmac_f32 v94, v{80+2*w}, v{88+w}")
        a(f"v_fmac_f32 v100, v{80+2*w}, v{81+2*w}")
    a(f"s_add_u32 {sT0}, {sUO}, {FOFF}")
    a(f"s_add_u32 {sT1}, {sUML}, {FOFF}")
    if cfg.fast: a(f"buffer_store_dwordx2 v[94:95], {vC}, {WS}, {sT0} offen")
    a(f"""
    v_cmp_eq_u32 vcc, 0, v103
    s_and_saveexec_b64 {EX}, vcc
    s_cbranch_execz L_s_noml
    buffer_store_dwordx4 v[98:101], v104, {WS}, {sT1} offen
    buffer_store_dwordx4 v[98:101], v104, {WS}, {sUML} offen sc1
    L_s_noml:
    s_mov_b64 exec, {EX}
    buffer_store_dwordx2 v[94:95], {vC}, {WS}, {sUO} offen sc1
    s_mov_b64 exec, {EX}
    """)
    stamp(5)
    a(f"s_lshr_b32 {sH}, {sL3}, 2")
    a(f"s_lshr_b32 {sR}, {sL3}, 2")
    if won < 12:
        wo_setup(sQb, sT3)
        while won < 12: wo_load(won, sQb, sT3); won += 1
    a("s_branch L_stage4")

    a.label("L_roleB")
    a.vm = []; a.lg = []
    a(f"""
    s_sub_u32 {sKB}, {sW}, 128
    s_lshl_b32 {sKB}, {sKB}, 17
    s_lshl_b32 {sT0}, {sWv}, 15
    s_add_u32 {sKB}, {sKB}, {sT0}
    s_mul_i32 {sRot}, {sW}, {20 if cfg.rot else 0}
    s_mul_i32 {sT0}, {sWv}, {12 if cfg.rot else 0}
    s_add_u32 {sRot}, {sRot}, {sT0}
    """)
    if cfg.b_r1:
        c_group(0, 0, 1)
    else:
        for g in range(cfg.b_g1): c_group(g)
    common()
    if cfg.pt == 1: pretouch("B")
    if cfg.cstamps: mute.update(range(5, 13))
    def c_throttled(g):
        d = cfg.b_d0 if g < cfg.b_gr else cfg.b_d
        back = g - d // 4
        if back >= 0: a.try_wait_vm(f"c{back}")
        c_group(g)
    VG = 128
    a(f"s_lshr_b32 {sH}, {sL3}, 2")
    a(f"""
    s_bfe_u32 {sT0}, {sW}, 0x10006
    s_lshl_b32 {sQb}, {sT0}, 16
    s_lshl_b32 {sT0}, {sWv}, 14
    s_add_u32 {sQb}, {sQb}, {sT0}
    s_add_u32 {sQb}, {sQb}, {QA}
    """)
    if cfg.qdma:
        a(f"""
        s_bfe_u32 {sT0}, {sW}, 0x10006
        s_lshl_b32 {sQb}, {sT0}, 15
        s_lshl_b32 {sT0}, {sWv}, 13
        s_add_u32 {sQb}, {sQb}, {sT0}
        s_add_u32 {sQb}, {sQb}, {QA}
        s_lshl_b32 {sUO}, {sWv}, 11
        s_add_u32 {sUO}, {sUO}, {QAF}
        v_and_b32 v84, 31, {vLane}
        v_lshlrev_b32 v84, 6, v84
        """)
    def qaf_issue():
        a.vmem(f"buffer_load_dword v86, v84, {WS}, {sUO} offen sc1", "qaf")
    def gather_first():
        if cfg.b_qw >= 0: a.try_wait_vm(f"c{cfg.b_qw}")
        hello_issue()
        if cfg.qdma:
            qaf_issue(); return
        for k in range(16):
            a(f"s_add_u32 {sT3}, {sQb}, {k*1024}")
            a.vmem(f"buffer_load_dwordx4 {R(VG+4*k,4)}, {vL16}, {WS}, {sT3} offen{' sc1' if cfg.b_qsc1 else ''}", "qa")
    gi = cfg.b_g1
    if cfg.b_r1:
        c_group(0, 1, 4); gi = 1
        while 4 * gi <= cfg.b_r1:
            c_group(gi); gi += 1
    while gi < 8 and gi - (cfg.b_d0 if gi < cfg.b_gr else cfg.b_d) // 4 < 0:
        c_throttled(gi)
        if gi == cfg.b_qpos: gather_first()
        gi += 1
    S1 = 64; RG = 80; AC = 112; AQ = 120; A2 = 244
    vHx = "v243"; vB0, vB1 = "v206", "v207"
    a(f"""
    v_and_b32 {vA}, 3, {vLane}
    v_lshlrev_b32 {vA}, 2, {vA}
    v_bfe_u32 {vB_}, {vLane}, 2, 2
    v_or_b32 {vA}, {vA}, {vB_}
    v_lshrrev_b32 {vB_}, 5, {vLane}
    v_xor_b32 {vA}, {vA}, {vB_}
    v_lshlrev_b32 {vA}, 4, {vA}
    v_and_b32 {vB_}, 31, {vLane}
    v_lshl_add_u32 {vA}, {vB_}, 10, {vA}
    s_lshl_b32 {sT0}, {sWv}, 15
    v_add_u32 v{AC}, {sT0}, {vA}
    v_add_u32 v{AQ}, {X}, {vA}
    v_lshlrev_b32 {vHx}, 2, {vB_}
    v_add_u32 {vHx}, {X}, {vHx}
    """)
    for u in range(1, 8):
        a(f"v_xor_b32 v{AC+u}, {u << 5}, v{AC}")
        a(f"v_xor_b32 v{AQ+u}, {u << 5}, v{AQ}")
    a(f"""
    v_bfe_u32 v64, {vLane}, 2, 2
    v_lshrrev_b32 v65, 5, {vLane}
    v_bfe_u32 v66, {vLane}, 4, 1
    v_bfe_u32 v67, {vLane}, 1, 1
    v_lshl_add_u32 v66, v66, 1, v67
    v_xor_b32 v66, v66, v65
    v_lshl_add_u32 v66, v64, 2, v66
    v_lshlrev_b32 v66, 4, v66
    v_and_b32 v67, 1, {vLane}
    v_lshl_add_u32 v66, v67, 3, v66
    v_lshl_add_u32 v67, v65, 2, v64
    v_lshl_add_u32 v66, v67, 10, v66
    s_lshl_b32 {sT0}, {sWv}, 8
    v_add_u32 v66, {sT0}, v66
    """)
    for ct in range(4):
        a(f"v_xor_b32 v{A2+2*ct}, {ct << 6}, v66")
        a(f"v_xor_b32 v{A2+2*ct+1}, 32, v{A2+2*ct}")
        a(f"v_add_u32 v{A2+2*ct+1}, 8192, v{A2+2*ct+1}")
    a(f"""
    v_lshrrev_b32 {vA}, 1, {vLane}
    v_lshlrev_b32 {vA}, 4, {vA}
    v_and_b32 {vB_}, 1, {vLane}
    v_lshl_add_u32 {vA}, {vB_}, 3, {vA}
    s_lshl_b32 {sT0}, {sWv}, 1
    s_and_b32 {sT0}, {sT0}, 3
    s_lshl_b32 {sT0}, {sT0}, 4
    s_add_u32 {sT1}, {sT0}, 16
    v_xor_b32 {vB0}, {sT0}, {vA}
    v_xor_b32 {vB1}, {sT1}, {vA}
    s_lshl_b32 {sT0}, {sWv}, 13
    s_add_u32 {sT0}, {sT0}, {X}
    v_add_u32 {vB0}, {sT0}, {vB0}
    v_add_u32 {vB1}, {sT0}, {vB1}
    s_mov_b32 {sSpin}, {cfg.spin}
    s_mov_b32 {sPend}, 0xffff
    """)
    while gi < 8:
        c_throttled(gi)
        if gi == cfg.b_qpos: gather_first()
        gi += 1
    if cfg.b_qpos < cfg.b_g1 or cfg.b_qpos > 7: gather_first()
    stamp(2)
    if cfg.qdma:
        poll(qaf_issue, [86], "qaf", 6)
        stamp(3)
        if cfg.stamps: a(f"s_sub_u32 s{66+2*15}, {cfg.spin}, {sSpin}"); a(f"s_mov_b32 s{67+2*15}, 0")
        hello_finish()
        a(f"""
        s_lshl_b32 {sT0}, {sWv}, 1
        s_and_b32 {sT0}, {sT0}, 3
        s_lshl_b32 {sT0}, {sT0}, 4
        v_xor_b32 v128, {sT0}, {vL16}
        s_lshl_b32 {sT1}, {sWv}, 13
        s_add_u32 {sT1}, {sT1}, {X}
        """)
        for u in range(8):
            a(f"v_xor_b32 v{129+u}, {(((u & 3) << 2) | (u >> 2)) << 4}, v128")
        for u in range(8):
            a(f"s_add_u32 m0, {sT1}, {u*1024}")
            a(f"s_add_u32 {sT2}, {sQb}, {u*1024}")
            a.vmem(f"buffer_load_dwordx4 v{129+u}, {WS}, {sT2} offen{' sc1' if cfg.qdma == 1 else ''} lds", "qd")
        stamp(4)
    else:
        Ltry = a.newlabel("L_try"); Lok = a.newlabel("L_ok"); Lchk = a.newlabel("L_chk")
        a.try_wait_vm("qa")
        stamp(3)
        hello_finish()
        a(f"s_branch {Lchk}")
        a.label(Ltry)
        for k in range(16):
            sk = a.newlabel("L_sk")
            a(f"s_bitcmp1_b32 {sPend}, {k}")
            a(f"s_cbranch_scc0 {sk}")
            a(f"s_add_u32 {sT3}, {sQb}, {k*1024}")
            a(f"buffer_load_dwordx4 {R(VG+4*k,4)}, {vL16}, {WS}, {sT3} offen sc1")
            a.label(sk)
        a("s_waitcnt vmcnt(0)")
        a.label(Lchk)
        tagcheck([VG + 4*k + j for k in range(16) for j in (1, 3)], Lok)
        for k in range(16):
            sk = a.newlabel("L_sk")
            a(f"""s_mov_b64 {EX}, exec
            v_cmpx_eq_u32 vcc, {vTag}, v{VG+4*k+1}
            v_cmpx_eq_u32 vcc, {vTag}, v{VG+4*k+3}
            s_nop 3
            s_cmp_eq_u64 exec, {EX}
            s_mov_b64 exec, {EX}
            s_cbranch_scc0 {sk}
            s_bitset0_b32 {sPend}, {k}""")
            a.label(sk)
        a(f"s_sub_u32 {sSpin}, {sSpin}, 1")
        a(f"s_cmp_eq_u32 {sSpin}, 0")
        a(f"s_cbranch_scc0 {Ltry}")
        timeout_mark(2)
        a.label(Lok)
        if cfg.stamps: a(f"s_sub_u32 s{66+2*15}, {cfg.spin}, {sSpin}"); a(f"s_mov_b32 s{67+2*15}, 0")
        stamp(4)
    def uv_issue():
        a(f"""
        v_lshlrev_b32 v208, 16, {vKg}
        v_lshl_add_u32 v208, {vI}, 4, v208
        s_and_b32 {sT0}, {sL3}, 3
        s_lshl_b32 {sT0}, {sT0}, 7
        s_lshl_b32 {sT2}, {sWv}, 5
        s_add_u32 {sT0}, {sT0}, {sT2}
        s_lshl_b32 {sT0}, {sT0}, 13
        s_lshl_b32 {sT2}, {sH}, 8
        s_add_u32 {sT0}, {sT0}, {sT2}
        """)
        for tt in range(8):
            a.vmem(f"buffer_load_dwordx4 a[{32+4*tt}:{35+4*tt}], v208, {VV}, {sT0} offen{WNT}", "uv")
            if tt < 7: a(f"s_add_u32 {sT0}, {sT0}, 8192")
    bwo = [0]
    def b_wo(k=1):
        for _ in range(k):
            if bwo[0] < 12:
                wo_load(bwo[0], sUO, sUML); bwo[0] += 1
    early = []
    if cfg.b_uv == -1:
        a(f"""
        v_lshlrev_b32 v208, 16, {vKg}
        v_lshl_add_u32 v208, {vI}, 4, v208
        s_and_b32 {sQb}, {sL3}, 3
        s_lshl_b32 {sQb}, {sQb}, 7
        s_lshl_b32 {sT2}, {sWv}, 5
        s_add_u32 {sQb}, {sQb}, {sT2}
        s_lshl_b32 {sQb}, {sQb}, 13
        s_lshl_b32 {sT2}, {sH}, 8
        s_add_u32 {sQb}, {sQb}, {sT2}
        """)
        def uv_one(tt):
            def f():
                a(f"s_add_u32 {sT0}, {sQb}, {tt*8192}")
                a.vmem(f"buffer_load_dwordx4 a[{32+4*tt}:{35+4*tt}], v208, {VV}, {sT0} offen{WNT}", "uv")
            return f
        early += [uv_one(tt) for tt in range(8)]
    wo_setup(sUO, sUML)
    if cfg.b_wo == -1: early += [b_wo] * cfg.b_won1
    for k in range(0 if cfg.qdma else 16):
        u, half = k >> 1, k & 1
        if half == 0:
            a(f"v_xor_b32 v204, {(u & 3) << 6}, {vB0 if u < 4 else vB1}")
        a(f"v_mov_b32 v{VG+4*k+1}, v{VG+4*k+2}")
        a.lds(f"ds_write_b64 v204, v[{VG+4*k}:{VG+4*k+1}] offset:{u*1024 + half*512}", "qw")
        if early: early.pop(0)()
    while early: early.pop(0)()
    if "c7" in a.vm: a.wait_vm("c7")
    if cfg.qdma: a.wait_vm("qd")
    a.barrier()
    stamp(1)
    if cfg.pt == 2: pretouch("B2")
    D1 = 4
    def g1read(t):
        s = RG + 8 * (t % D1)
        a.lds(f"ds_read_b128 {R(s,4)}, v{AC + (t & 7)} offset:{(t >> 3)*256}", f"g1c{t}")
        a.lds(f"ds_read_b128 {R(s+4,4)}, v{AQ + (t & 7)} offset:{(t >> 3)*256}", f"g1q{t}")
    for t in range(D1): g1read(t)
    if cfg.b_uv == 0: uv_issue()
    if cfg.b_wo == 0: b_wo(12)
    g1n = cfg.b_won2 if cfg.b_wo == -1 else 0
    for t in range(32):
        if g1n and t >= 32 - 2 * cfg.b_won2 and t % 2 == 0: b_wo(1)
        a.wait_lg(f"g1q{t}")
        s = RG + 8 * (t % D1)
        c = "0" if t == 0 else R(S1, 16)
        a(f"v_mfma_f32_32x32x16_bf16 {R(S1,16)}, {R(s,4)}, {R(s+4,4)}, {c}")
        if t + D1 < 32: g1read(t + D1)
    stamp(5)
    vM, vL = "v196", "v197"
    a(f"s_lshl_b32 {sT0}, {sWv}, 7")
    a(f"v_add_u32 v205, {sT0}, {vHx}")
    a(f"v_max3_f32 {vM}, v{S1}, v{S1+1}, v{S1+2}")
    for k in range(3, 15, 2):
        a(f"v_max3_f32 {vM}, {vM}, v{S1+k}, v{S1+k+1}")
    a(f"v_max_f32 {vM}, {vM}, v{S1+15}")
    a(f"v_mov_b32 {vA}, {vM}")
    a(f"v_permlane32_swap_b32 {vM}, {vA}")
    a(f"v_max_f32 {vM}, {vM}, {vA}")
    a.barrier()
    a.lds(f"ds_write_b32 v205, {vM} offset:{MX}", "mxw")
    a.barrier()
    for w in range(4):
        a.lds(f"ds_read_b32 v{80+w}, {vHx} offset:{MX + 128*w}", "mxr")
    a(f"s_lshl_b32 {sT0}, {sWv}, 11")
    a(f"s_add_u32 {sT0}, {sT0}, {X}")
    a(f"v_add_u32 v204, {sT0}, {vL16}")
    a.wait_lg()
    a(f"v_max3_f32 {vM}, v80, v81, v82")
    a(f"v_max_f32 {vM}, {vM}, v83")
    a(f"v_mul_f32 {vM}, {sC1}, {vM}")
    if cfg.b_uv == 1: uv_issue()
    for k in range(16):
        a(f"v_fma_f32 v{S1+k}, v{S1+k}, {sC1}, -{vM}")
    for k in range(16):
        a(f"v_exp_f32 v{S1+k}, v{S1+k}")
        if cfg.b_wo in (1, -1) or (cfg.b_wo == 2 and bwo[0] < cfg.b_won3): b_wo(1)
    for k in range(4):
        a(f"v_cvt_pk_bf16_f32 v{80+k}, v{S1+2*k}, v{S1+2*k+1}")
    a.lds(f"ds_write_b128 v204, v[80:83] offset:{PF}", "pfw")
    for k in range(4, 8):
        a(f"v_cvt_pk_bf16_f32 v{80+k}, v{S1+2*k}, v{S1+2*k+1}")
    a.lds(f"ds_write_b128 v204, v[84:87] offset:{PF + 1024}", "pfw")
    a(f"v_add_f32 {vL}, v{S1}, v{S1+1}")
    for k in range(2, 16):
        a(f"v_add_f32 {vL}, {vL}, v{S1+k}")
    a(f"v_mov_b32 {vB_}, {vL}")
    a(f"v_permlane32_swap_b32 {vL}, {vB_}")
    a(f"v_add_f32 {vL}, {vL}, {vB_}")
    a.lds(f"ds_write_b32 v205, {vL} offset:{LS}", "lsw")
    a(f"v_add_u32 v204, {X}, {vL16}")
    a.barrier()
    PFR = 208
    for kt in range(8):
        a.lds(f"ds_read_b128 {R(PFR+4*kt,4)}, v204 offset:{PF + 1024*kt}", "pfr")
    for w in range(4):
        a.lds(f"ds_read_b32 v{80+w}, {vHx} offset:{LS + 128*w}", "lsr")
    a.wait_lg()
    a(f"v_add_f32 v80, v80, v81")
    a(f"v_add_f32 v82, v82, v83")
    a(f"v_add_f32 {vL}, v80, v82")
    if not cfg.g2swap: a.barrier()
    stamp(12)
    OA = 128; RG2 = 80; D2 = 6
    st2 = [(kt, ct) for kt in range(8) for ct in range(4)]
    def g2read(idx):
        kt, ct = st2[idx]
        if kt == 4 and ct == 0:
            for q in range(8): a(f"v_add_u32 v{A2+q}, 65536, v{A2+q}")
        s = RG2 + 4 * (idx % D2)
        off = (kt & 3) * 16384
        a.lds(f"ds_read_b64_tr_b16 v[{s}:{s+1}], v{A2+2*ct} offset:{off}", f"g2a{idx}")
        a.lds(f"ds_read_b64_tr_b16 v[{s+2}:{s+3}], v{A2+2*ct+1} offset:{off}", f"g2b{idx}")
    for idx in range(D2): g2read(idx)
    for idx, (kt, ct) in enumerate(st2):
        a.wait_lg(f"g2b{idx}")
        s = RG2 + 4 * (idx % D2)
        c = "0" if kt == 0 else R(OA + 16*ct, 16)
        if cfg.g2swap:
            a(f"v_mfma_f32_32x32x16_bf16 {R(OA+16*ct,16)}, {R(PFR+4*kt,4)}, {R(s,4)}, {c}")
        else:
            a(f"v_mfma_f32_32x32x16_bf16 {R(OA+16*ct,16)}, {R(s,4)}, {R(PFR+4*kt,4)}, {c}")
        if idx + D2 < len(st2): g2read(idx + D2)
        if cfg.g2swap and idx == 8:
            a(f"""
            v_lshrrev_b32 {vA}, 5, {vLane}
            v_lshlrev_b32 v205, 19, {vA}
            v_and_b32 {vA}, 31, {vLane}
            v_lshl_add_u32 v205, {vA}, 3, v205
            s_sub_u32 {sT1}, {sW}, 128
            s_lshl_b32 {sT1}, {sT1}, 8
            s_lshl_b32 {sT0}, {sWv}, 15
            s_add_u32 {sT1}, {sT1}, {sT0}
            s_add_u32 {sT1}, {sT1}, {PB}
            """)
    stamp(6)
    if cfg.g2swap:
        for i in range(16):
            t = 80 + 2 * (i % 8)
            a(f"v_cvt_pk_bf16_f32 v{t}, v{OA+i}, v{OA+16+i}")
            a(f"v_cvt_pk_bf16_f32 v{t+1}, v{OA+32+i}, v{OA+48+i}")
            a(f"s_add_u32 {sT0}, {sT1}, {(8*(i//4) + (i%4))*131072}")
            a.vmem(f"buffer_store_dwordx2 v[{t}:{t+1}], v205, {WS}, {sT0} offen sc1", "pb_st")
    G2OLD_BEGIN = len(a.items)
    a(f"""
    v_and_b32 {vA}, 31, {vLane}
    v_lshlrev_b32 v204, 10, {vA}
    v_and_b32 {vA}, 7, {vLane}
    v_lshl_add_u32 v204, {vA}, 4, v204
    v_lshrrev_b32 {vA}, 5, {vLane}
    v_lshl_add_u32 v204, {vA}, 3, v204
    s_lshl_b32 {sT0}, {sWv}, 8
    s_add_u32 {sT0}, {sT0}, {X}
    v_add_u32 v204, {sT0}, v204
    """)
    for ct in range(4):
        for g in range(4):
            i0 = OA + 16*ct + 4*g
            t = 80 + 2 * ((ct*4+g) % 8)
            a(f"v_cvt_pk_bf16_f32 v{t}, v{i0}, v{i0+1}")
            a(f"v_cvt_pk_bf16_f32 v{t+1}, v{i0+2}, v{i0+3}")
            ad = f"v{96 + (ct*4+g) % 8}"
            a(f"v_xor_b32 {ad}, {(4*ct+g) << 4}, v204")
            a.lds(f"ds_write_b64 {ad}, v[{t}:{t+1}]", "tbw")
            if (ct*4+g) % 8 == 7 and ct < 3: a.wait_lg()
    a(f"""
    s_lshl_b32 {sT0}, {sWv}, 13
    s_add_u32 {sT0}, {sT0}, {X}
    v_add_u32 v204, {sT0}, {vL16}
    v_lshlrev_b32 v205, 15, {vKg}
    v_lshl_add_u32 v205, {vI}, 4, v205
    s_sub_u32 {sT1}, {sW}, 128
    s_lshl_b32 {sT1}, {sT1}, 8
    s_lshl_b32 {sT0}, {sWv}, 20
    s_add_u32 {sT1}, {sT1}, {sT0}
    s_add_u32 {sT1}, {sT1}, {PB}
    """)
    for u in range(8):
        a(f"v_xor_b32 v{104+u}, {u << 4}, v204")
    a.barrier()
    for u in range(8):
        a.lds(f"ds_read_b128 {R(128+4*u,4)}, v{104+u} offset:{u*1024}", f"tbr{u}")
    for u in range(8):
        a.wait_lg(f"tbr{u}")
        a.vmem(f"buffer_store_dwordx4 {R(128+4*u,4)}, v205, {WS}, {sT1} offen sc1", "pb_st")
        if u < 7: a(f"s_add_u32 {sT1}, {sT1}, 131072")
    if cfg.g2swap:
        del a.items[G2OLD_BEGIN:]; a.lg = []; a.vm = a.vm[:len(a.vm) - 8]
    stamp(7)
    a(f"""
    v_mov_b32 v80, {vM}
    v_mov_b32 v81, {vTag}
    v_mov_b32 v82, {vL}
    v_mov_b32 v83, {vTag}
    v_lshlrev_b32 {vA}, 11, {vLane}
    s_sub_u32 {sT1}, {sW}, 128
    s_lshl_b32 {sT1}, {sT1}, 4
    s_add_u32 {sT1}, {sT1}, {PBML}
    s_lshl_b32 {sQb}, {sH}, 11
    s_add_u32 {sQb}, {sQb}, {PBML}
    v_lshlrev_b32 v204, 4, {vTau}
    """)
    if cfg.b_wo == 6:
        b_wo(cfg.b_won6)
        a.wait_vm("pb_st")
    else:
        a(f"s_waitcnt vmcnt(0)")
    a("s_barrier")
    a(f"""
    v_cmp_gt_u32 vcc, 32, {vTau}
    s_and_saveexec_b64 {EX}, vcc
    s_cbranch_execz L_b_noml
    buffer_store_dwordx4 v[80:83], {vA}, {WS}, {sT1} offen sc1
    L_b_noml:
    s_mov_b64 exec, {EX}
    """)
    stamp(8)
    if cfg.b_uv == 2: uv_issue()
    if cfg.b_wo <= 2 or cfg.b_wo == 6: b_wo(12)
    def ml_issue():
        a.vmem(f"buffer_load_dwordx4 v[80:83], v204, {WS}, {sQb} offen sc1", "pbml")
    if cfg.b_wo == 5:
        Lml = a.newlabel("L_mlok")
        a(f"v_and_b32 v204, 127, {vTau}")
        a(f"v_lshlrev_b32 v204, 4, v204")
        a(f"s_mov_b32 {sPend}, 0")
        for _ in range(cfg.b_try):
            a.vm = []
            ml_issue()
            a("s_waitcnt vmcnt(0)")
            tagcheck([81, 83], Lml)
        a(f"s_mov_b32 {sPend}, 1")
        a.vm = []
        b_wo(12)
        ml_issue()
        poll(ml_issue, [81, 83], "pbml", 3)
        a.label(Lml)
        a(f"s_cmp_ge_u32 {sWv}, 2")
        a("s_cbranch_scc1 L_b_skipml")
    else:
        a(f"s_cmp_ge_u32 {sWv}, 2")
        a("s_cbranch_scc1 L_b_skipml")
        a.vm = []
        ml_issue()
        poll(ml_issue, [81, 83], "pbml", 3)
    a("v_mov_b32 v84, v80")
    wave_reduce("v84", "v_max_f32", vA)
    a("v_sub_f32 v80, v80, v84")
    a("v_exp_f32 v80, v80")
    a(f"v_lshlrev_b32 {vC}, 1, {vTau}")
    a("v_mul_f32 v85, v80, v82")
    wave_reduce("v85", "v_add_f32", vA)
    a("v_rcp_f32 v85, v85")
    a(f"v_add_u32 {vC}, {X}, {vC}")
    a("v_mul_f32 v80, v80, v85")
    a("v_cvt_pk_bf16_f32 v80, v80, v80")
    a.lds(f"ds_write_b16 {vC}, v80 offset:{XS2}", "xs2w")
    a.wait_lg()
    a.label("L_b_skipml")
    a.vm = []
    vXa = "v205"
    a(f"""
    s_lshl_b32 {sT0}, {sL3}, 15
    s_lshl_b32 {sT1}, {sWv}, 13
    s_add_u32 {sT0}, {sT0}, {sT1}
    s_add_u32 {sT0}, {sT0}, {PB}
    v_lshlrev_b32 v204, 11, {vKg}
    v_lshl_add_u32 v204, {vI}, 4, v204
    s_lshl_b32 {sT1}, {sWv}, 6
    s_add_u32 {sT1}, {sT1}, {X}
    v_lshlrev_b32 {vXa}, 4, {vKg}
    v_add_u32 {vXa}, {sT1}, {vXa}
    s_add_u32 {sUO}, {sL3}, {(UO + 0x40000)//2048}
    s_lshl_b32 {sUO}, {sUO}, 11
    """)
    a.barrier()
    stamp(9)
    for tt in range(8):
        a.vmem(f"buffer_load_dwordx4 {R(128+4*tt,4)}, v204, {WS}, {sT0} offen offset:{256*tt} sc1", f"pb{tt}")
    if cfg.b_uv == 3: uv_issue()
    def combine(with_wo):
        if with_wo:
            wo_setup(sUML, sQb)
            for n in range(12): wo_load(n, sUML, sQb)
        a.lds(f"ds_read_b128 v[88:91], {vXa} offset:{XS2}", "xf")
        a(f"s_lshr_b32 {sT0}, {sWv}, 1")
        a(f"v_cmp_eq_u32 vcc, {sT0}, {vBp}")
        a.wait_lg()
        for r in range(4):
            a(f"v_cndmask_b32 v{88+r}, 0, v{88+r}, vcc")
        gemv8([R(128+4*tt, 4) for tt in range(8)], 88, ACC, [f"pb{tt}" for tt in range(8)])
    if cfg.b_wo == 5:
        La = a.newlabel("L_cmbA"); Lj = a.newlabel("L_cmbJ")
        vm0 = list(a.vm); lg0 = list(a.lg)
        a(f"s_cmp_eq_u32 {sPend}, 1")
        a(f"s_cbranch_scc1 {La}")
        combine(True)
        a(f"s_branch {Lj}")
        a.label(La)
        a.vm = list(vm0); a.lg = list(lg0)
        combine(False)
        a.label(Lj)
        a.vm = []
    else:
        combine(cfg.b_wo == 3)
    red_write(ACC, vRedW, REDA)
    if cfg.g2swap:
        a(f"""
        v_and_b32 {vC}, 3, {vTau}
        v_lshlrev_b32 {vC}, 6, {vC}
        v_bfe_u32 {vA}, {vTau}, 2, 5
        v_lshl_add_u32 {vC}, {vA}, 1, {vC}
        v_lshrrev_b32 {vA}, 7, {vTau}
        v_lshl_add_u32 {vC}, {vA}, 8, {vC}
        """)
    else:
        a(f"v_lshlrev_b32 {vC}, 1, {vTau}")
    a(f"v_add_u32 {vC}, {X}, {vC}")
    a(f"v_lshl_add_u32 {vXa}, {vBp}, 8, {vXa}")
    a.barrier()
    red_sum4(80, 84, REDA, 1024)
    a("v_cvt_pk_bf16_f32 v80, v80, v80")
    a.lds(f"ds_write_b16 {vC}, v80 offset:{XS3}", "xs3w")
    a.barrier()
    a.lds(f"ds_read_b128 v[88:91], {vXa} offset:{XS3}", "xf")
    a.wait_lg()
    if cfg.b_uv == 3: a.try_wait_vm("uv")
    gemv8([f"a[{32+4*tt}:{35+4*tt}]" for tt in range(8)], 88, ACC, None)
    red_write(ACC, vRedW, REDB)
    a(f"""
    v_mov_b32 v81, {vTag}
    v_mov_b32 v92, 0
    v_mov_b32 v93, {vTag}
    v_mov_b32 v94, 0x3e800000
    v_mov_b32 v95, {vTag}
    v_lshrrev_b32 {vA}, 7, {vTau}
    v_lshlrev_b32 {vA}, 6, {vA}
    s_lshl_b32 {sT0}, {sH}, 7
    s_and_b32 {sT1}, {sL3}, 3
    s_lshl_b32 {sT1}, {sT1}, 4
    s_add_u32 {sT0}, {sT0}, {sT1}
    s_add_u32 {sT0}, {sT0}, {UML + 0x1000}
    s_add_u32 {sT1}, {sT0}, {FOFF}
    v_and_b32 {vB_}, 127, {vTau}
    v_cmp_eq_u32 vcc, 0, {vB_}
    s_and_saveexec_b64 {EX}, vcc
    s_cbranch_execz L_b_noml2
    buffer_store_dwordx4 v[92:95], {vA}, {WS}, {sT1} offen
    buffer_store_dwordx4 v[92:95], {vA}, {WS}, {sT0} offen sc1
    L_b_noml2:
    s_mov_b64 exec, {EX}
    """)
    a.barrier()
    red_sum4(80, 84, REDB, 1024)
    a(f"s_add_u32 {sT0}, {sUO}, {FOFF}")
    if cfg.fast: a(f"buffer_store_dwordx2 v[80:81], {vTau8}, {WS}, {sT0} offen")
    a(f"buffer_store_dwordx2 v[80:81], {vTau8}, {WS}, {sUO} offen sc1")
    stamp(10)
    a(f"s_add_u32 {sR}, {sH}, 32")

    a.label("L_stage4")
    a.vm = []; a.lg = []; a.smem = cfg.stamps
    a(f"""
    s_lshl_b32 {sUO}, {sBr}, 18
    s_lshl_b32 {sT0}, {sH}, 13
    s_add_u32 {sUO}, {sUO}, {sT0}
    s_add_u32 {sUO}, {sUO}, {UO}
    s_lshl_b32 {sUML}, {sBr}, 12
    s_lshl_b32 {sT0}, {sH}, 7
    s_add_u32 {sUML}, {sUML}, {sT0}
    s_add_u32 {sUML}, {sUML}, {UML}
    s_add_u32 {sUO}, {sUO}, {sFast}
    s_add_u32 {sUML}, {sUML}, {sFast}
    v_lshrrev_b32 v207, 7, {vTau}
    v_lshlrev_b32 v207, 6, v207
    s_and_b32 {sT0}, {sL3}, 3
    s_cmp_eq_u32 {sT0}, 3
    s_cbranch_scc1 L_final
    """)
    def u_one(s):
        def f():
            if s >= 2: a(f"s_add_u32 {sT3}, {sUO}, 4096")
            a.vmem(f"buffer_load_dwordx2 v[{80+2*s}:{81+2*s}], {vTau8}, {WS}, {sUO if s < 2 else sT3} offen offset:{2048*(s & 1)} sc1", "u")
            a.vmem(f"buffer_load_dwordx4 v[{88+4*s}:{91+4*s}], v207, {WS}, {sUML} offen offset:{16*s} sc1", "u")
        return f
    def u_issue():
        a(f"s_add_u32 {sT3}, {sUO}, 4096")
        a.vmem(f"buffer_load_dwordx2 v[80:81], {vTau8}, {WS}, {sUO} offen sc1", "u")
        a.vmem(f"buffer_load_dwordx2 v[82:83], {vTau8}, {WS}, {sUO} offen offset:2048 sc1", "u")
        a.vmem(f"buffer_load_dwordx2 v[84:85], {vTau8}, {WS}, {sT3} offen sc1", "u")
        a.vmem(f"buffer_load_dwordx2 v[86:87], {vTau8}, {WS}, {sT3} offen offset:2048 sc1", "u")
        for s in range(4):
            a.vmem(f"buffer_load_dwordx4 v[{88+4*s}:{91+4*s}], v207, {WS}, {sUML} offen offset:{16*s} sc1", "u")
    def u_issue2(b):
        a(f"s_add_u32 {sT3}, {sUO}, 4096")
        for s_ in range(4):
            a(f"buffer_load_dwordx2 v[{b+2*s_}:{b+1+2*s_}], {vTau8}, {WS}, {sUO if s_ < 2 else sT3} offen offset:{2048*(s_ & 1)} sc1")
        for s_ in range(4):
            a(f"buffer_load_dwordx4 v[{b+8+4*s_}:{b+11+4*s_}], v207, {WS}, {sUML} offen offset:{16*s_} sc1")
    if not cfg.p2u: u_issue()
    a(f"""
    v_lshlrev_b32 v110, 1, {vTau}
    v_add_u32 v110, {X}, v110
    s_lshl_b32 {sT0}, {sWv}, 6
    s_add_u32 {sT0}, {sT0}, {X}
    v_lshlrev_b32 v111, 4, {vKg}
    v_lshl_add_u32 v111, {vBp}, 8, v111
    v_add_u32 v111, {sT0}, v111
    v_lshlrev_b32 v112, 10, {vBp}
    v_lshl_add_u32 v112, {vKg}, 7, v112
    v_and_b32 {vA}, 7, {vLane}
    v_lshl_add_u32 v112, {vA}, 2, v112
    s_lshl_b32 {sT0}, {sWv}, 11
    s_add_u32 {sT0}, {sT0}, {X}
    v_add_u32 v112, {sT0}, v112
    v_lshrrev_b32 v113, 7, {vTau}
    v_and_b32 v114, 127, {vTau}
    v_lshlrev_b32 v115, 10, v113
    v_lshl_add_u32 v115, v114, 3, v115
    v_add_u32 v115, {X}, v115
    v_mul_u32_u24 v116, 4608, v113
    v_lshl_add_u32 v116, v114, 4, v116
    s_lshl_b32 {sT0}, {sBr}, 5
    s_add_u32 {sT0}, {sT0}, {sH}
    s_mul_i32 {sT0}, {sT0}, 9216
    s_and_b32 {sT1}, {sL3}, 3
    s_mul_i32 {sT1}, {sT1}, 1536
    s_add_u32 {sT0}, {sT0}, {sT1}
    s_add_u32 {sQb}, {sT0}, {OP}
    """)
    def u_consume(b):
        m = b + 8
        a(f"v_max3_f32 v104, v{m}, v{m+4}, v{m+8}")
        a(f"v_max_f32 v104, v104, v{m+12}")
        for s in range(4): a(f"v_sub_f32 v{m+4*s}, v{m+4*s}, v104")
        for s in range(4): a(f"v_exp_f32 v{m+4*s}, v{m+4*s}")
        a(f"v_mul_f32 v105, v{m}, v{b}")
        a(f"v_mul_f32 v106, v{m}, v{m+2}")
        for s in range(1, 4):
            a(f"v_fmac_f32 v105, v{m+4*s}, v{b+2*s}")
            a(f"v_fmac_f32 v106, v{m+4*s}, v{m+2+4*s}")
    if cfg.p2u:
        def u_pace():
            a(f"v_mov_b32 v120, 0")
            a(f"buffer_load_dword v121, v120, {WS}, 0 offen")
        poll2(u_issue2, 8, 128, 160, [1, 3, 5, 7] + [8+4*s+j for s in range(4) for j in (1, 3)], 4, u_pace, u_consume)
        stamp(13)
    else:
        if cfg.pend:
            poll_groups([(u_one(s), [81+2*s, 89+4*s, 91+4*s]) for s in range(4)], "u", 4)
        else:
            poll(u_issue, [81, 83, 85, 87] + [88+4*s+j for s in range(4) for j in (1, 3)], "u", 4)
        stamp(13)
        u_consume(80)
    a("v_rcp_f32 v106, v106")
    a("v_mul_f32 v105, v105, v106")
    a("v_cvt_pk_bf16_f32 v105, v105, v105")
    a.lds(f"ds_write_b16 v110, v105 offset:{XS}", "xsw")
    a.barrier()
    a.lds(f"ds_read_b128 v[88:91], v111 offset:{XS}", "xf")
    a.wait_lg()
    A0, AA, AB = 68, 92, 96
    build_frag(FR0, "v88", 0)
    for tt in range(8):
        cur = FR0 if tt % 2 == 0 else FR1
        nxt = FR1 if tt % 2 == 0 else FR0
        if tt < 7: build_frag(nxt, f"v{88 + (tt+1)//2}", (tt+1) % 2)
        c = "0" if tt == 0 else R(A0, 4)
        a(f"v_mfma_f32_16x16x32_bf16 {R(A0,4)}, a[{128+4*tt}:{131+4*tt}], {R(cur,4)}, {c}")
        acc = AA if tt % 2 == 0 else AB
        c = "0" if tt < 2 else R(acc, 4)
        a(f"v_mfma_f32_16x16x32_bf16 {R(acc,4)}, a[{160+4*(tt//2)}:{163+4*(tt//2)}], {R(cur,4)}, {c}")
    a(f"v_cmp_gt_u32 vcc, 32, {vLane}")
    red_write(A0, "v112", RED4)
    for r in range(4):
        a(f"v_cndmask_b32 v{AA+r}, v{AB+r}, v{AA+r}, vcc")
    red_write(AA, "v112", RED4 + 512)
    a.barrier()
    for w in range(4):
        a.lds(f"ds_read_b64 v[{80+2*w}:{81+2*w}], v115 offset:{RED4 + 2048*w}", "r4")
        a.lds(f"ds_read_b64 v[{88+2*w}:{89+2*w}], v115 offset:{RED4 + 2048*w + 256}", "r4")
    a(f"v_cmp_le_u32 vcc, 64, v114")
    a(f"v_mov_b32 v101, {vTag}")
    a(f"v_mov_b32 v103, {vTag}")
    a.wait_lg()
    for k in range(2):
        a(f"v_add_f32 v{80+k}, v{80+k}, v{82+k}")
        a(f"v_add_f32 v{84+k}, v{84+k}, v{86+k}")
        a(f"v_add_f32 v{88+k}, v{88+k}, v{90+k}")
        a(f"v_add_f32 v{92+k}, v{92+k}, v{94+k}")
        a(f"v_add_f32 v{80+k}, v{80+k}, v{84+k}")
        a(f"v_add_f32 v{88+k}, v{88+k}, v{92+k}")
        a(f"v_cndmask_b32 v{88+k}, 0, v{88+k}, vcc")
        a(f"v_add_f32 v{100+2*k}, v{80+k}, v{88+k}")
    a(f"""
    v_cmp_gt_u32 vcc, 96, v114
    s_and_saveexec_b64 {EX}, vcc
    buffer_store_dwordx4 v[100:103], v116, {WS}, {sQb} offen sc1
    s_mov_b64 exec, {EX}
    """)
    stamp(11)
    a("s_branch L_done")

    a.label("L_final")
    a.vm = []; a.lg = []
    a(f"""
    s_cmp_ge_u32 {sR}, 36
    s_cbranch_scc1 L_done
    s_cmp_ge_u32 {sR}, 18
    s_cselect_b32 {sT0}, 1, 0
    s_cselect_b32 {sT1}, 18, 0
    s_sub_u32 {sT1}, {sR}, {sT1}
    s_mul_i32 {sT2}, {sT0}, 4608
    s_lshl_b32 {sT3}, {sT1}, 8
    s_add_u32 {sT2}, {sT2}, {sT3}
    s_mul_i32 {sT3}, {sWv}, {16*9216}
    s_add_u32 {sQb}, {sT2}, {sT3}
    s_add_u32 {sQb}, {sQb}, {OP}
    v_mul_u32_u24 v204, 9216, {vKg}
    v_lshl_add_u32 v204, {vI}, 4, v204
    s_mul_i32 {sUO}, {sT0}, 2304
    s_lshl_b32 {sT1}, {sT1}, 6
    s_add_u32 {sUO}, {sUO}, {sT1}
    """)
    def f_one(n):
        def f():
            a(f"s_add_u32 {sT3}, {sQb}, {n*4*9216}")
            a.vmem(f"buffer_load_dwordx4 v[{80+4*n}:{83+4*n}], v204, {WS}, {sT3} offen sc1", "f")
        return f
    def f_issue():
        for n in range(4): f_one(n)()
    if cfg.gate:
        def gate_issue():
            for s_ in range(4):
                a.vmem(f"buffer_load_dwordx4 v[{88+4*s_}:{91+4*s_}], v207, {WS}, {sUML} offen offset:{16*s_} sc1", "g")
        gate_issue()
        poll(gate_issue, [88+4*s_+j for s_ in range(4) for j in (1, 3)], "g", 7)
    if not cfg.p2f: f_issue()
    a(f"""
    s_lshl_b32 {sT0}, {sWv}, 7
    s_add_u32 {sT0}, {sT0}, {X}
    v_lshlrev_b32 v110, 3, {vI}
    v_add_u32 v110, {sT0}, v110
    v_lshlrev_b32 v111, 8, {vKg}
    v_lshl_add_u32 v111, {vI}, 3, v111
    v_add_u32 v111, {X}, v111
    v_mul_u32_u24 v112, 1152, {vKg}
    v_lshl_add_u32 v112, {vI}, 2, v112
    """)
    def f_consume(b):
        a(f"v_add_f32 v{b}, v{b}, v{b+4}")
        a(f"v_add_f32 v{b+8}, v{b+8}, v{b+12}")
        a(f"v_add_f32 v{b+2}, v{b+2}, v{b+6}")
        a(f"v_add_f32 v{b+10}, v{b+10}, v{b+14}")
        a(f"v_add_f32 v80, v{b}, v{b+8}")
        a(f"v_add_f32 v81, v{b+2}, v{b+10}")
    if cfg.p2f:
        def f_issue2(b):
            for n in range(4):
                a(f"s_add_u32 {sT3}, {sQb}, {n*4*9216}")
                a(f"buffer_load_dwordx4 v[{b+4*n}:{b+3+4*n}], v204, {WS}, {sT3} offen sc1")
        def f_pace():
            a(f"v_mov_b32 v120, 0")
            a(f"buffer_load_dword v121, v120, {WS}, 0 offen sc1" if cfg.p2f == 2 else f"buffer_load_dword v121, v120, {WS}, 0 offen")
        poll2(f_issue2, 4, 128, 144, [4*n+j for n in range(4) for j in (1, 3)], 5, f_pace, f_consume)
        stamp(13)
    else:
        if cfg.pend:
            poll_groups([(f_one(n), [81+4*n, 83+4*n]) for n in range(4)], "f", 5)
        else:
            poll(f_issue, [80+4*n+j for n in range(4) for j in (1, 3)], "f", 5)
        stamp(13)
        f_consume(80)
    xlane_reduce("v80", "v_add_f32", vA)
    xlane_reduce("v81", "v_add_f32", vB_)
    a(f"""
    v_cmp_gt_u32 vcc, 16, {vLane}
    s_and_saveexec_b64 {EX}, vcc
    """)
    a.lds(f"ds_write_b64 v110, v[80:81] offset:{RF}", "rfw")
    a(f"s_mov_b64 exec, {EX}")
    a.barrier()
    a(f"""
    v_cmp_gt_u32 vcc, 32, {vTau}
    s_and_saveexec_b64 {EX}, vcc
    s_cbranch_execz L_f_skip
    ds_read_b64 v[80:81], v111 offset:{RF}
    ds_read_b64 v[82:83], v111 offset:{RF + 128}
    s_waitcnt lgkmcnt(0)
    v_add_f32 v80, v80, v82
    v_add_f32 v81, v81, v83
    v_cvt_pk_bf16_f32 v80, v80, v81
    buffer_store_dword v80, v112, {OUT}, {sUO} offen
    s_cmp_lg_u32 {sR}, 0
    s_cbranch_scc1 L_f_skip
    v_mov_b32 {vA}, 0
    v_cmp_eq_u32 vcc, 0, {vTau}
    s_and_b64 exec, exec, vcc
    buffer_store_dword {vTag}, {vA}, {WS}, 0 offen sc1
    L_f_skip:
    s_mov_b64 exec, {EX}
    """)
    stamp(11)
    a.label("L_done")
    if cfg.stamps:
        a(f"""
        s_waitcnt lgkmcnt(0)
        s_lshl_b32 {sT0}, {sW}, 2
        s_add_u32 {sT0}, {sT0}, {sWv}
        s_lshl_b32 {sT0}, {sT0}, 7
        s_add_u32 {sT0}, {sT0}, {STAMP}
        v_mov_b32 {vA}, 0
        v_cmp_eq_u32 vcc, 0, {vLane}
        s_and_saveexec_b64 {EX}, vcc
        """)
        for k in range(NST):
            a(f"v_mov_b32 v80, s{66+2*k}")
            a(f"v_mov_b32 v81, s{67+2*k}")
            a(f"buffer_store_dwordx2 v[80:81], {vA}, {WS}, {sT0} offen offset:{8*k}")
            a("s_nop 1")
        if cfg.dbgt:
            a(f"""
            s_memrealtime s[98:99]
            s_mov_b32 s32, s60
            s_mov_b32 s33, s61
            s_mov_b32 s34, 256
            s_mov_b32 s35, 0x20000
            s_waitcnt lgkmcnt(0)
            s_not_b32 {sT0}, s66
            v_mov_b32 v80, {sT0}
            v_mov_b32 v81, s66
            v_mov_b32 v82, s98
            buffer_atomic_umax v80, {vA}, s[32:35], 0 offen sc1
            buffer_atomic_umax v81, {vA}, s[32:35], 0 offen offset:4 sc1
            buffer_atomic_umax v82, {vA}, s[32:35], 0 offen offset:8 sc1
            s_cmp_ge_u32 {sW}, 128
            s_cbranch_scc1 L_dbgB
            """)
            for j, k in enumerate((1, 8, 7, 2, 4, 5)):
                a(f"v_mov_b32 v{84+j}, s{66+2*k}")
                a(f"buffer_atomic_umax v{84+j}, {vA}, s[32:35], 0 offen offset:{12+4*j} sc1")
            a("s_branch L_dbgE")
            a.label("L_dbgB")
            for j, k in enumerate((2, 4, 5, 7, 9, 10, 13)):
                a(f"v_mov_b32 v{84+j}, s{66+2*k}")
                a(f"buffer_atomic_umax v{84+j}, {vA}, s[32:35], 0 offen offset:{36+4*j} sc1")
            a.label("L_dbgE")
            a("s_waitcnt vmcnt(0)")
        else:
            a(f"s_mov_b64 exec, {EX}")
    a.label("L_end")
    a("s_endpgm")
    return a

HEADER = open("cdna_kernels/" + KN + ".s.ref").read().split("; Override launch")[0]
def build(cfg):
    a = gen(cfg)
    body = a.text()
    name = KN + "_kernel"
    s = HEADER
    s += "; Override launch geometry by editing the next line.\n"
    s += "; @launch grid=(256,1,1) block=(256,1,1) lds=163840\n"
    s += '.amdgcn_target "amdgcn-amd-amdhsa--gfx950"\n.text\n'
    s += f".globl {name}\n.p2align 8\n.type {name},@function\n{name}:\n"
    s += body
    s += f"""
.section .rodata,"a"
.p2align 6
.amdhsa_kernel {name}
  .amdhsa_next_free_vgpr 512
  .amdhsa_next_free_sgpr 102
  .amdhsa_accum_offset 256
  .amdhsa_group_segment_fixed_size 0
  .amdhsa_kernarg_size 112
  .amdhsa_user_sgpr_count 2
  .amdhsa_user_sgpr_kernarg_segment_ptr 1
  .amdhsa_system_sgpr_workgroup_id_x 1
.end_amdhsa_kernel
"""
    return s

if __name__ == "__main__":
    ap = argparse.ArgumentParser()
    ap.add_argument("-o", default="cdna_kernels/" + KN + ".s")
    ap.add_argument("--set", nargs="*", default=[])
    args = ap.parse_args()
    cfg = Cfg()
    for kv in args.set:
        k, v = kv.split("=")
        assert hasattr(cfg, k), k
        setattr(cfg, k, type(getattr(cfg, k))(int(v)))
    open(args.o, "w").write(build(cfg))
```

```python
import sys, argparse, struct
from asmcore import Asm
KN = "concat_heads__sliding_block_cached__compressed_kv_cla__decode"

QP   = 0x1000
QA   = 0x90000
UO   = 0xC0000
UML  = 0x140000
PBML = 0x150000
HELLO = 0x178000
FOFF = 0x1000000
QAF  = 0x170000
OP   = 0x180000
PB   = 0x400000
STAMP = 0x8000000
X = 131072
RED1, QB, RED2, MLS = 0, 4096, 8192, 12288
XS, RED4, RF = 16384, 20480, 28672
XS2, REDA, XS3, REDB = 0, 4096, 8192, 12288
MX, LS, PF = 0, 512, 1024
C1 = (128 ** -0.5) * 1.4426950408889634
def f2u(x): return struct.unpack("<I", struct.pack("<f", x))[0]

class Cfg:
    nt = True
    wnt = True
    stamps = False
    rot = True
    spin = 200000
    s_xord = 2
    b_r1 = 2
    s_r1 = 0
    s_uk0 = 0
    s_k0 = 4
    s_d0 = 16
    s_k1 = 2
    s_dk = 16
    s_dwo = 0
    s_dv = 0
    s_wo = 16
    s_nv1 = 16
    s_nv2 = 16
    s_nv3 = 0
    b_g1 = 1
    b_d = 16
    b_qw = -1
    b_qpos = 9
    b_qsc1 = False
    b_uv = 0
    b_won1 = 8
    b_won2 = 4
    b_try = 1
    b_won6 = 12
    b_won3 = 0
    b_wo = 2
    fast = True
    b_d0 = 4
    b_gr = 0
    pt = 0
    p2u = 0
    p2f = 1
    pend = 0
    gate = 0
    g2swap = 1
    qdma = 0
    s_qf = 3
    b_d1 = 4
    mlfirst = 0
    paearly = 0
    pbearly = 1
    rs_w = 5; rs_0 = 3; rs_1 = 6; rs_r = 0
    rb_w = 20; rb_0 = 12; rb_1 = 24; rb_r = 0
    tlbw = 0
    s_wpos = 2
    fstamps = False
    cstamps = False
    dbgt = False

def gen(cfg):
    a = Asm()
    NT = " nt" if cfg.nt else ""
    WNT = " nt" if cfg.wnt else ""
    sN, sPend, sW, sWv = "s0", "s1", "s2", "s3"
    WS, XR, W1, KV, VV, WO, OUT = "s[4:7]", "s[8:11]", "s[12:15]", "s[16:19]", "s[20:23]", "s[24:27]", "s[28:31]"
    EX = "s[32:33]"
    sT0, sT1, sT2, sT3 = "s42", "s43", "s44", "s45"
    sTag, sKB, sSpin, sH, sQb, sUO, sUML, sR, sBr, sW1, sX1, sRot, sC1 = [f"s{k}" for k in range(46, 59)]
    sCB = "s99"; sEp = "s64"; sL1 = "s59"; sLA = "s62"; sL3 = "s63"; sFast = "s65"
    NST = 16
    mute = set()
    def stamp(k, force=False):
        if k in mute and not force: return
        if cfg.stamps:
            a(f"s_memrealtime s[{66+2*k}:{67+2*k}]"); a.smem = True
    vTau, vLane, vI, vKg = "v0", "v1", "v2", "v3"
    SEL = [[f"v{4+hs*4+r}" for r in range(4)] for hs in range(2)]
    vTag, vBp, vRedW, vTau4, vTau8 = "v12", "v13", "v14", "v15", "v16"
    vA, vB_, vC = "v17", "v18", "v19"
    vXo, vWo, vL16 = "v20", "v21", "v31"
    VX = 22
    VW = 32
    ACC = 68; FR0 = 72; FR1 = 76
    VQ = 86; VQF = 96

    def R(base, n, k="v"): return f"{k}[{base}:{base+n-1}]"
    def build_frag(dst, src, hs):
        for r in range(4):
            a(f"v_perm_b32 v{dst+r}, {src}, {src}, {SEL[hs][r]}")
    def red_write(acc, vaddr, off):
        for r in range(4):
            a.lds(f"ds_write_b32 {vaddr}, v{acc+r} offset:{off + r*32}", "redw")
    def red_sum4(dst, tmp, off, stride):
        for w in range(4):
            a.lds(f"ds_read_b32 v{tmp+w}, {vTau4} offset:{off + w*stride}", "redr")
        a.wait_lg()
        a(f"v_add_f32 v{tmp}, v{tmp}, v{tmp+1}")
        a(f"v_add_f32 v{tmp+2}, v{tmp+2}, v{tmp+3}")
        a(f"v_add_f32 v{dst}, v{tmp}, v{tmp+2}")
    def tagcheck(tagregs, Lok):
        a(f"s_mov_b64 {EX}, exec")
        for t in tagregs:
            a(f"v_cmpx_eq_u32 vcc, {vTag}, v{t}")
        a("s_nop 3")
        a(f"s_cmp_eq_u64 exec, {EX}")
        a(f"s_mov_b64 exec, {EX}")
        a(f"s_cbranch_scc1 {Lok}")
    def timeout_mark(dbgcode):
        a(f"""s_mov_b32 s32, s60
        s_mov_b32 s33, s61
        s_mov_b32 s34, 256
        s_mov_b32 s35, 0x20000
        v_mov_b32 {vA}, {4*dbgcode}
        v_mov_b32 {vB_}, 1
        buffer_store_dword {vB_}, {vA}, s[32:35], 0 offen
        s_waitcnt vmcnt(0)""")
    def poll(issue, tagregs, waitname, dbgcode, fix=None):
        Lchk = a.newlabel("L_chk"); Lok = a.newlabel("L_ok"); Lto = a.newlabel("L_to")
        a.try_wait_vm(waitname)
        if fix and fix[0]: fix[0]()
        saved_vm = list(a.vm)
        a(f"s_mov_b32 {sSpin}, {cfg.spin}")
        a.label(Lchk)
        tagcheck(tagregs, Lok)
        a(f"s_sub_u32 {sSpin}, {sSpin}, 1")
        a(f"s_cmp_eq_u32 {sSpin}, 0")
        a(f"s_cbranch_scc1 {Lto}")
        a.vm = []
        if fix: fix[1]()
        issue()
        a("s_waitcnt vmcnt(0)")
        if fix and len(fix) > 2: fix[2]()
        a(f"s_branch {Lchk}")
        a.label(Lto)
        timeout_mark(dbgcode)
        a.label(Lok)
        a.vm = saved_vm
    def poll_groups(groups, waitname, dbgcode):
        Lchk = a.newlabel("L_chk"); Lok = a.newlabel("L_ok"); Lto = a.newlabel("L_to")
        a.try_wait_vm(waitname)
        saved_vm = list(a.vm)
        a(f"s_mov_b32 {sSpin}, {cfg.spin}")
        a(f"s_mov_b32 {sPend}, {(1 << len(groups)) - 1}")
        a.label(Lchk)
        tagcheck([t for _, tags in groups for t in tags], Lok)
        for g, (_, tags) in enumerate(groups):
            sk = a.newlabel("L_sk")
            a(f"s_mov_b64 {EX}, exec")
            for t in tags: a(f"v_cmpx_eq_u32 vcc, {vTag}, v{t}")
            a(f"""s_nop 3
            s_cmp_eq_u64 exec, {EX}
            s_mov_b64 exec, {EX}
            s_cbranch_scc0 {sk}
            s_bitset0_b32 {sPend}, {g}""")
            a.label(sk)
        a(f"s_sub_u32 {sSpin}, {sSpin}, 1")
        a(f"s_cmp_eq_u32 {sSpin}, 0")
        a(f"s_cbranch_scc1 {Lto}")
        a.vm = []
        for g, (issue, _) in enumerate(groups):
            sk = a.newlabel("L_sk")
            a(f"s_bitcmp1_b32 {sPend}, {g}")
            a(f"s_cbranch_scc0 {sk}")
            issue()
            a.label(sk)
        a("s_waitcnt vmcnt(0)")
        a(f"s_branch {Lchk}")
        a.label(Lto)
        timeout_mark(dbgcode)
        a.label(Lok)
        a.vm = saved_vm
    def poll2(issue, nload, setA, setB, tagoffs, dbgcode, pace, consume):
        LA = a.newlabel("L_pa"); LokA = a.newlabel("L_oka"); LokB = a.newlabel("L_okb"); Lto = a.newlabel("L_to"); Ldone = a.newlabel("L_pd")
        a(f"s_mov_b32 {sSpin}, {cfg.spin}")
        a.vm = []
        pace()
        issue(setA)
        a(f"s_waitcnt vmcnt({nload})")
        issue(setB)
        a.label(LA)
        a(f"s_waitcnt vmcnt({nload})")
        tagcheck([setA + t for t in tagoffs], LokA)
        issue(setA)
        a(f"s_waitcnt vmcnt({nload})")
        tagcheck([setB + t for t in tagoffs], LokB)
        issue(setB)
        a(f"s_sub_u32 {sSpin}, {sSpin}, 1")
        a(f"s_cmp_eq_u32 {sSpin}, 0")
        a(f"s_cbranch_scc0 {LA}")
        a("s_waitcnt vmcnt(0)")
        timeout_mark(dbgcode)
        a.label(LokA)
        consume(setA)
        a(f"s_branch {Ldone}")
        a.label(LokB)
        consume(setB)
        a.label(Ldone)
        a.vm = []
    def xlane_reduce(v, op, tmp):
        a(f"v_mov_b32 {tmp}, {v}")
        a(f"v_permlane16_swap_b32 {v}, {tmp}")
        a(f"{op} {v}, {v}, {tmp}")
        a(f"v_mov_b32 {tmp}, {v}")
        a(f"v_permlane32_swap_b32 {v}, {tmp}")
        a(f"{op} {v}, {v}, {tmp}")
    def wave_reduce(v, op, tmp):
        for d in ("quad_perm:[1,0,3,2]", "quad_perm:[2,3,0,1]", "row_half_mirror", "row_mirror"):
            a(f"{op}_dpp {v}, {v}, {v} {d} row_mask:0xf bank_mask:0xf")
        xlane_reduce(v, op, tmp)
    def x_loads():
        for tt in range(9):
            a.vmem(f"buffer_load_ushort v{VX+tt}, {vXo}, {XR}, {sX1} offen offset:{2*tt}", "x")
    def w1_loads(t0=0, t1=9):
        for tt in range(t0, t1):
            a(f"s_add_u32 {sT2}, {sW1}, {tt*8192}")
            a.vmem(f"buffer_load_dwordx4 {R(VW+4*tt,4)}, {vWo}, {W1}, {sT2} offen{WNT}", f"w1_{tt}")
    def hello_issue():
        a(f"s_and_b32 {sT2}, {sW}, 7")
        a(f"s_lshl_b32 {sT2}, {sT2}, 7")
        a(f"s_lshr_b32 {sT3}, {sW}, 7")
        a(f"s_lshl_b32 {sT3}, {sT3}, 6")
        a(f"s_add_u32 {sT2}, {sT2}, {sT3}")
        a(f"s_add_u32 {sT2}, {sT2}, {HELLO}")
        a(f"v_lshlrev_b32 v82, 2, {vI}")
        a.vmem(f"buffer_load_dword v83, v82, {WS}, {sT2} offen sc1", "hello")
    def hello_finish():
        a.try_wait_vm("hello")
        a(f"v_cmp_ne_u32 vcc, {vTag}, v83")
        a(f"s_mov_b32 {sFast}, {FOFF if cfg.fast else 0}")
        a("s_nop 0")
        a(f"s_cmp_eq_u64 vcc, 0")
        a(f"s_cselect_b32 {sFast}, {sFast}, 0")
    def p1a_compute(qoff, role, hello, between=None):
        a.try_wait_vm("x")
        if cfg.fstamps and hello: stamp(3)
        build_frag(FR0, f"v{VX}", 0)
        for tt in range(9):
            cur = FR0 if tt % 2 == 0 else FR1
            nxt = FR1 if tt % 2 == 0 else FR0
            if tt < 8: build_frag(nxt, f"v{VX+tt+1}", 0)
            a.try_wait_vm(f"w1_{tt}")
            if cfg.fstamps and hello and tt == 0: stamp(12)
            c = "0" if tt == 0 else R(ACC, 4)
            a(f"v_mfma_f32_16x16x32_bf16 {R(ACC,4)}, {R(VW+4*tt,4)}, {R(cur,4)}, {c}")
            if between: between(tt)
        if cfg.fstamps and hello: stamp(4)
        red_write(ACC, vRedW, RED1)
        a(f"v_mov_b32 v81, {vTag}")
        a(f"s_lshl_b32 {sT0}, {role}, 11")
        a(f"s_add_u32 {sT0}, {sT0}, {QP + qoff}")
        a(f"s_add_u32 {sT1}, {sT0}, {FOFF}")
        if hello: hello_issue()
        a.barrier()
        red_sum4(80, 72, RED1, 1024)
        if cfg.fast: a.vmem(f"buffer_store_dwordx2 v[80:81], {vTau8}, {WS}, {sT1} offen", "qp_st")
        a.vmem(f"buffer_store_dwordx2 v[80:81], {vTau8}, {WS}, {sT0} offen sc1", "qp_st")
    def q_issue():
        a(f"s_add_u32 {sT3}, {sQb}, 4096")
        a.vmem(f"buffer_load_dwordx2 v[{VQ}:{VQ+1}], v85, {WS}, {sQb} offen sc1", "q")
        a.vmem(f"buffer_load_dwordx2 v[{VQ+2}:{VQ+3}], v85, {WS}, {sQb} offen offset:2048 sc1", "q")
        a.vmem(f"buffer_load_dwordx2 v[{VQ+4}:{VQ+5}], v85, {WS}, {sT3} offen sc1", "q")
        a.vmem(f"buffer_load_dwordx2 v[{VQ+6}:{VQ+7}], v85, {WS}, {sT3} offen offset:2048 sc1", "q")
    QTAGS = [VQ+1, VQ+3, VQ+5, VQ+7]
    def q_finish():
        a(f"v_add_f32 v{VQ}, v{VQ}, v{VQ+2}")
        a(f"v_add_f32 v{VQ+4}, v{VQ+4}, v{VQ+6}")
        a(f"v_lshlrev_b32 {vA}, 1, {vTau}")
        a(f"v_add_f32 v{VQ}, v{VQ}, v{VQ+4}")
        a(f"v_add_u32 {vA}, {X}, {vA}")
        a(f"v_cvt_pk_bf16_f32 v{VQ}, v{VQ}, v{VQ}")
        a.lds(f"ds_write_b16 {vA}, v{VQ} offset:{QB}", "qb")
        a(f"v_lshlrev_b32 {vA}, 8, {vBp}")
        a(f"v_lshl_add_u32 {vA}, {vKg}, 4, {vA}")
        a(f"v_add_u32 {vA}, {X}, {vA}")
        a.barrier()
        for t in range(4):
            a.lds(f"ds_read_b128 {R(VQF+4*t,4)}, {vA} offset:{QB + 64*t}", "qf")
    def wo_setup(sA, sB):
        a(f"""
        v_mul_u32_u24 v240, 9216, {vKg}
        v_lshl_add_u32 v241, {vI}, 4, v240
        v_lshrrev_b32 {vA}, 3, {vI}
        v_mul_u32_u24 {vA}, 1152, {vA}
        v_and_b32 {vB_}, 7, {vI}
        v_lshl_add_u32 {vA}, {vB_}, 4, {vA}
        v_add_u32 v242, v240, {vA}
        v_add_u32 v242, 256, v242
        s_and_b32 {sB}, {sL3}, 3
        s_lshr_b32 {sA}, {sL3}, 2
        s_lshl_b32 {sA}, {sA}, 2
        s_add_u32 {sA}, {sA}, {sWv}
        s_mul_i32 {sA}, {sA}, {32*1152}
        s_mul_i32 {sB}, {sB}, 384
        s_add_u32 {sA}, {sA}, {sB}
        s_add_u32 {sB}, {sA}, 4608
        """)
    def wo_load(n, sA, sB):
        if n < 8:
            a.vmem(f"buffer_load_dwordx4 a[{128+4*n}:{131+4*n}], v241, {WO}, {sA if n < 4 else sB} offen offset:{(n % 4)*1152}{WNT}", "wo")
        else:
            u = n - 8
            a.vmem(f"buffer_load_dwordx4 a[{160+4*u}:{163+4*u}], v242, {WO}, {sA if u < 2 else sB} offen offset:{(u % 2)*2304}{WNT}", "wo")
    def gemv8(src_regs, xf, acc, waitnames):
        build_frag(FR0, f"v{xf}", 0)
        for tt in range(8):
            cur = FR0 if tt % 2 == 0 else FR1
            nxt = FR1 if tt % 2 == 0 else FR0
            if tt < 7: build_frag(nxt, f"v{xf + (tt+1)//2}", (tt+1) % 2)
            if waitnames: a.try_wait_vm(waitnames[tt])
            c = "0" if tt == 0 else R(acc, 4)
            a(f"v_mfma_f32_16x16x32_bf16 {R(acc,4)}, {src_regs[tt]}, {R(cur,4)}, {c}")

    a(f"""
    s_cmp_ge_u32 s2, 256
    s_cbranch_scc1 L_end
    s_load_dwordx16 s[36:51], s[0:1], 0
    s_load_dwordx8 s[52:59], s[0:1], 64
    s_load_dwordx4 s[60:63], s[0:1], 96
    """)
    if cfg.stamps:
        for k in range(NST): a(f"s_mov_b64 s[{66+2*k}:{67+2*k}], 0")
    stamp(0)
    a(f"""
    v_and_b32 {vLane}, 63, {vTau}
    v_lshrrev_b32 {vA}, 6, {vTau}
    v_and_b32 {vI}, 15, {vTau}
    v_bfe_u32 {vKg}, {vTau}, 4, 2
    v_readfirstlane_b32 {sWv}, {vA}
    v_bfe_u32 {vBp}, {vTau}, 3, 1
    v_mul_u32_u24 {vXo}, 1152, {vBp}
    v_mul_u32_u24 {vA}, 18, {vKg}
    v_add_u32 {vXo}, {vXo}, {vA}
    v_mul_u32_u24 {vWo}, 73728, {vKg}
    v_lshlrev_b32 {vA}, 4, {vI}
    v_add_u32 {vWo}, {vWo}, {vA}
    v_lshlrev_b32 {vL16}, 4, {vLane}
    s_waitcnt lgkmcnt(0)
    s_load_dword {sEp}, s[62:63], 0
    FSTAMP_A
    s_cmp_ge_u32 {sW}, 128
    s_mov_b32 s100, s42
    s_mov_b32 s101, s43
    s_mov_b32 s4, s62
    s_mov_b32 s5, s63
    s_mov_b32 s6, 0x10000000
    s_mov_b32 s7, 0x20000
    s_mov_b32 s8, s46
    s_mov_b32 s9, s47
    s_mov_b32 s10, 2304
    s_mov_b32 s11, 0x20000
    s_mov_b32 s12, s50
    s_mov_b32 s13, s51
    s_mov_b32 s14, 4718592
    s_mov_b32 s15, 0x20000
    s_cselect_b32 s16, s48, s38
    s_cselect_b32 s17, s49, s39
    s_mov_b32 s18, 67108864
    s_cselect_b32 s18, 16777216, s18
    s_mov_b32 s19, 0x20000
    s_cselect_b32 s20, s54, s52
    s_cselect_b32 s21, s55, s53
    s_mov_b32 s22, 4194304
    s_mov_b32 s23, 0x20000
    s_cselect_b32 s24, s56, s44
    s_cselect_b32 s25, s57, s45
    s_mov_b32 s26, 4718592
    s_mov_b32 s27, 0x20000
    s_mov_b32 s28, s58
    s_mov_b32 s29, s59
    s_mov_b32 s30, 4608
    s_mov_b32 s31, 0x20000
    ; x = w&7, q = (w>>3)&3, e = (w>>5)&1, f = (w>>6)&1
    s_and_b32 {sT0}, {sW}, 7
    s_bfe_u32 {sT1}, {sW}, 0x20003
    s_bfe_u32 {sT2}, {sW}, 0x20005
    s_lshl_b32 {sT2}, {sT2}, 3
    s_add_u32 {sT2}, {sT2}, {sT0}          ; hX = x + 8*((w>>5)&3)
    s_lshl_b32 {sT2}, {sT2}, 2
    s_add_u32 {sT2}, {sT2}, {sT1}
    s_bfe_u32 {sT3}, {sW}, 0x10006
    s_lshl_b32 {sT3}, {sT3}, 3
    s_add_u32 {sT3}, {sT3}, {sT0}          ; hkv = x + 8f
    s_bfe_u32 {sT0}, {sW}, 0x10005         ; e
    s_lshl_b32 {sLA}, {sT0}, 6
    s_lshl_b32 {sL3}, {sT3}, 2
    s_add_u32 {sLA}, {sLA}, {sL3}
    s_add_u32 {sLA}, {sLA}, {sT1}
    s_lshl_b32 {sT3}, {sT3}, 1
    s_add_u32 {sT3}, {sT3}, {sT0}          ; 2hkv + e
    s_lshl_b32 {sT3}, {sT3}, 2
    s_add_u32 {sT3}, {sT3}, {sT1}
    s_cmp_ge_u32 {sW}, 128
    s_mov_b32 {sL1}, {sT2}
    s_cselect_b32 {sL3}, {sT2}, {sT3}
    s_and_b32 {sT0}, {sL3}, 3
    s_cmp_eq_u32 {sT0}, 3
    s_cselect_b32 s26, 0, s26
    s_lshr_b32 {sH}, {sL1}, 2
    s_lshr_b32 {sBr}, {sW}, 7
    s_mov_b32 {sFast}, 0
    s_and_b32 {sT0}, {sL1}, 3
    s_mul_i32 {sT0}, {sT0}, 144
    s_mul_i32 {sT1}, {sWv}, 36
    s_add_u32 {sT0}, {sT0}, {sT1}
    s_lshl_b32 {sX1}, {sT0}, 1
    s_lshl_b32 {sW1}, {sT0}, 13
    s_lshl_b32 {sT1}, {sH}, 8
    s_add_u32 {sW1}, {sW1}, {sT1}
    """)
    if cfg.fstamps:
        i_ = [i for i, it in enumerate(a.items) if it == ("i", "FSTAMP_A")][0]
        a.items[i_] = ("i", f"s_memrealtime s[{66+2*9}:{67+2*9}]")
    else:
        a.items = [it for it in a.items if it != ("i", "FSTAMP_A")]
    a.smem = True
    def c_group(g, q0=0, q1=4):
        if q0 == 0: a(f"""
        s_add_u32 {sT1}, {sRot}, {4*g}
        s_and_b32 {sT1}, {sT1}, 31
        s_lshl_b32 {sT1}, {sT1}, 10
        s_add_u32 {sCB}, {sKB}, {sT1}
        s_lshl_b32 {sT2}, {sWv}, 15
        s_add_u32 m0, {sT2}, {g*4096}
        """)
        for q in range(4):
            f = (q << 2) | (g & 3)
            if q0 == 0: a(f"v_xor_b32 v{202+q}, {f << 4}, {vL16}")
        for q in range(q0, q1):
            row = 4 * g + q
            if 0 < row <= cfg.b_r1: a.wait_vm(f"c{g}" if q else f"c{g-1}")
            a.vmem(f"buffer_load_dwordx4 v{202+q}, {KV}, {sCB} offen offset:{q*1024}{NT} lds", f"c{g}")
        if cfg.cstamps and q1 == 4: stamp(5 + g, True)
    a(f"""
    v_xor_b32 {vA}, {vI}, {vKg}
    v_lshlrev_b32 {vA}, 4, {vA}
    v_lshl_add_u32 v206, {vKg}, 13, {vA}
    v_xor_b32 v207, 64, v206
    v_xor_b32 v208, 128, v206
    v_xor_b32 v209, 192, v206
    """)
    a(f"s_cmp_ge_u32 {sW}, 128")
    a("s_cbranch_scc1 L_roleB")
    if cfg.s_xord == 0:
        x_loads(); w1_loads()
    elif cfg.s_xord == 1:
        w1_loads(); x_loads()
    else:
        w1_loads(0, 1); x_loads(); w1_loads(1, 9)
    a(f"""
    s_and_b32 {sUO}, {sL1}, 3
    s_lshl_b32 {sUO}, {sUO}, 7
    s_lshl_b32 {sT1}, {sWv}, 5
    s_add_u32 {sUO}, {sUO}, {sT1}
    s_lshl_b32 {sUO}, {sUO}, 13
    s_lshl_b32 {sT1}, {sH}, 8
    s_add_u32 {sUO}, {sUO}, {sT1}
    s_lshl_b32 {sUML}, {sWv}, 15
    """)
    ukn = [0]
    def uk_load():
        n = ukn[0]
        if n >= 8: return
        ukn[0] += 1
        a(f"s_add_u32 m0, {sUML}, {6*4096 + n*1024}")
        a(f"s_add_u32 {sT2}, {sUO}, {n*4*8192}")
        a.vmem(f"buffer_load_dwordx4 v{206 + n % 4}, {VV}, {sT2} offen{WNT} lds", "uk")
    if cfg.s_uk0:
        a("s_barrier")
        for _ in range(cfg.s_uk0): uk_load()
    def common():
        Lnh = a.newlabel("L_nohello")
        a.smem = True
        a(f"""
        v_and_b32 {vA}, 1, {vLane}
        v_cmp_eq_u32 vcc, 1, {vA}
        v_mov_b32 {vB_}, 0x0c0c0100
        v_mov_b32 {vC}, 0x01000c0c
        v_cndmask_b32 v68, {vB_}, {vC}, vcc
        v_mov_b32 {vB_}, 0x0c0c0302
        v_mov_b32 {vC}, 0x03020c0c
        v_cndmask_b32 v69, {vB_}, {vC}, vcc
        v_bfe_u32 {vA}, {vLane}, 1, 2
        v_mov_b32 {vB_}, 0x0c0c0c0c
        """)
        for r in range(4):
            a(f"v_cmp_eq_u32 vcc, {r}, {vA}")
            a(f"v_cndmask_b32 {SEL[0][r]}, {vB_}, v68, vcc")
            a(f"v_cndmask_b32 {SEL[1][r]}, {vB_}, v69, vcc")
        a(f"""
        v_lshlrev_b32 {vTau4}, 2, {vTau}
        v_add_u32 {vTau4}, {X}, {vTau4}
        v_lshlrev_b32 {vTau8}, 3, {vTau}
        v_lshlrev_b32 {vRedW}, 9, {vBp}
        v_lshl_add_u32 {vRedW}, {vKg}, 7, {vRedW}
        v_and_b32 {vA}, 7, {vLane}
        v_lshl_add_u32 {vRedW}, {vA}, 2, {vRedW}
        s_lshl_b32 {sT0}, {sWv}, 10
        s_add_u32 {sT0}, {sT0}, {X}
        v_add_u32 {vRedW}, {sT0}, {vRedW}
        v_lshlrev_b32 v85, 3, {vLane}
        s_mov_b32 {sC1}, {f2u(C1):#x}
        """)
        a.wait_lg()
        if cfg.fstamps: stamp(10)
        a(f"s_mul_i32 {sTag}, {sEp}, 0x9E3779B1")
        a(f"s_add_u32 {sTag}, {sTag}, 0x7F4A7C15")
        a(f"v_mov_b32 {vTag}, {sTag}")
        a(f"""
        s_and_b32 {sT0}, {sW}, 7
        s_lshl_b32 {sT0}, {sT0}, 7
        s_lshr_b32 {sT1}, {sW}, 3
        s_lshl_b32 {sT1}, {sT1}, 2
        s_add_u32 {sT0}, {sT0}, {sT1}
        s_add_u32 {sT0}, {sT0}, {HELLO}
        v_mov_b32 {vA}, 0
        v_cmp_eq_u32 vcc, 0, {vTau}
        s_and_saveexec_b64 {EX}, vcc
        s_cbranch_execz {Lnh}
        buffer_store_dword {vTag}, {vA}, {WS}, {sT0} offen
        {Lnh}:
        s_mov_b64 exec, {EX}
        """)
    common()
    def pretouch(role):
        if not (cfg.pt and cfg.fast): return
        if role == "B2":
            n0 = len(a.items); pretouch("B")
            import re as _re
            for i in range(n0, len(a.items)):
                k, t = a.items[i]
                if k == "i":
                    t = _re.sub(r"v\[244:247\]", "v[236:239]", t); t = _re.sub(r"v\[244:245\]", "v[236:237]", t)
                    t = _re.sub(r"v24(\d)", lambda m: f"v{232 + int(m.group(1))}", t)
                    a.items[i] = (k, t)
            return
        Lsk = a.newlabel("L_ptskip")
        a(f"""
        v_not_b32 v245, {vTag}
        v_mov_b32 v244, 0
        v_mov_b32 v246, 0
        v_mov_b32 v247, v245
        v_lshrrev_b32 v240, 7, {vTau}
        v_and_b32 v241, 127, {vTau}
        """)
        if role == "S":
            a(f"""
            v_lshlrev_b32 v242, 13, v240
            v_lshl_add_u32 v242, v241, 3, v242
            v_lshlrev_b32 v243, 7, v240
            s_lshl_b32 {sT0}, {sL1}, 11
            s_add_u32 {sT0}, {sT0}, {QP + 128*2048 + FOFF}
            s_lshl_b32 {sT1}, {sL3}, 11
            s_add_u32 {sT1}, {sT1}, {QP + FOFF}
            """)
            if cfg.pt == 1:
                a.vmem(f"buffer_store_dwordx2 v[244:245], {vTau8}, {WS}, {sT0} offen", "pt")
                a.vmem(f"buffer_store_dwordx2 v[244:245], {vTau8}, {WS}, {sT1} offen", "pt")
            a(f"""
            s_bfe_u32 {sT0}, {sLA}, 0x40002
            s_lshl_b32 {sT1}, {sT0}, 14
            s_and_b32 {sT2}, {sLA}, 3
            s_lshl_b32 {sT3}, {sT2}, 11
            s_add_u32 {sT1}, {sT1}, {sT3}
            s_lshr_b32 {sT3}, {sLA}, 6
            s_lshl_b32 {sT3}, {sT3}, 10
            s_add_u32 {sT1}, {sT1}, {sT3}
            s_add_u32 {sT1}, {sT1}, {UO + FOFF}
            """)
            a.vmem(f"buffer_store_dwordx2 v[244:245], v242, {WS}, {sT1} offen", "pt")
            a(f"""
            s_lshl_b32 {sT1}, {sT0}, 8
            s_lshr_b32 {sT3}, {sLA}, 6
            s_lshl_b32 {sT3}, {sT3}, 6
            s_add_u32 {sT1}, {sT1}, {sT3}
            s_lshl_b32 {sT2}, {sT2}, 4
            s_add_u32 {sT1}, {sT1}, {sT2}
            s_add_u32 {sT1}, {sT1}, {UML + FOFF}
            """)
        else:
            a(f"""
            v_lshlrev_b32 v243, 6, v240
            s_add_u32 {sT0}, {sL3}, {(UO + 0x40000)//2048}
            s_lshl_b32 {sT0}, {sT0}, 11
            s_add_u32 {sT0}, {sT0}, {FOFF}
            """)
            a.vmem(f"buffer_store_dwordx2 v[244:245], {vTau8}, {WS}, {sT0} offen", "pt")
            a(f"""
            s_lshr_b32 {sT0}, {sL3}, 2
            s_lshl_b32 {sT0}, {sT0}, 7
            s_and_b32 {sT1}, {sL3}, 3
            s_lshl_b32 {sT1}, {sT1}, 4
            s_add_u32 {sT0}, {sT0}, {sT1}
            s_add_u32 {sT1}, {sT0}, {UML + 0x1000 + FOFF}
            """)
        a(f"""
        v_cmp_eq_u32 vcc, 0, v241
        s_and_saveexec_b64 {EX}, vcc
        s_cbranch_execz {Lsk}
        buffer_store_dwordx4 v[244:247], v243, {WS}, {sT1} offen
        {Lsk}:
        s_mov_b64 exec, {EX}
        """)
    if cfg.pt == 1: pretouch("S")
    VKO = 200; VVO = 204
    a(f"""
    s_lshr_b32 {sT0}, {sLA}, 2
    s_lshl_b32 {sKB}, {sT0}, 21
    s_and_b32 {sT0}, {sLA}, 3
    s_lshl_b32 {sT0}, {sT0}, 17
    s_add_u32 {sKB}, {sKB}, {sT0}
    s_add_u32 {sKB}, {sKB}, {6144*256}
    s_lshl_b32 {sT0}, {sWv}, 15
    s_add_u32 {sKB}, {sKB}, {sT0}
    v_xor_b32 {vA}, {vI}, {vKg}
    v_lshlrev_b32 {vA}, 4, {vA}
    v_lshl_add_u32 v{VKO}, {vKg}, 8, {vA}
    v_xor_b32 v{VKO+1}, 64, v{VKO}
    v_xor_b32 v{VKO+2}, 128, v{VKO}
    v_xor_b32 v{VKO+3}, 192, v{VKO}
    v_lshlrev_b32 {vA}, 4, {vI}
    v_lshl_add_u32 v{VVO}, {vKg}, 10, {vA}
    s_mul_i32 {sRot}, {sW}, {cfg.rs_w}
    s_and_b32 {sT0}, {sWv}, 1
    s_mul_i32 {sT0}, {sT0}, {cfg.rs_0}
    s_add_u32 {sRot}, {sRot}, {sT0}
    s_lshr_b32 {sT0}, {sWv}, 1
    s_mul_i32 {sT0}, {sT0}, {cfg.rs_1}
    s_add_u32 {sRot}, {sRot}, {sT0}
    s_lshr_b32 {sT0}, {sW}, 3
    s_mul_i32 {sT0}, {sT0}, {cfg.rs_r}
    s_add_u32 {sRot}, {sRot}, {sT0}
    s_add_u32 {sT0}, {sH}, 32
    s_lshl_b32 {sN}, {sT0}, 13
    s_lshl_b32 {sT0}, {sWv}, 9
    s_add_u32 {sN}, {sN}, {sT0}
    s_add_u32 {sN}, {sN}, {QP}
    s_add_u32 {sQb}, {sN}, {FOFF if cfg.fast else 0}
    """)
    def k_tile(n):
        a(f"""
        s_add_u32 {sT0}, {sRot}, {n}
        s_and_b32 {sT0}, {sT0}, 7
        s_lshl_b32 {sT0}, {sT0}, 12
        s_add_u32 {sT1}, {sKB}, {sT0}
        s_lshl_b32 {sT0}, {sWv}, 15
        s_add_u32 m0, {sT0}, {n << 12}
        """)
        for q in range(4):
            row = 4 * n + q
            if 0 < row <= cfg.s_r1: a.wait_vm(f"k{n}" if q else f"k{n-1}")
            a.vmem(f"buffer_load_dwordx4 v{VKO+q}, {KV}, {sT1} offen offset:{q*1024}{NT} lds", f"k{n}")
    def throttle(depth):
        keep = max(depth - 4, 0)
        if len(a.vm) > keep:
            a(f"s_waitcnt vmcnt({keep})"); a.vm = a.vm[len(a.vm) - keep:] if keep else []
    VKA = 112
    for t in range(4):
        a(f"v_add_u32 {vA}, {4*t}, {vKg}")
        a(f"v_xor_b32 {vA}, {vA}, {vI}")
        a(f"v_lshlrev_b32 {vA}, 4, {vA}")
        a(f"v_lshl_add_u32 v{VKA+t}, {vI}, 8, {vA}")
    a(f"s_lshl_b32 {sT0}, {sWv}, 15")
    for t in range(4):
        a(f"v_add_u32 v{VKA+t}, {sT0}, v{VKA+t}")
    p1a_compute(128 * 2048, sL1, True, between=lambda tt: uk_load())
    while ukn[0] < 8: uk_load()
    stamp(1)
    q_issue()
    def refix():
        a(f"s_add_u32 {sQb}, {sN}, {sFast}")
        hello_issue()
    poll(q_issue, QTAGS, "q", 1, fix=(hello_finish, refix, hello_finish))
    stamp(8)
    if cfg.stamps: a(f"s_mov_b32 s{66+2*14}, {sFast}"); a(f"s_mov_b32 s{67+2*14}, 0")
    if cfg.stamps: a(f"s_sub_u32 s{66+2*15}, {cfg.spin}, {sSpin}"); a(f"s_mov_b32 s{67+2*15}, 0")
    a.vm = []
    for T2 in range(2):
        for t in range(4):
            a.lds(f"ds_read_b128 {R(116 + 4*(T2*4+t), 4)}, v{VKA+t} offset:{(6+T2)*4096}", "ukr")
    q_finish()
    DA = 68
    qs = 1 if cfg.qdma else 0
    a(f"""
    v_lshlrev_b32 {vA}, {16-qs}, {vBp}
    v_lshl_add_u32 {vA}, {vKg}, {4-qs}, {vA}
    s_lshl_b32 {sT0}, {sH}, {11-qs}
    s_and_b32 {sT1}, {sL1}, 3
    s_lshl_b32 {sT1}, {sT1}, {9-qs}
    s_add_u32 {sT0}, {sT0}, {sT1}
    s_lshl_b32 {sT1}, {sWv}, {7-qs}
    s_add_u32 {sT0}, {sT0}, {sT1}
    s_add_u32 {sT0}, {sT0}, {QA}
    v_mov_b32 v81, {vTag}
    v_mov_b32 v83, {vTag}
    v_mov_b32 v89, {vTag}
    v_mov_b32 v91, {vTag}
    v_and_b32 {vB_}, 7, {vLane}
    v_cmp_eq_u32 vcc, 0, {vB_}
    """)
    a.wait_lg()
    for t in range(4):
        for T2 in range(2):
            n = T2 * 4 + t
            c = "0" if t == 0 else R(DA + 4*T2, 4)
            a(f"v_mfma_f32_16x16x32_bf16 {R(DA+4*T2,4)}, {R(116+4*n,4)}, {R(VQF+4*t,4)}, {c}")
    if cfg.qdma:
        a(f"""
        v_cvt_pk_bf16_f32 v88, v{DA}, v{DA+1}
        v_cvt_pk_bf16_f32 v89, v{DA+2}, v{DA+3}
        v_cvt_pk_bf16_f32 v90, v{DA+4}, v{DA+5}
        v_cvt_pk_bf16_f32 v91, v{DA+6}, v{DA+7}
        s_and_saveexec_b64 {EX}, vcc
        """)
        a.vmem(f"buffer_store_dwordx2 v[88:89], {vA}, {WS}, {sT0} offen sc1", "qa_st")
        a.vmem(f"buffer_store_dwordx2 v[90:91], {vA}, {WS}, {sT0} offen offset:32 sc1", "qa_st")
        a(f"s_mov_b64 exec, {EX}")
    else:
        a(f"""
        v_cvt_pk_bf16_f32 v80, v{DA}, v{DA+1}
        v_cvt_pk_bf16_f32 v82, v{DA+2}, v{DA+3}
        v_cvt_pk_bf16_f32 v88, v{DA+4}, v{DA+5}
        v_cvt_pk_bf16_f32 v90, v{DA+6}, v{DA+7}
        s_and_saveexec_b64 {EX}, vcc
        buffer_store_dwordx4 v[80:83], {vA}, {WS}, {sT0} offen sc1
        buffer_store_dwordx4 v[88:91], {vA}, {WS}, {sT0} offen offset:64 sc1
        s_mov_b64 exec, {EX}
        """)
    def qa_flag():
        a.try_wait_vm("qa_st")
        Lq = a.newlabel("L_noqaf")
        a(f"""
        s_barrier
        s_lshl_b32 {sT0}, {sL1}, 6
        s_add_u32 {sT0}, {sT0}, {QAF}
        v_mov_b32 {vA}, 0
        v_cmp_eq_u32 vcc, 0, {vTau}
        s_and_saveexec_b64 {EX}, vcc
        s_cbranch_execz {Lq}
        buffer_store_dword {vTag}, {vA}, {WS}, {sT0} offen sc1
        {Lq}:
        s_mov_b64 exec, {EX}
        """)
        stamp(10)
    a(f"""
    s_mov_b32 s20, s40
    s_mov_b32 s21, s41
    s_mov_b32 s22, 67108864
    """)
    stamp(6)
    if cfg.pt == 2: pretouch("S")
    a(f"""
    s_mov_b32 s8, s36
    s_mov_b32 s9, s37
    s_mov_b32 s12, s100
    s_mov_b32 s13, s101
    s_and_b32 {sT0}, {sL3}, 3
    s_mul_i32 {sT0}, {sT0}, 144
    s_mul_i32 {sT1}, {sWv}, 36
    s_add_u32 {sT0}, {sT0}, {sT1}
    s_lshl_b32 {sX1}, {sT0}, 1
    s_lshl_b32 {sW1}, {sT0}, 13
    s_lshr_b32 {sT1}, {sL3}, 2
    s_lshl_b32 {sT1}, {sT1}, 8
    s_add_u32 {sW1}, {sW1}, {sT1}
    """)
    hello_issue()
    won = 0
    def wo_early():
        nonlocal won
        wo_setup(sUO, sUML)
        while won < 12:
            if cfg.s_dwo and won and won % cfg.s_dwo == 0: a.wait_vm("wo")
            wo_load(won, sUO, sUML); won += 1
    if cfg.s_wo == -1: wo_early()
    kn = 0
    qf_done = not cfg.qdma
    def warm_S():
        a(f"""
        v_mov_b32 v251, 0
        s_lshr_b32 {sT1}, {sL3}, 2
        s_mul_i32 {sT1}, {sT1}, 147456
        """)
        if cfg.tlbw & 8:
            a.vmem(f"buffer_load_dword v252, v251, {VV}, {sKB} offen", "warm")
            a.vmem(f"buffer_load_dword v253, v251, {WO}, {sT1} offen", "warm")
        if cfg.tlbw & 2:
            a(f"s_mov_b32 {sT2}, {OP + 0x80000}")
            a.vmem(f"buffer_load_dword v254, v251, {WS}, {sT2} offen", "warm")
        if cfg.tlbw & 4:
            a.vmem(f"buffer_load_dword v255, v251, {OUT}, 0 offen", "warm")
    for _ in range(cfg.s_k0):
        throttle(cfg.s_d0); k_tile(kn); kn += 1
        if cfg.tlbw and kn == cfg.s_wpos: warm_S()
        if not qf_done and kn >= cfg.s_qf: qa_flag(); qf_done = True
    if not qf_done and cfg.s_k0 == 0:
        x_loads(); w1_loads(); qa_flag(); qf_done = True
    else:
        if not qf_done: qa_flag(); qf_done = True
        x_loads(); w1_loads()
    for _ in range(cfg.s_k1):
        k_tile(kn); kn += 1
    hello_finish()
    p1a_compute(0, sL3, False)
    stamp(9)
    if cfg.s_wo == -2: wo_early()
    while kn < 8:
        throttle(cfg.s_dk); k_tile(kn); kn += 1
    if cfg.s_wo == -3: wo_early()
    stamp(7)
    a(f"""
    s_bfe_u32 {sT0}, {sLA}, 0x40002
    s_lshl_b32 {sT0}, {sT0}, 1
    s_lshr_b32 {sT1}, {sWv}, 1
    s_add_u32 {sT0}, {sT0}, {sT1}
    s_lshl_b32 {sQb}, {sT0}, 13
    s_lshr_b32 {sT0}, {sLA}, 6
    s_lshl_b32 {sT0}, {sT0}, 10
    s_add_u32 {sQb}, {sQb}, {sT0}
    s_and_b32 {sT0}, {sWv}, 1
    s_lshl_b32 {sT0}, {sT0}, 9
    s_add_u32 {sQb}, {sQb}, {sT0}
    s_add_u32 {sN}, {sQb}, {QP}
    s_add_u32 {sQb}, {sN}, {sFast}
    """)
    q_issue()
    vnext = [0]
    def v_load(n):
        T, r = n // 4, n % 4
        if cfg.s_dv and len(a.vm) >= cfg.s_dv:
            keep = cfg.s_dv - 1
            a(f"s_waitcnt vmcnt({keep})"); a.vm = a.vm[len(a.vm) - keep:]
        if r == 0 or vnext[1] != T:
            a(f"s_add_u32 {sUO}, {sRot}, {T}")
            a(f"s_and_b32 {sUO}, {sUO}, 7")
            a(f"s_lshl_b32 {sUO}, {sUO}, 12")
            a(f"s_add_u32 {sUO}, {sKB}, {sUO}")
            vnext[1] = T
        a.vmem(f"buffer_load_dwordx4 a[{4*n}:{4*n+3}], v{VVO}, {VV}, {sUO} offen offset:{r*256}{NT}", f"v{n}")
    vnext.append(-1)
    def v_more(k):
        for _ in range(k):
            if vnext[0] < 32:
                v_load(vnext[0]); vnext[0] += 1
    v_more(cfg.s_nv1)
    RING = 116; NR = 8; SC = 148; PK = 180
    poll(q_issue, QTAGS, "q", 0)
    q_finish()
    stamp(2)
    steps = [(T, t) for T in range(8) for t in range(4)]
    def kread(idx):
        T, t = steps[idx]
        a.lds(f"ds_read_b128 {R(RING + 4*(idx % NR), 4)}, v{VKA+t} offset:{T*4096}", f"kr{idx}")
    for idx in range(NR): kread(idx)
    for idx, (T, t) in enumerate(steps):
        a.wait_lg(f"kr{idx}")
        c = "0" if t == 0 else R(SC+4*T, 4)
        a(f"v_mfma_f32_16x16x32_bf16 {R(SC+4*T,4)}, {R(RING + 4*(idx % NR),4)}, {R(VQF+4*t,4)}, {c}")
        if idx + NR < len(steps): kread(idx + NR)
        if cfg.s_nv2 and idx % (32 // cfg.s_nv2) == 0: v_more(1)
    vM, vL = "v196", "v197"
    a(f"v_max3_f32 {vM}, v{SC}, v{SC+1}, v{SC+2}")
    for k in range(3, 31, 2):
        a(f"v_max3_f32 {vM}, {vM}, v{SC+k}, v{SC+k+1}")
    a(f"v_max_f32 {vM}, {vM}, v{SC+31}")
    xlane_reduce(vM, "v_max_f32", vA)
    a(f"v_mul_f32 {vM}, {sC1}, {vM}")
    for k in range(32):
        a(f"v_fma_f32 v{SC+k}, v{SC+k}, {sC1}, -{vM}")
    for k in range(32):
        a(f"v_exp_f32 v{SC+k}, v{SC+k}")
        if cfg.s_nv3 and k % (32 // cfg.s_nv3) == 0: v_more(1)
    a(f"v_add_f32 {vL}, v{SC}, v{SC+1}")
    for k in range(2, 32):
        a(f"v_add_f32 {vL}, {vL}, v{SC+k}")
    for k in range(16):
        a(f"v_cvt_pk_bf16_f32 v{PK+k}, v{SC+2*k}, v{SC+2*k+1}")
    xlane_reduce(vL, "v_add_f32", vA)
    v_more(32)
    if not cfg.fstamps: stamp(3)
    OACC = 68
    if cfg.paearly:
        a(f"""
        v_lshlrev_b32 {vA}, 3, {vBp}
        s_lshl_b32 {sT0}, {sWv}, 4
        s_add_u32 {sT0}, {sT0}, {X + MLS}
        v_add_u32 {vB_}, {sT0}, {vA}
        v_and_b32 v102, 0x37, {vLane}
        v_cmp_eq_u32 vcc, 0, v102
        s_and_saveexec_b64 {EX}, vcc
        """)
        a.lds(f"ds_write_b64 {vB_}, v[196:197]", "mlw")
        a(f"""
        s_mov_b64 exec, {EX}
        v_add_u32 {vA}, {X + MLS}, {vA}
        v_lshrrev_b32 v102, 7, {vTau}
        v_and_b32 v103, 127, {vTau}
        v_lshlrev_b32 {vC}, 13, v102
        v_lshl_add_u32 {vC}, v103, 3, {vC}
        v_lshlrev_b32 v104, 7, {vBp}
        s_bfe_u32 {sT0}, {sLA}, 0x40002
        s_lshl_b32 {sT1}, {sT0}, 14
        s_and_b32 {sT2}, {sLA}, 3
        s_lshl_b32 {sT3}, {sT2}, 11
        s_add_u32 {sT1}, {sT1}, {sT3}
        s_lshr_b32 {sT3}, {sLA}, 6
        s_lshl_b32 {sT3}, {sT3}, 10
        s_add_u32 {sT1}, {sT1}, {sT3}
        s_add_u32 {sUO}, {sT1}, {UO}
        s_lshl_b32 {sT1}, {sT0}, 8
        s_lshr_b32 {sT3}, {sLA}, 6
        s_lshl_b32 {sT3}, {sT3}, 6
        s_add_u32 {sT1}, {sT1}, {sT3}
        s_lshl_b32 {sT2}, {sT2}, 4
        s_add_u32 {sT1}, {sT1}, {sT2}
        s_add_u32 {sW1}, {sT1}, {UML}
        v_mov_b32 v95, {vTag}
        v_mov_b32 v99, {vTag}
        v_mov_b32 v101, {vTag}
        """)
        a.barrier()
        for w in range(4):
            a.lds(f"ds_read_b64 v[{80+2*w}:{81+2*w}], {vA} offset:{16*w}", "mlr")
        a.wait_lg()
        a("v_max3_f32 v98, v80, v82, v84")
        a("v_max_f32 v98, v98, v86")
        for w in range(4):
            a(f"v_sub_f32 v{80+2*w}, v{80+2*w}, v98")
        a("v_sub_f32 v105, v196, v98")
        for w in range(4):
            a(f"v_exp_f32 v{80+2*w}, v{80+2*w}")
        a("v_exp_f32 v105, v105")
        a("v_mul_f32 v100, v80, v81")
        for w in range(1, 4):
            a(f"v_fmac_f32 v100, v{80+2*w}, v{81+2*w}")
    if won < 12: wo_setup(sQb, sUML)
    build_frag(FR0, f"v{PK}", 0)
    for n in range(32):
        cur = FR0 if n % 2 == 0 else FR1
        nxt = FR1 if n % 2 == 0 else FR0
        if n < 31: build_frag(nxt, f"v{PK + (n+1)//2}", (n+1) % 2)
        a.try_wait_vm(f"v{n}")
        c = "0" if n == 0 else R(OACC, 4)
        a(f"v_mfma_f32_16x16x32_bf16 {R(OACC,4)}, a[{4*n}:{4*n+3}], {R(cur,4)}, {c}")
        if 0 <= cfg.s_wo <= n and won < 12:
            wo_load(won, sQb, sUML); won += 1
    if cfg.s_wo < 99:
        while won < 12: wo_load(won, sQb, sUML); won += 1
    if not cfg.fstamps: stamp(4)
    if cfg.paearly:
        for r in range(4): a(f"v_mul_f32 v{OACC+r}, v{OACC+r}, v105")
        red_write(OACC, vRedW, RED2)
        a(f"s_add_u32 {sT0}, {sUO}, {FOFF}")
        a(f"s_add_u32 {sT1}, {sW1}, {FOFF}")
        a(f"v_and_b32 {vB_}, 0xf7, {vTau}")
        a(f"v_cmp_eq_u32 vcc, 0, {vB_}")
        a.barrier()
        for w in range(4):
            a.lds(f"ds_read_b32 v{88+w}, {vTau4} offset:{RED2 + w*1024}", "redr")
        a.wait_lg()
        a("v_add_f32 v88, v88, v89")
        a("v_add_f32 v90, v90, v91")
        a("v_add_f32 v94, v88, v90")
        if cfg.fast: a(f"buffer_store_dwordx2 v[94:95], {vC}, {WS}, {sT0} offen")
        a(f"""
        s_and_saveexec_b64 {EX}, vcc
        s_cbranch_execz L_s_noml
        buffer_store_dwordx4 v[98:101], v104, {WS}, {sT1} offen
        buffer_store_dwordx4 v[98:101], v104, {WS}, {sW1} offen sc1
        L_s_noml:
        s_mov_b64 exec, {EX}
        buffer_store_dwordx2 v[94:95], {vC}, {WS}, {sUO} offen sc1
        """)
    else:
        a(f"""
    v_lshlrev_b32 {vA}, 3, {vBp}
    s_lshl_b32 {sT0}, {sWv}, 4
    s_add_u32 {sT0}, {sT0}, {X + MLS}
    v_add_u32 {vA}, {sT0}, {vA}
    v_and_b32 {vB_}, 0x37, {vLane}
    v_cmp_eq_u32 vcc, 0, {vB_}
    s_and_saveexec_b64 {EX}, vcc
    """)
        a.lds(f"ds_write_b64 {vA}, v[196:197]", "mlw")
        a(f"s_mov_b64 exec, {EX}")
        red_write(OACC, vRedW, RED2)
        a(f"""
    v_lshrrev_b32 v102, 7, {vTau}
    v_and_b32 v103, 127, {vTau}
    v_lshlrev_b32 {vC}, 13, v102
    v_lshl_add_u32 {vC}, v103, 3, {vC}
    v_lshlrev_b32 v104, 7, v102
    v_lshlrev_b32 {vA}, 3, v102
    v_add_u32 {vA}, {X + MLS}, {vA}
    s_bfe_u32 {sT0}, {sLA}, 0x40002
    s_lshl_b32 {sT1}, {sT0}, 14
    s_and_b32 {sT2}, {sLA}, 3
    s_lshl_b32 {sT3}, {sT2}, 11
    s_add_u32 {sT1}, {sT1}, {sT3}
    s_lshr_b32 {sT3}, {sLA}, 6
    s_lshl_b32 {sT3}, {sT3}, 10
    s_add_u32 {sT1}, {sT1}, {sT3}
    s_add_u32 {sUO}, {sT1}, {UO}
    s_lshl_b32 {sT1}, {sT0}, 8
    s_lshr_b32 {sT3}, {sLA}, 6
    s_lshl_b32 {sT3}, {sT3}, 6
    s_add_u32 {sT1}, {sT1}, {sT3}
    s_lshl_b32 {sT2}, {sT2}, 4
    s_add_u32 {sT1}, {sT1}, {sT2}
    s_add_u32 {sUML}, {sT1}, {UML}
    v_mov_b32 v95, {vTag}
    v_mov_b32 v99, {vTag}
    v_mov_b32 v101, {vTag}
    """)
        a.barrier()
        for w in range(4):
            a.lds(f"ds_read_b64 v[{80+2*w}:{81+2*w}], {vA} offset:{16*w}", "mlr")
        for w in range(4):
            a.lds(f"ds_read_b32 v{88+w}, {vTau4} offset:{RED2 + w*1024}", "redr")
        a.wait_lg()
        a("v_max3_f32 v98, v80, v82, v84")
        a("v_max_f32 v98, v98, v86")
        for w in range(4):
            a(f"v_sub_f32 v{80+2*w}, v{80+2*w}, v98")
        for w in range(4):
            a(f"v_exp_f32 v{80+2*w}, v{80+2*w}")
        a("v_mul_f32 v94, v80, v88")
        a("v_mul_f32 v100, v80, v81")
        for w in range(1, 4):
            a(f"v_fmac_f32 v94, v{80+2*w}, v{88+w}")
            a(f"v_fmac_f32 v100, v{80+2*w}, v{81+2*w}")
        a(f"s_add_u32 {sT0}, {sUO}, {FOFF}")
        a(f"s_add_u32 {sT1}, {sUML}, {FOFF}")
        if cfg.fast: a(f"buffer_store_dwordx2 v[94:95], {vC}, {WS}, {sT0} offen")
        a(f"""
    v_cmp_eq_u32 vcc, 0, v103
    s_and_saveexec_b64 {EX}, vcc
    s_cbranch_execz L_s_noml
    buffer_store_dwordx4 v[98:101], v104, {WS}, {sT1} offen
    buffer_store_dwordx4 v[98:101], v104, {WS}, {sUML} offen sc1
    L_s_noml:
    s_mov_b64 exec, {EX}
    buffer_store_dwordx2 v[94:95], {vC}, {WS}, {sUO} offen sc1
    s_mov_b64 exec, {EX}
    """)
    stamp(5)
    a(f"s_lshr_b32 {sH}, {sL3}, 2")
    a(f"s_lshr_b32 {sR}, {sL3}, 2")
    if won < 12:
        wo_setup(sQb, sT3)
        while won < 12: wo_load(won, sQb, sT3); won += 1
    a("s_branch L_stage4")

    a.label("L_roleB")
    a.vm = []; a.lg = []
    a(f"""
    s_sub_u32 {sKB}, {sW}, 128
    s_lshl_b32 {sKB}, {sKB}, 17
    s_lshl_b32 {sT0}, {sWv}, 15
    s_add_u32 {sKB}, {sKB}, {sT0}
    s_mul_i32 {sRot}, {sW}, {cfg.rb_w}
    s_and_b32 {sT0}, {sWv}, 1
    s_mul_i32 {sT0}, {sT0}, {cfg.rb_0}
    s_add_u32 {sRot}, {sRot}, {sT0}
    s_lshr_b32 {sT0}, {sWv}, 1
    s_mul_i32 {sT0}, {sT0}, {cfg.rb_1}
    s_add_u32 {sRot}, {sRot}, {sT0}
    s_lshr_b32 {sT0}, {sW}, 3
    s_mul_i32 {sT0}, {sT0}, {cfg.rb_r}
    s_add_u32 {sRot}, {sRot}, {sT0}
    """)
    if cfg.b_r1:
        c_group(0, 0, 1)
    else:
        for g in range(cfg.b_g1): c_group(g)
    common()
    if cfg.pt == 1: pretouch("B")
    def warm(srd, soff, k):
        a.vmem(f"buffer_load_dword v{252 + (k & 3)}, v251, {srd}, {soff} offen", "warm")
    def warm_B():
        a(f"""
        v_mov_b32 v251, 0
        s_and_b32 {sT0}, {sL3}, 3
        s_lshl_b32 {sT0}, {sT0}, 20
        s_lshr_b32 {sT1}, {sL3}, 2
        s_lshl_b32 {sT2}, {sT1}, 8
        s_add_u32 {sT0}, {sT0}, {sT2}
        s_mul_i32 {sT1}, {sT1}, 147456
        """)
        k = 0
        if cfg.tlbw & 1:
            warm(VV, sT0, 0)
            a(f"s_add_u32 {sT0}, {sT0}, {127*8192}")
            warm(VV, sT0, 1)
            warm(WO, sT1, 2)
        if cfg.tlbw & 2:
            for off in (PB, PB + 0x200000, OP + 0x80000, FOFF + UO + 0x40000):
                a(f"s_mov_b32 {sT2}, {off}")
                warm(WS, sT2, k); k += 1
        if cfg.tlbw & 4:
            warm(OUT, "0", 3)
    if cfg.tlbw: warm_B()
    if cfg.cstamps: mute.update(range(5, 13))
    def c_throttled(g):
        d = cfg.b_d0 if g < cfg.b_gr else cfg.b_d
        back = g - d // 4
        if back >= 0: a.try_wait_vm(f"c{back}")
        c_group(g)
    VG = 128
    a(f"s_lshr_b32 {sH}, {sL3}, 2")
    a(f"""
    s_bfe_u32 {sT0}, {sW}, 0x10006
    s_lshl_b32 {sQb}, {sT0}, 16
    s_lshl_b32 {sT0}, {sWv}, 14
    s_add_u32 {sQb}, {sQb}, {sT0}
    s_add_u32 {sQb}, {sQb}, {QA}
    """)
    if cfg.qdma:
        a(f"""
        s_bfe_u32 {sT0}, {sW}, 0x10006
        s_lshl_b32 {sQb}, {sT0}, 15
        s_lshl_b32 {sT0}, {sWv}, 13
        s_add_u32 {sQb}, {sQb}, {sT0}
        s_add_u32 {sQb}, {sQb}, {QA}
        s_lshl_b32 {sUO}, {sWv}, 11
        s_add_u32 {sUO}, {sUO}, {QAF}
        v_and_b32 v84, 31, {vLane}
        v_lshlrev_b32 v84, 6, v84
        """)
    def qaf_issue():
        a.vmem(f"buffer_load_dword v86, v84, {WS}, {sUO} offen sc1", "qaf")
    def gather_first():
        if cfg.b_qw >= 0: a.try_wait_vm(f"c{cfg.b_qw}")
        hello_issue()
        if cfg.qdma:
            qaf_issue(); return
        for k in range(16):
            a(f"s_add_u32 {sT3}, {sQb}, {k*1024}")
            a.vmem(f"buffer_load_dwordx4 {R(VG+4*k,4)}, {vL16}, {WS}, {sT3} offen{' sc1' if cfg.b_qsc1 else ''}", "qa")
    gi = cfg.b_g1
    if cfg.b_r1:
        c_group(0, 1, 4); gi = 1
        while 4 * gi <= cfg.b_r1:
            c_group(gi); gi += 1
    while gi < 8 and gi - (cfg.b_d0 if gi < cfg.b_gr else cfg.b_d) // 4 < 0:
        c_throttled(gi)
        if gi == cfg.b_qpos: gather_first()
        gi += 1
    S1 = 64; RG = 80; AC = 112; AQ = 120; A2 = 244
    vHx = "v243"; vB0, vB1 = "v206", "v207"
    a(f"""
    v_and_b32 {vA}, 3, {vLane}
    v_lshlrev_b32 {vA}, 2, {vA}
    v_bfe_u32 {vB_}, {vLane}, 2, 2
    v_or_b32 {vA}, {vA}, {vB_}
    v_lshrrev_b32 {vB_}, 5, {vLane}
    v_xor_b32 {vA}, {vA}, {vB_}
    v_lshlrev_b32 {vA}, 4, {vA}
    v_and_b32 {vB_}, 31, {vLane}
    v_lshl_add_u32 {vA}, {vB_}, 10, {vA}
    s_lshl_b32 {sT0}, {sWv}, 15
    v_add_u32 v{AC}, {sT0}, {vA}
    v_add_u32 v{AQ}, {X}, {vA}
    v_lshlrev_b32 {vHx}, 2, {vB_}
    v_add_u32 {vHx}, {X}, {vHx}
    """)
    for u in range(1, 8):
        a(f"v_xor_b32 v{AC+u}, {u << 5}, v{AC}")
        a(f"v_xor_b32 v{AQ+u}, {u << 5}, v{AQ}")
    a(f"""
    v_bfe_u32 v64, {vLane}, 2, 2
    v_lshrrev_b32 v65, 5, {vLane}
    v_bfe_u32 v66, {vLane}, 4, 1
    v_bfe_u32 v67, {vLane}, 1, 1
    v_lshl_add_u32 v66, v66, 1, v67
    v_xor_b32 v66, v66, v65
    v_lshl_add_u32 v66, v64, 2, v66
    v_lshlrev_b32 v66, 4, v66
    v_and_b32 v67, 1, {vLane}
    v_lshl_add_u32 v66, v67, 3, v66
    v_lshl_add_u32 v67, v65, 2, v64
    v_lshl_add_u32 v66, v67, 10, v66
    s_lshl_b32 {sT0}, {sWv}, 8
    v_add_u32 v66, {sT0}, v66
    """)
    for ct in range(4):
        a(f"v_xor_b32 v{A2+2*ct}, {ct << 6}, v66")
        a(f"v_xor_b32 v{A2+2*ct+1}, 32, v{A2+2*ct}")
        a(f"v_add_u32 v{A2+2*ct+1}, 8192, v{A2+2*ct+1}")
    a(f"""
    v_lshrrev_b32 {vA}, 1, {vLane}
    v_lshlrev_b32 {vA}, 4, {vA}
    v_and_b32 {vB_}, 1, {vLane}
    v_lshl_add_u32 {vA}, {vB_}, 3, {vA}
    s_lshl_b32 {sT0}, {sWv}, 1
    s_and_b32 {sT0}, {sT0}, 3
    s_lshl_b32 {sT0}, {sT0}, 4
    s_add_u32 {sT1}, {sT0}, 16
    v_xor_b32 {vB0}, {sT0}, {vA}
    v_xor_b32 {vB1}, {sT1}, {vA}
    s_lshl_b32 {sT0}, {sWv}, 13
    s_add_u32 {sT0}, {sT0}, {X}
    v_add_u32 {vB0}, {sT0}, {vB0}
    v_add_u32 {vB1}, {sT0}, {vB1}
    s_mov_b32 {sSpin}, {cfg.spin}
    s_mov_b32 {sPend}, 0xffff
    """)
    while gi < 8:
        c_throttled(gi)
        if gi == cfg.b_qpos: gather_first()
        gi += 1
    if cfg.b_qpos < cfg.b_g1 or cfg.b_qpos > 7: gather_first()
    stamp(2)
    if cfg.qdma:
        poll(qaf_issue, [86], "qaf", 6)
        stamp(3)
        if cfg.stamps: a(f"s_sub_u32 s{66+2*15}, {cfg.spin}, {sSpin}"); a(f"s_mov_b32 s{67+2*15}, 0")
        hello_finish()
        a(f"""
        s_lshl_b32 {sT0}, {sWv}, 1
        s_and_b32 {sT0}, {sT0}, 3
        s_lshl_b32 {sT0}, {sT0}, 4
        v_xor_b32 v128, {sT0}, {vL16}
        s_lshl_b32 {sT1}, {sWv}, 13
        s_add_u32 {sT1}, {sT1}, {X}
        """)
        for u in range(8):
            a(f"v_xor_b32 v{129+u}, {(((u & 3) << 2) | (u >> 2)) << 4}, v128")
        for u in range(8):
            a(f"s_add_u32 m0, {sT1}, {u*1024}")
            a(f"s_add_u32 {sT2}, {sQb}, {u*1024}")
            a.vmem(f"buffer_load_dwordx4 v{129+u}, {WS}, {sT2} offen{' sc1' if cfg.qdma == 1 else ''} lds", "qd")
        stamp(4)
    else:
        Ltry = a.newlabel("L_try"); Lok = a.newlabel("L_ok"); Lchk = a.newlabel("L_chk")
        a.try_wait_vm("qa")
        stamp(3)
        hello_finish()
        a(f"s_branch {Lchk}")
        a.label(Ltry)
        for k in range(16):
            sk = a.newlabel("L_sk")
            a(f"s_bitcmp1_b32 {sPend}, {k}")
            a(f"s_cbranch_scc0 {sk}")
            a(f"s_add_u32 {sT3}, {sQb}, {k*1024}")
            a(f"buffer_load_dwordx4 {R(VG+4*k,4)}, {vL16}, {WS}, {sT3} offen sc1")
            a.label(sk)
        a("s_waitcnt vmcnt(0)")
        a.label(Lchk)
        tagcheck([VG + 4*k + j for k in range(16) for j in (1, 3)], Lok)
        for k in range(16):
            sk = a.newlabel("L_sk")
            a(f"""s_mov_b64 {EX}, exec
            v_cmpx_eq_u32 vcc, {vTag}, v{VG+4*k+1}
            v_cmpx_eq_u32 vcc, {vTag}, v{VG+4*k+3}
            s_nop 3
            s_cmp_eq_u64 exec, {EX}
            s_mov_b64 exec, {EX}
            s_cbranch_scc0 {sk}
            s_bitset0_b32 {sPend}, {k}""")
            a.label(sk)
        a(f"s_sub_u32 {sSpin}, {sSpin}, 1")
        a(f"s_cmp_eq_u32 {sSpin}, 0")
        a(f"s_cbranch_scc0 {Ltry}")
        timeout_mark(2)
        a.label(Lok)
        if cfg.stamps: a(f"s_sub_u32 s{66+2*15}, {cfg.spin}, {sSpin}"); a(f"s_mov_b32 s{67+2*15}, 0")
        stamp(4)
    def uv_issue():
        a(f"""
        v_lshlrev_b32 v208, 16, {vKg}
        v_lshl_add_u32 v208, {vI}, 4, v208
        s_and_b32 {sT0}, {sL3}, 3
        s_lshl_b32 {sT0}, {sT0}, 7
        s_lshl_b32 {sT2}, {sWv}, 5
        s_add_u32 {sT0}, {sT0}, {sT2}
        s_lshl_b32 {sT0}, {sT0}, 13
        s_lshl_b32 {sT2}, {sH}, 8
        s_add_u32 {sT0}, {sT0}, {sT2}
        """)
        for tt in range(8):
            a.vmem(f"buffer_load_dwordx4 a[{32+4*tt}:{35+4*tt}], v208, {VV}, {sT0} offen{WNT}", "uv")
            if tt < 7: a(f"s_add_u32 {sT0}, {sT0}, 8192")
    bwo = [0]
    def b_wo(k=1):
        for _ in range(k):
            if bwo[0] < 12:
                wo_load(bwo[0], sUO, sUML); bwo[0] += 1
    early = []
    if cfg.b_uv == -1:
        a(f"""
        v_lshlrev_b32 v208, 16, {vKg}
        v_lshl_add_u32 v208, {vI}, 4, v208
        s_and_b32 {sQb}, {sL3}, 3
        s_lshl_b32 {sQb}, {sQb}, 7
        s_lshl_b32 {sT2}, {sWv}, 5
        s_add_u32 {sQb}, {sQb}, {sT2}
        s_lshl_b32 {sQb}, {sQb}, 13
        s_lshl_b32 {sT2}, {sH}, 8
        s_add_u32 {sQb}, {sQb}, {sT2}
        """)
        def uv_one(tt):
            def f():
                a(f"s_add_u32 {sT0}, {sQb}, {tt*8192}")
                a.vmem(f"buffer_load_dwordx4 a[{32+4*tt}:{35+4*tt}], v208, {VV}, {sT0} offen{WNT}", "uv")
            return f
        early += [uv_one(tt) for tt in range(8)]
    wo_setup(sUO, sUML)
    if cfg.b_wo == -1: early += [b_wo] * cfg.b_won1
    for k in range(0 if cfg.qdma else 16):
        u, half = k >> 1, k & 1
        if half == 0:
            a(f"v_xor_b32 v204, {(u & 3) << 6}, {vB0 if u < 4 else vB1}")
        a(f"v_mov_b32 v{VG+4*k+1}, v{VG+4*k+2}")
        a.lds(f"ds_write_b64 v204, v[{VG+4*k}:{VG+4*k+1}] offset:{u*1024 + half*512}", "qw")
        if early: early.pop(0)()
    while early: early.pop(0)()
    if "c7" in a.vm: a.wait_vm("c7")
    if cfg.qdma: a.wait_vm("qd")
    a.barrier()
    stamp(1)
    if cfg.pt == 2: pretouch("B2")
    D1 = cfg.b_d1
    if D1 > 4: RG = 128
    def g1read(t):
        s = RG + 8 * (t % D1)
        a.lds(f"ds_read_b128 {R(s,4)}, v{AC + (t & 7)} offset:{(t >> 3)*256}", f"g1c{t}")
        a.lds(f"ds_read_b128 {R(s+4,4)}, v{AQ + (t & 7)} offset:{(t >> 3)*256}", f"g1q{t}")
    for t in range(D1): g1read(t)
    if cfg.b_uv == 0: uv_issue()
    if cfg.b_wo == 0: b_wo(12)
    g1n = cfg.b_won2 if cfg.b_wo == -1 else 0
    for t in range(32):
        if g1n and t >= 32 - 2 * cfg.b_won2 and t % 2 == 0: b_wo(1)
        a.wait_lg(f"g1q{t}")
        s = RG + 8 * (t % D1)
        c = "0" if t == 0 else R(S1, 16)
        a(f"v_mfma_f32_32x32x16_bf16 {R(S1,16)}, {R(s,4)}, {R(s+4,4)}, {c}")
        if t + D1 < 32: g1read(t + D1)
    stamp(5)
    vM, vL = "v196", "v197"
    a(f"s_lshl_b32 {sT0}, {sWv}, 7")
    a(f"v_add_u32 v205, {sT0}, {vHx}")
    a(f"v_max3_f32 {vM}, v{S1}, v{S1+1}, v{S1+2}")
    for k in range(3, 15, 2):
        a(f"v_max3_f32 {vM}, {vM}, v{S1+k}, v{S1+k+1}")
    a(f"v_max_f32 {vM}, {vM}, v{S1+15}")
    a(f"v_mov_b32 {vA}, {vM}")
    a(f"v_permlane32_swap_b32 {vM}, {vA}")
    a(f"v_max_f32 {vM}, {vM}, {vA}")
    a.barrier()
    a.lds(f"ds_write_b32 v205, {vM} offset:{MX}", "mxw")
    a.barrier()
    for w in range(4):
        a.lds(f"ds_read_b32 v{80+w}, {vHx} offset:{MX + 128*w}", "mxr")
    a(f"s_lshl_b32 {sT0}, {sWv}, 11")
    a(f"s_add_u32 {sT0}, {sT0}, {X}")
    a(f"v_add_u32 v204, {sT0}, {vL16}")
    a.wait_lg()
    a(f"v_max3_f32 {vM}, v80, v81, v82")
    a(f"v_max_f32 {vM}, {vM}, v83")
    a(f"v_mul_f32 {vM}, {sC1}, {vM}")
    if cfg.b_uv == 1: uv_issue()
    for k in range(16):
        a(f"v_fma_f32 v{S1+k}, v{S1+k}, {sC1}, -{vM}")
    for k in range(16):
        a(f"v_exp_f32 v{S1+k}, v{S1+k}")
        if cfg.b_wo in (1, -1) or (cfg.b_wo == 2 and bwo[0] < cfg.b_won3): b_wo(1)
    for k in range(4):
        a(f"v_cvt_pk_bf16_f32 v{80+k}, v{S1+2*k}, v{S1+2*k+1}")
    a.lds(f"ds_write_b128 v204, v[80:83] offset:{PF}", "pfw")
    for k in range(4, 8):
        a(f"v_cvt_pk_bf16_f32 v{80+k}, v{S1+2*k}, v{S1+2*k+1}")
    a.lds(f"ds_write_b128 v204, v[84:87] offset:{PF + 1024}", "pfw")
    a(f"v_add_f32 {vL}, v{S1}, v{S1+1}")
    for k in range(2, 16):
        a(f"v_add_f32 {vL}, {vL}, v{S1+k}")
    a(f"v_mov_b32 {vB_}, {vL}")
    a(f"v_permlane32_swap_b32 {vL}, {vB_}")
    a(f"v_add_f32 {vL}, {vL}, {vB_}")
    a.lds(f"ds_write_b32 v205, {vL} offset:{LS}", "lsw")
    a(f"v_add_u32 v204, {X}, {vL16}")
    a.barrier()
    PFR = 208
    for kt in range(8):
        a.lds(f"ds_read_b128 {R(PFR+4*kt,4)}, v204 offset:{PF + 1024*kt}", "pfr")
    for w in range(4):
        a.lds(f"ds_read_b32 v{80+w}, {vHx} offset:{LS + 128*w}", "lsr")
    a.wait_lg()
    a(f"v_add_f32 v80, v80, v81")
    a(f"v_add_f32 v82, v82, v83")
    a(f"v_add_f32 {vL}, v80, v82")
    if not cfg.g2swap: a.barrier()
    stamp(12)
    OA = 128; RG2 = 80; D2 = 6
    st2 = [(kt, ct) for kt in range(8) for ct in range(4)]
    def g2read(idx):
        kt, ct = st2[idx]
        if kt == 4 and ct == 0:
            for q in range(8): a(f"v_add_u32 v{A2+q}, 65536, v{A2+q}")
        s = RG2 + 4 * (idx % D2)
        off = (kt & 3) * 16384
        a.lds(f"ds_read_b64_tr_b16 v[{s}:{s+1}], v{A2+2*ct} offset:{off}", f"g2a{idx}")
        a.lds(f"ds_read_b64_tr_b16 v[{s+2}:{s+3}], v{A2+2*ct+1} offset:{off}", f"g2b{idx}")
    for idx in range(D2): g2read(idx)
    for idx, (kt, ct) in enumerate(st2):
        a.wait_lg(f"g2b{idx}")
        s = RG2 + 4 * (idx % D2)
        c = "0" if kt == 0 else R(OA + 16*ct, 16)
        if cfg.g2swap:
            a(f"v_mfma_f32_32x32x16_bf16 {R(OA+16*ct,16)}, {R(PFR+4*kt,4)}, {R(s,4)}, {c}")
        else:
            a(f"v_mfma_f32_32x32x16_bf16 {R(OA+16*ct,16)}, {R(s,4)}, {R(PFR+4*kt,4)}, {c}")
        if idx + D2 < len(st2): g2read(idx + D2)
        if cfg.g2swap and idx == 8:
            a(f"""
            v_lshrrev_b32 {vA}, 5, {vLane}
            v_lshlrev_b32 v205, 19, {vA}
            v_and_b32 {vA}, 31, {vLane}
            v_lshl_add_u32 v205, {vA}, 3, v205
            s_sub_u32 {sT1}, {sW}, 128
            s_lshl_b32 {sT1}, {sT1}, 8
            s_lshl_b32 {sT0}, {sWv}, 15
            s_add_u32 {sT1}, {sT1}, {sT0}
            s_add_u32 {sT1}, {sT1}, {PB}
            """)
    stamp(6)
    if cfg.g2swap:
        for i in range(16):
            t = 80 + 2 * (i % 8)
            a(f"v_cvt_pk_bf16_f32 v{t}, v{OA+i}, v{OA+16+i}")
            a(f"v_cvt_pk_bf16_f32 v{t+1}, v{OA+32+i}, v{OA+48+i}")
            a(f"s_add_u32 {sT0}, {sT1}, {(8*(i//4) + (i%4))*131072}")
            a.vmem(f"buffer_store_dwordx2 v[{t}:{t+1}], v205, {WS}, {sT0} offen sc1", "pb_st")
    G2OLD_BEGIN = len(a.items)
    a(f"""
    v_and_b32 {vA}, 31, {vLane}
    v_lshlrev_b32 v204, 10, {vA}
    v_and_b32 {vA}, 7, {vLane}
    v_lshl_add_u32 v204, {vA}, 4, v204
    v_lshrrev_b32 {vA}, 5, {vLane}
    v_lshl_add_u32 v204, {vA}, 3, v204
    s_lshl_b32 {sT0}, {sWv}, 8
    s_add_u32 {sT0}, {sT0}, {X}
    v_add_u32 v204, {sT0}, v204
    """)
    for ct in range(4):
        for g in range(4):
            i0 = OA + 16*ct + 4*g
            t = 80 + 2 * ((ct*4+g) % 8)
            a(f"v_cvt_pk_bf16_f32 v{t}, v{i0}, v{i0+1}")
            a(f"v_cvt_pk_bf16_f32 v{t+1}, v{i0+2}, v{i0+3}")
            ad = f"v{96 + (ct*4+g) % 8}"
            a(f"v_xor_b32 {ad}, {(4*ct+g) << 4}, v204")
            a.lds(f"ds_write_b64 {ad}, v[{t}:{t+1}]", "tbw")
            if (ct*4+g) % 8 == 7 and ct < 3: a.wait_lg()
    a(f"""
    s_lshl_b32 {sT0}, {sWv}, 13
    s_add_u32 {sT0}, {sT0}, {X}
    v_add_u32 v204, {sT0}, {vL16}
    v_lshlrev_b32 v205, 15, {vKg}
    v_lshl_add_u32 v205, {vI}, 4, v205
    s_sub_u32 {sT1}, {sW}, 128
    s_lshl_b32 {sT1}, {sT1}, 8
    s_lshl_b32 {sT0}, {sWv}, 20
    s_add_u32 {sT1}, {sT1}, {sT0}
    s_add_u32 {sT1}, {sT1}, {PB}
    """)
    for u in range(8):
        a(f"v_xor_b32 v{104+u}, {u << 4}, v204")
    a.barrier()
    for u in range(8):
        a.lds(f"ds_read_b128 {R(128+4*u,4)}, v{104+u} offset:{u*1024}", f"tbr{u}")
    for u in range(8):
        a.wait_lg(f"tbr{u}")
        a.vmem(f"buffer_store_dwordx4 {R(128+4*u,4)}, v205, {WS}, {sT1} offen sc1", "pb_st")
        if u < 7: a(f"s_add_u32 {sT1}, {sT1}, 131072")
    if cfg.g2swap:
        del a.items[G2OLD_BEGIN:]; a.lg = []; a.vm = a.vm[:len(a.vm) - 8]
    stamp(7)
    a(f"""
    v_mov_b32 v80, {vM}
    v_mov_b32 v81, {vTag}
    v_mov_b32 v82, {vL}
    v_mov_b32 v83, {vTag}
    v_lshlrev_b32 {vA}, 11, {vLane}
    s_sub_u32 {sT1}, {sW}, 128
    s_lshl_b32 {sT1}, {sT1}, 4
    s_add_u32 {sT1}, {sT1}, {PBML}
    s_lshl_b32 {sQb}, {sH}, 11
    s_add_u32 {sQb}, {sQb}, {PBML}
    v_lshlrev_b32 v204, 4, {vTau}
    """)
    if cfg.b_wo == 6:
        b_wo(cfg.b_won6)
        a.wait_vm("pb_st")
    else:
        a(f"s_waitcnt vmcnt(0)")
    a("s_barrier")
    a(f"""
    v_cmp_gt_u32 vcc, 32, {vTau}
    s_and_saveexec_b64 {EX}, vcc
    s_cbranch_execz L_b_noml
    buffer_store_dwordx4 v[80:83], {vA}, {WS}, {sT1} offen sc1
    L_b_noml:
    s_mov_b64 exec, {EX}
    """)
    stamp(8)
    if cfg.b_uv == 2: uv_issue()
    mlfirst = cfg.mlfirst and cfg.b_wo == 2 and cfg.pbearly
    if (cfg.b_wo <= 2 or cfg.b_wo == 6) and not mlfirst: b_wo(12)
    def ml_issue():
        a.vmem(f"buffer_load_dwordx4 v[80:83], v204, {WS}, {sQb} offen sc1", "pbml")
    if cfg.b_wo == 5:
        Lml = a.newlabel("L_mlok")
        a(f"v_and_b32 v204, 127, {vTau}")
        a(f"v_lshlrev_b32 v204, 4, v204")
        a(f"s_mov_b32 {sPend}, 0")
        for _ in range(cfg.b_try):
            a.vm = []
            ml_issue()
            a("s_waitcnt vmcnt(0)")
            tagcheck([81, 83], Lml)
        a(f"s_mov_b32 {sPend}, 1")
        a.vm = []
        b_wo(12)
        ml_issue()
        poll(ml_issue, [81, 83], "pbml", 3)
        a.label(Lml)
        a(f"s_cmp_ge_u32 {sWv}, 2")
        a("s_cbranch_scc1 L_b_skipml")
    else:
        a(f"s_cmp_ge_u32 {sWv}, 2")
        if mlfirst:
            a("s_cbranch_scc1 L_b_w23")
            a.vm = []
            n0 = bwo[0]
            ml_issue()
            b_wo(12)
            poll(ml_issue, [81, 83], "pbml", 3)
            a("s_branch L_b_polled")
            a.label("L_b_w23")
            bwo[0] = n0
            b_wo(12)
        else:
            a("s_cbranch_scc1 L_b_polled" if cfg.pbearly else "s_cbranch_scc1 L_b_skipml")
            a.vm = []
            ml_issue()
            poll(ml_issue, [81, 83], "pbml", 3)
    if cfg.pbearly:
        assert cfg.b_wo != 5
        a.label("L_b_polled")
        a.vm = []
        a(f"""
        s_lshl_b32 {sX1}, {sL3}, 15
        s_lshl_b32 {sT1}, {sWv}, 13
        s_add_u32 {sX1}, {sX1}, {sT1}
        s_add_u32 {sX1}, {sX1}, {PB}
        v_lshlrev_b32 v206, 11, {vKg}
        v_lshl_add_u32 v206, {vI}, 4, v206
        s_barrier
        """)
        stamp(9)
        for tt in range(8):
            a.vmem(f"buffer_load_dwordx4 {R(128+4*tt,4)}, v206, {WS}, {sX1} offen offset:{256*tt} sc1", f"pb{tt}")
        vm_pb = list(a.vm)
        a(f"s_cmp_ge_u32 {sWv}, 2")
        a("s_cbranch_scc1 L_b_skipml")
    a("v_mov_b32 v84, v80")
    wave_reduce("v84", "v_max_f32", vA)
    a("v_sub_f32 v80, v80, v84")
    a("v_exp_f32 v80, v80")
    a(f"v_lshlrev_b32 {vC}, 1, {vTau}")
    a("v_mul_f32 v85, v80, v82")
    wave_reduce("v85", "v_add_f32", vA)
    a("v_rcp_f32 v85, v85")
    a(f"v_add_u32 {vC}, {X}, {vC}")
    a("v_mul_f32 v80, v80, v85")
    a("v_cvt_pk_bf16_f32 v80, v80, v80")
    a.lds(f"ds_write_b16 {vC}, v80 offset:{XS2}", "xs2w")
    a.wait_lg()
    a.label("L_b_skipml")
    a.vm = list(vm_pb) if cfg.pbearly else []
    vXa = "v205"
    a(f"""
    s_lshl_b32 {sT0}, {sL3}, 15
    s_lshl_b32 {sT1}, {sWv}, 13
    s_add_u32 {sT0}, {sT0}, {sT1}
    s_add_u32 {sT0}, {sT0}, {PB}
    v_lshlrev_b32 v204, 11, {vKg}
    v_lshl_add_u32 v204, {vI}, 4, v204
    s_lshl_b32 {sT1}, {sWv}, 6
    s_add_u32 {sT1}, {sT1}, {X}
    v_lshlrev_b32 {vXa}, 4, {vKg}
    v_add_u32 {vXa}, {sT1}, {vXa}
    s_add_u32 {sUO}, {sL3}, {(UO + 0x40000)//2048}
    s_lshl_b32 {sUO}, {sUO}, 11
    """)
    a.barrier()
    if not cfg.pbearly:
        stamp(9)
        for tt in range(8):
            a.vmem(f"buffer_load_dwordx4 {R(128+4*tt,4)}, v204, {WS}, {sT0} offen offset:{256*tt} sc1", f"pb{tt}")
    if cfg.b_uv == 3: uv_issue()
    def combine(with_wo):
        if with_wo:
            wo_setup(sUML, sQb)
            for n in range(12): wo_load(n, sUML, sQb)
        a.lds(f"ds_read_b128 v[88:91], {vXa} offset:{XS2}", "xf")
        a(f"s_lshr_b32 {sT0}, {sWv}, 1")
        a(f"v_cmp_eq_u32 vcc, {sT0}, {vBp}")
        a.wait_lg()
        for r in range(4):
            a(f"v_cndmask_b32 v{88+r}, 0, v{88+r}, vcc")
        gemv8([R(128+4*tt, 4) for tt in range(8)], 88, ACC, [f"pb{tt}" for tt in range(8)])
    if cfg.b_wo == 5:
        La = a.newlabel("L_cmbA"); Lj = a.newlabel("L_cmbJ")
        vm0 = list(a.vm); lg0 = list(a.lg)
        a(f"s_cmp_eq_u32 {sPend}, 1")
        a(f"s_cbranch_scc1 {La}")
        combine(True)
        a(f"s_branch {Lj}")
        a.label(La)
        a.vm = list(vm0); a.lg = list(lg0)
        combine(False)
        a.label(Lj)
        a.vm = []
    else:
        combine(cfg.b_wo == 3)
    red_write(ACC, vRedW, REDA)
    if cfg.g2swap:
        a(f"""
        v_and_b32 {vC}, 3, {vTau}
        v_lshlrev_b32 {vC}, 6, {vC}
        v_bfe_u32 {vA}, {vTau}, 2, 5
        v_lshl_add_u32 {vC}, {vA}, 1, {vC}
        v_lshrrev_b32 {vA}, 7, {vTau}
        v_lshl_add_u32 {vC}, {vA}, 8, {vC}
        """)
    else:
        a(f"v_lshlrev_b32 {vC}, 1, {vTau}")
    a(f"v_add_u32 {vC}, {X}, {vC}")
    a(f"v_lshl_add_u32 {vXa}, {vBp}, 8, {vXa}")
    a.barrier()
    red_sum4(80, 84, REDA, 1024)
    a("v_cvt_pk_bf16_f32 v80, v80, v80")
    a.lds(f"ds_write_b16 {vC}, v80 offset:{XS3}", "xs3w")
    a.barrier()
    a.lds(f"ds_read_b128 v[88:91], {vXa} offset:{XS3}", "xf")
    a.wait_lg()
    if cfg.b_uv == 3: a.try_wait_vm("uv")
    gemv8([f"a[{32+4*tt}:{35+4*tt}]" for tt in range(8)], 88, ACC, None)
    red_write(ACC, vRedW, REDB)
    a(f"""
    v_mov_b32 v81, {vTag}
    v_mov_b32 v92, 0
    v_mov_b32 v93, {vTag}
    v_mov_b32 v94, 0x3e800000
    v_mov_b32 v95, {vTag}
    v_lshrrev_b32 {vA}, 7, {vTau}
    v_lshlrev_b32 {vA}, 6, {vA}
    s_lshl_b32 {sT0}, {sH}, 7
    s_and_b32 {sT1}, {sL3}, 3
    s_lshl_b32 {sT1}, {sT1}, 4
    s_add_u32 {sT0}, {sT0}, {sT1}
    s_add_u32 {sT0}, {sT0}, {UML + 0x1000}
    s_add_u32 {sT1}, {sT0}, {FOFF}
    v_and_b32 {vB_}, 127, {vTau}
    v_cmp_eq_u32 vcc, 0, {vB_}
    s_and_saveexec_b64 {EX}, vcc
    s_cbranch_execz L_b_noml2
    buffer_store_dwordx4 v[92:95], {vA}, {WS}, {sT1} offen
    buffer_store_dwordx4 v[92:95], {vA}, {WS}, {sT0} offen sc1
    L_b_noml2:
    s_mov_b64 exec, {EX}
    """)
    a.barrier()
    red_sum4(80, 84, REDB, 1024)
    a(f"s_add_u32 {sT0}, {sUO}, {FOFF}")
    if cfg.fast: a(f"buffer_store_dwordx2 v[80:81], {vTau8}, {WS}, {sT0} offen")
    a(f"buffer_store_dwordx2 v[80:81], {vTau8}, {WS}, {sUO} offen sc1")
    stamp(10)
    a(f"s_add_u32 {sR}, {sH}, 32")

    a.label("L_stage4")
    a.vm = []; a.lg = []; a.smem = cfg.stamps
    a(f"""
    s_lshl_b32 {sUO}, {sBr}, 18
    s_lshl_b32 {sT0}, {sH}, 13
    s_add_u32 {sUO}, {sUO}, {sT0}
    s_add_u32 {sUO}, {sUO}, {UO}
    s_lshl_b32 {sUML}, {sBr}, 12
    s_lshl_b32 {sT0}, {sH}, 7
    s_add_u32 {sUML}, {sUML}, {sT0}
    s_add_u32 {sUML}, {sUML}, {UML}
    s_add_u32 {sUO}, {sUO}, {sFast}
    s_add_u32 {sUML}, {sUML}, {sFast}
    v_lshrrev_b32 v207, 7, {vTau}
    v_lshlrev_b32 v207, 6, v207
    s_and_b32 {sT0}, {sL3}, 3
    s_cmp_eq_u32 {sT0}, 3
    s_cbranch_scc1 L_final
    """)
    def u_one(s):
        def f():
            if s >= 2: a(f"s_add_u32 {sT3}, {sUO}, 4096")
            a.vmem(f"buffer_load_dwordx2 v[{80+2*s}:{81+2*s}], {vTau8}, {WS}, {sUO if s < 2 else sT3} offen offset:{2048*(s & 1)} sc1", "u")
            a.vmem(f"buffer_load_dwordx4 v[{88+4*s}:{91+4*s}], v207, {WS}, {sUML} offen offset:{16*s} sc1", "u")
        return f
    def u_issue():
        a(f"s_add_u32 {sT3}, {sUO}, 4096")
        a.vmem(f"buffer_load_dwordx2 v[80:81], {vTau8}, {WS}, {sUO} offen sc1", "u")
        a.vmem(f"buffer_load_dwordx2 v[82:83], {vTau8}, {WS}, {sUO} offen offset:2048 sc1", "u")
        a.vmem(f"buffer_load_dwordx2 v[84:85], {vTau8}, {WS}, {sT3} offen sc1", "u")
        a.vmem(f"buffer_load_dwordx2 v[86:87], {vTau8}, {WS}, {sT3} offen offset:2048 sc1", "u")
        for s in range(4):
            a.vmem(f"buffer_load_dwordx4 v[{88+4*s}:{91+4*s}], v207, {WS}, {sUML} offen offset:{16*s} sc1", "u")
    def u_issue2(b):
        a(f"s_add_u32 {sT3}, {sUO}, 4096")
        for s_ in range(4):
            a(f"buffer_load_dwordx2 v[{b+2*s_}:{b+1+2*s_}], {vTau8}, {WS}, {sUO if s_ < 2 else sT3} offen offset:{2048*(s_ & 1)} sc1")
        for s_ in range(4):
            a(f"buffer_load_dwordx4 v[{b+8+4*s_}:{b+11+4*s_}], v207, {WS}, {sUML} offen offset:{16*s_} sc1")
    if not cfg.p2u: u_issue()
    a(f"""
    v_lshlrev_b32 v110, 1, {vTau}
    v_add_u32 v110, {X}, v110
    s_lshl_b32 {sT0}, {sWv}, 6
    s_add_u32 {sT0}, {sT0}, {X}
    v_lshlrev_b32 v111, 4, {vKg}
    v_lshl_add_u32 v111, {vBp}, 8, v111
    v_add_u32 v111, {sT0}, v111
    v_lshlrev_b32 v112, 10, {vBp}
    v_lshl_add_u32 v112, {vKg}, 7, v112
    v_and_b32 {vA}, 7, {vLane}
    v_lshl_add_u32 v112, {vA}, 2, v112
    s_lshl_b32 {sT0}, {sWv}, 11
    s_add_u32 {sT0}, {sT0}, {X}
    v_add_u32 v112, {sT0}, v112
    v_lshrrev_b32 v113, 7, {vTau}
    v_and_b32 v114, 127, {vTau}
    v_lshlrev_b32 v115, 10, v113
    v_lshl_add_u32 v115, v114, 3, v115
    v_add_u32 v115, {X}, v115
    v_mul_u32_u24 v116, 4608, v113
    v_lshl_add_u32 v116, v114, 4, v116
    s_lshl_b32 {sT0}, {sBr}, 5
    s_add_u32 {sT0}, {sT0}, {sH}
    s_mul_i32 {sT0}, {sT0}, 9216
    s_and_b32 {sT1}, {sL3}, 3
    s_mul_i32 {sT1}, {sT1}, 1536
    s_add_u32 {sT0}, {sT0}, {sT1}
    s_add_u32 {sQb}, {sT0}, {OP}
    """)
    def u_consume(b):
        m = b + 8
        a(f"v_max3_f32 v104, v{m}, v{m+4}, v{m+8}")
        a(f"v_max_f32 v104, v104, v{m+12}")
        for s in range(4): a(f"v_sub_f32 v{m+4*s}, v{m+4*s}, v104")
        for s in range(4): a(f"v_exp_f32 v{m+4*s}, v{m+4*s}")
        a(f"v_mul_f32 v105, v{m}, v{b}")
        a(f"v_mul_f32 v106, v{m}, v{m+2}")
        for s in range(1, 4):
            a(f"v_fmac_f32 v105, v{m+4*s}, v{b+2*s}")
            a(f"v_fmac_f32 v106, v{m+4*s}, v{m+2+4*s}")
    if cfg.p2u:
        def u_pace():
            a(f"v_mov_b32 v120, 0")
            a(f"buffer_load_dword v121, v120, {WS}, 0 offen")
        poll2(u_issue2, 8, 128, 160, [1, 3, 5, 7] + [8+4*s+j for s in range(4) for j in (1, 3)], 4, u_pace, u_consume)
        stamp(13)
    else:
        if cfg.pend:
            poll_groups([(u_one(s), [81+2*s, 89+4*s, 91+4*s]) for s in range(4)], "u", 4)
        else:
            poll(u_issue, [81, 83, 85, 87] + [88+4*s+j for s in range(4) for j in (1, 3)], "u", 4)
        stamp(13)
        u_consume(80)
    a("v_rcp_f32 v106, v106")
    a("v_mul_f32 v105, v105, v106")
    a("v_cvt_pk_bf16_f32 v105, v105, v105")
    a.lds(f"ds_write_b16 v110, v105 offset:{XS}", "xsw")
    a.barrier()
    a.lds(f"ds_read_b128 v[88:91], v111 offset:{XS}", "xf")
    a.wait_lg()
    A0, AA, AB = 68, 92, 96
    build_frag(FR0, "v88", 0)
    for tt in range(8):
        cur = FR0 if tt % 2 == 0 else FR1
        nxt = FR1 if tt % 2 == 0 else FR0
        if tt < 7: build_frag(nxt, f"v{88 + (tt+1)//2}", (tt+1) % 2)
        c = "0" if tt == 0 else R(A0, 4)
        a(f"v_mfma_f32_16x16x32_bf16 {R(A0,4)}, a[{128+4*tt}:{131+4*tt}], {R(cur,4)}, {c}")
        acc = AA if tt % 2 == 0 else AB
        c = "0" if tt < 2 else R(acc, 4)
        a(f"v_mfma_f32_16x16x32_bf16 {R(acc,4)}, a[{160+4*(tt//2)}:{163+4*(tt//2)}], {R(cur,4)}, {c}")
    a(f"v_cmp_gt_u32 vcc, 32, {vLane}")
    red_write(A0, "v112", RED4)
    for r in range(4):
        a(f"v_cndmask_b32 v{AA+r}, v{AB+r}, v{AA+r}, vcc")
    red_write(AA, "v112", RED4 + 512)
    a.barrier()
    for w in range(4):
        a.lds(f"ds_read_b64 v[{80+2*w}:{81+2*w}], v115 offset:{RED4 + 2048*w}", "r4")
        a.lds(f"ds_read_b64 v[{88+2*w}:{89+2*w}], v115 offset:{RED4 + 2048*w + 256}", "r4")
    a(f"v_cmp_le_u32 vcc, 64, v114")
    a(f"v_mov_b32 v101, {vTag}")
    a(f"v_mov_b32 v103, {vTag}")
    a.wait_lg()
    for k in range(2):
        a(f"v_add_f32 v{80+k}, v{80+k}, v{82+k}")
        a(f"v_add_f32 v{84+k}, v{84+k}, v{86+k}")
        a(f"v_add_f32 v{88+k}, v{88+k}, v{90+k}")
        a(f"v_add_f32 v{92+k}, v{92+k}, v{94+k}")
        a(f"v_add_f32 v{80+k}, v{80+k}, v{84+k}")
        a(f"v_add_f32 v{88+k}, v{88+k}, v{92+k}")
        a(f"v_cndmask_b32 v{88+k}, 0, v{88+k}, vcc")
        a(f"v_add_f32 v{100+2*k}, v{80+k}, v{88+k}")
    a(f"""
    v_cmp_gt_u32 vcc, 96, v114
    s_and_saveexec_b64 {EX}, vcc
    buffer_store_dwordx4 v[100:103], v116, {WS}, {sQb} offen sc1
    s_mov_b64 exec, {EX}
    """)
    stamp(11)
    a("s_branch L_done")

    a.label("L_final")
    a.vm = []; a.lg = []
    a(f"""
    s_cmp_ge_u32 {sR}, 36
    s_cbranch_scc1 L_done
    s_cmp_ge_u32 {sR}, 18
    s_cselect_b32 {sT0}, 1, 0
    s_cselect_b32 {sT1}, 18, 0
    s_sub_u32 {sT1}, {sR}, {sT1}
    s_mul_i32 {sT2}, {sT0}, 4608
    s_lshl_b32 {sT3}, {sT1}, 8
    s_add_u32 {sT2}, {sT2}, {sT3}
    s_mul_i32 {sT3}, {sWv}, {16*9216}
    s_add_u32 {sQb}, {sT2}, {sT3}
    s_add_u32 {sQb}, {sQb}, {OP}
    v_mul_u32_u24 v204, 9216, {vKg}
    v_lshl_add_u32 v204, {vI}, 4, v204
    s_mul_i32 {sUO}, {sT0}, 2304
    s_lshl_b32 {sT1}, {sT1}, 6
    s_add_u32 {sUO}, {sUO}, {sT1}
    """)
    def f_one(n):
        def f():
            a(f"s_add_u32 {sT3}, {sQb}, {n*4*9216}")
            a.vmem(f"buffer_load_dwordx4 v[{80+4*n}:{83+4*n}], v204, {WS}, {sT3} offen sc1", "f")
        return f
    def f_issue():
        for n in range(4): f_one(n)()
    if cfg.gate:
        def gate_issue():
            for s_ in range(4):
                a.vmem(f"buffer_load_dwordx4 v[{88+4*s_}:{91+4*s_}], v207, {WS}, {sUML} offen offset:{16*s_} sc1", "g")
        gate_issue()
        poll(gate_issue, [88+4*s_+j for s_ in range(4) for j in (1, 3)], "g", 7)
    if not cfg.p2f: f_issue()
    a(f"""
    s_lshl_b32 {sT0}, {sWv}, 7
    s_add_u32 {sT0}, {sT0}, {X}
    v_lshlrev_b32 v110, 3, {vI}
    v_add_u32 v110, {sT0}, v110
    v_lshlrev_b32 v111, 8, {vKg}
    v_lshl_add_u32 v111, {vI}, 3, v111
    v_add_u32 v111, {X}, v111
    v_mul_u32_u24 v112, 1152, {vKg}
    v_lshl_add_u32 v112, {vI}, 2, v112
    """)
    def f_consume(b):
        a(f"v_add_f32 v{b}, v{b}, v{b+4}")
        a(f"v_add_f32 v{b+8}, v{b+8}, v{b+12}")
        a(f"v_add_f32 v{b+2}, v{b+2}, v{b+6}")
        a(f"v_add_f32 v{b+10}, v{b+10}, v{b+14}")
        a(f"v_add_f32 v80, v{b}, v{b+8}")
        a(f"v_add_f32 v81, v{b+2}, v{b+10}")
    if cfg.p2f:
        def f_issue2(b):
            for n in range(4):
                a(f"s_add_u32 {sT3}, {sQb}, {n*4*9216}")
                a(f"buffer_load_dwordx4 v[{b+4*n}:{b+3+4*n}], v204, {WS}, {sT3} offen sc1")
        def f_pace():
            a(f"v_mov_b32 v120, 0")
            a(f"buffer_load_dword v121, v120, {WS}, 0 offen sc1" if cfg.p2f == 2 else f"buffer_load_dword v121, v120, {WS}, 0 offen")
        poll2(f_issue2, 4, 128, 144, [4*n+j for n in range(4) for j in (1, 3)], 5, f_pace, f_consume)
        stamp(13)
    else:
        if cfg.pend:
            poll_groups([(f_one(n), [81+4*n, 83+4*n]) for n in range(4)], "f", 5)
        else:
            poll(f_issue, [80+4*n+j for n in range(4) for j in (1, 3)], "f", 5)
        stamp(13)
        f_consume(80)
    xlane_reduce("v80", "v_add_f32", vA)
    xlane_reduce("v81", "v_add_f32", vB_)
    a(f"""
    v_cmp_gt_u32 vcc, 16, {vLane}
    s_and_saveexec_b64 {EX}, vcc
    """)
    a.lds(f"ds_write_b64 v110, v[80:81] offset:{RF}", "rfw")
    a(f"s_mov_b64 exec, {EX}")
    a.barrier()
    a(f"""
    v_cmp_gt_u32 vcc, 32, {vTau}
    s_and_saveexec_b64 {EX}, vcc
    s_cbranch_execz L_f_skip
    ds_read_b64 v[80:81], v111 offset:{RF}
    ds_read_b64 v[82:83], v111 offset:{RF + 128}
    s_waitcnt lgkmcnt(0)
    v_add_f32 v80, v80, v82
    v_add_f32 v81, v81, v83
    v_cvt_pk_bf16_f32 v80, v80, v81
    buffer_store_dword v80, v112, {OUT}, {sUO} offen
    s_cmp_lg_u32 {sR}, 0
    s_cbranch_scc1 L_f_skip
    v_mov_b32 {vA}, 0
    v_cmp_eq_u32 vcc, 0, {vTau}
    s_and_b64 exec, exec, vcc
    buffer_store_dword {vTag}, {vA}, {WS}, 0 offen sc1
    L_f_skip:
    s_mov_b64 exec, {EX}
    """)
    stamp(11)
    a.label("L_done")
    if cfg.stamps:
        a(f"""
        s_waitcnt lgkmcnt(0)
        s_lshl_b32 {sT0}, {sW}, 2
        s_add_u32 {sT0}, {sT0}, {sWv}
        s_lshl_b32 {sT0}, {sT0}, 7
        s_add_u32 {sT0}, {sT0}, {STAMP}
        v_mov_b32 {vA}, 0
        v_cmp_eq_u32 vcc, 0, {vLane}
        s_and_saveexec_b64 {EX}, vcc
        """)
        for k in range(NST):
            a(f"v_mov_b32 v80, s{66+2*k}")
            a(f"v_mov_b32 v81, s{67+2*k}")
            a(f"buffer_store_dwordx2 v[80:81], {vA}, {WS}, {sT0} offen offset:{8*k}")
            a("s_nop 1")
        if cfg.dbgt:
            a(f"""
            s_memrealtime s[98:99]
            s_mov_b32 s32, s60
            s_mov_b32 s33, s61
            s_mov_b32 s34, 256
            s_mov_b32 s35, 0x20000
            s_waitcnt lgkmcnt(0)
            s_not_b32 {sT0}, s66
            v_mov_b32 v80, {sT0}
            v_mov_b32 v81, s66
            v_mov_b32 v82, s98
            buffer_atomic_umax v80, {vA}, s[32:35], 0 offen sc1
            buffer_atomic_umax v81, {vA}, s[32:35], 0 offen offset:4 sc1
            buffer_atomic_umax v82, {vA}, s[32:35], 0 offen offset:8 sc1
            s_cmp_ge_u32 {sW}, 128
            s_cbranch_scc1 L_dbgB
            """)
            for j, k in enumerate((1, 8, 7, 2, 4, 5)):
                a(f"v_mov_b32 v{84+j}, s{66+2*k}")
                a(f"buffer_atomic_umax v{84+j}, {vA}, s[32:35], 0 offen offset:{12+4*j} sc1")
            a("s_branch L_dbgE")
            a.label("L_dbgB")
            for j, k in enumerate((2, 4, 5, 7, 9, 10, 13)):
                a(f"v_mov_b32 v{84+j}, s{66+2*k}")
                a(f"buffer_atomic_umax v{84+j}, {vA}, s[32:35], 0 offen offset:{36+4*j} sc1")
            a.label("L_dbgE")
            a("s_waitcnt vmcnt(0)")
        else:
            a(f"s_mov_b64 exec, {EX}")
    a.label("L_end")
    a("s_endpgm")
    return a

HEADER = open("cdna_kernels/" + KN + ".s.ref").read().split("; Override launch")[0]
def build(cfg):
    a = gen(cfg)
    body = a.text()
    name = KN + "_kernel"
    s = HEADER
    s += "; Override launch geometry by editing the next line.\n"
    s += "; @launch grid=(256,1,1) block=(256,1,1) lds=163840\n"
    s += '.amdgcn_target "amdgcn-amd-amdhsa--gfx950"\n.text\n'
    s += f".globl {name}\n.p2align 8\n.type {name},@function\n{name}:\n"
    s += body
    s += f"""
.section .rodata,"a"
.p2align 6
.amdhsa_kernel {name}
  .amdhsa_next_free_vgpr 512
  .amdhsa_next_free_sgpr 102
  .amdhsa_accum_offset 256
  .amdhsa_group_segment_fixed_size 0
  .amdhsa_kernarg_size 112
  .amdhsa_user_sgpr_count 2
  .amdhsa_user_sgpr_kernarg_segment_ptr 1
  .amdhsa_system_sgpr_workgroup_id_x 1
.end_amdhsa_kernel
"""
    return s

if __name__ == "__main__":
    ap = argparse.ArgumentParser()
    ap.add_argument("-o", default="cdna_kernels/" + KN + ".s")
    ap.add_argument("--set", nargs="*", default=[])
    args = ap.parse_args()
    cfg = Cfg()
    for kv in args.set:
        k, v = kv.split("=")
        assert hasattr(cfg, k), k
        setattr(cfg, k, type(getattr(cfg, k))(int(v)))
    open(args.o, "w").write(build(cfg))
```
